```python
import torch

def _softmax(x, axis=-1):
    return torch.softmax(x, dim=axis)
def _gelu(x):
    return torch.nn.functional.gelu(x, approximate="tanh")
def _silu(x):
    return torch.nn.functional.silu(x)
def _sigmoid(x):
    return torch.sigmoid(x)
def _layernorm(x, axis=-1, eps=1e-5):
    m = x.mean(dim=axis, keepdim=True)
    v = x.var(dim=axis, keepdim=True, unbiased=False)
    return (x - m) / torch.sqrt(v + eps)
def _scatter_add(tgt, idx, src, axis=0):
    return tgt.clone().index_add_(axis, idx, src)
def _segment_sum(src, seg, n):
    out = torch.zeros((n,) + src.shape[1:], dtype=src.dtype)
    return out.index_add_(0, seg, src)
def _pad(x, pw):
    flat = tuple(v for pair in reversed(pw) for v in pair)
    return torch.nn.functional.pad(x, flat)

kernel_name = 'concat_heads__mha_block_cached__gqa_block_cached__near_ridge'

def setup_inputs():

    _w = (lambda a: (lambda t: t.to(torch.bfloat16) if t.is_floating_point() else t)(torch.as_tensor(a)))
    def _A_setup():
        B, Sq, D = 16, 32, 1024
        H, Sk, Dh = 32, 32, 128
        return {
            "x": _w((lambda *s: torch.randn(*s, dtype=torch.bfloat16) * 0.8)(B, Sq, D)),
            "k_cache": _w((lambda *s: torch.randn(*s, dtype=torch.bfloat16) * 0.8)(B, H, Sk, Dh)),
            "v_cache": _w((lambda *s: torch.randn(*s, dtype=torch.bfloat16) * 0.05)(B, H, Sk, Dh)),
            "wq": _w((lambda *s: torch.randn(*s, dtype=torch.bfloat16) * 0.8)(D, H * Dh) * (D ** -0.5)),
            "wo": _w((lambda *s: torch.randn(*s, dtype=torch.bfloat16) * 0.05)(H * Dh, D) * ((H * Dh) ** -0.5)),
        }
    _A_in = _A_setup()

    def _B_setup():
        B, Sq, D = 16, 32, 1024
        Hq, Hkv, Sk, Dh = 32, 32, 32, 128
        assert Hq % Hkv == 0, (Hq, Hkv)
        return {
            "x": _w((lambda *s: torch.randn(*s, dtype=torch.bfloat16) * 0.8)(B, Sq, D)),
            "k_cache": _w((lambda *s: torch.randn(*s, dtype=torch.bfloat16) * 0.8)(B, Hkv, Sk, Dh)),
            "v_cache": _w((lambda *s: torch.randn(*s, dtype=torch.bfloat16) * 0.05)(B, Hkv, Sk, Dh)),
            "wq": _w((lambda *s: torch.randn(*s, dtype=torch.bfloat16) * 0.8)(D, Hq * Dh) * (D ** -0.5)),
            "wo": _w((lambda *s: torch.randn(*s, dtype=torch.bfloat16) * 0.05)(Hq * Dh, D) * ((Hq * Dh) ** -0.5)),
        }
    _B_in = _B_setup()

    return {
        "A_x": _A_in["x"],
        "A_k_cache": _A_in["k_cache"],
        "A_v_cache": _A_in["v_cache"],
        "A_wq": _A_in["wq"],
        "A_wo": _A_in["wo"],
        "B_x": _B_in["x"],
        "B_k_cache": _B_in["k_cache"],
        "B_v_cache": _B_in["v_cache"],
        "B_wq": _B_in["wq"],
        "B_wo": _B_in["wo"],
    }

def reference(A_x, A_k_cache, A_v_cache, A_wq, A_wo, B_x, B_k_cache, B_v_cache, B_wq, B_wo):
    def _A_ref(x, k_cache, v_cache, wq, wo):
        B, Sq, D = x.shape
        H, Dh = 32, 128
        q = (lambda x, *d: x.permute(*d))((x @ wq).reshape(B, Sq, H, Dh), 0, 2, 1, 3)
        scores = torch.einsum("bhqd,bhkd->bhqk", q, k_cache) * (Dh ** -0.5)
        p = _softmax(scores, axis=-1)
        o = torch.einsum("bhqk,bhkd->bhqd", p, v_cache)
        return (lambda x, *d: x.permute(*d))(o, 0, 2, 1, 3).reshape(B, Sq, H * Dh) @ wo

    def _B_ref(x, k_cache, v_cache, wq, wo):
        B, Sq, D = x.shape
        Hq, Dh = 32, 128
        Hkv = k_cache.shape[1]
        rep = Hq // Hkv
        q = (lambda x, *d: x.permute(*d))((x @ wq).reshape(B, Sq, Hq, Dh), 0, 2, 1, 3)
        k = (lambda x, n, axis: torch.repeat_interleave(x, n, dim=axis))(k_cache, rep, axis=1)
        v = (lambda x, n, axis: torch.repeat_interleave(x, n, dim=axis))(v_cache, rep, axis=1)
        scores = torch.einsum("bhqd,bhkd->bhqk", q, k) * (Dh ** -0.5)
        p = _softmax(scores, axis=-1)
        o = torch.einsum("bhqk,bhkd->bhqd", p, v)
        return (lambda x, *d: x.permute(*d))(o, 0, 2, 1, 3).reshape(B, Sq, Hq * Dh) @ wo

    a = _A_ref(A_x, A_k_cache, A_v_cache, A_wq, A_wo)
    b = _B_ref(B_x, B_k_cache, B_v_cache, B_wq, B_wo)
    return torch.concatenate([a, b], axis=-1)
```

```python
class Asm:
    def __init__(self):
        self.lines = []
    def __call__(self, s):
        for l in s.strip('\n').split('\n'):
            self.lines.append('    ' + l.strip())
    def label(self, l):
        self.lines.append(l + ':')
    def raw(self, s):
        self.lines.append(s)
    def c(self, s):
        self.lines.append('    ; ' + s)
    def text(self):
        return '\n'.join(self.lines) + '\n'

def vr(b, n=1):
    return f'v{b}' if n == 1 else f'v[{b}:{b+n-1}]'
def ar(b, n=1):
    return f'a{b}' if n == 1 else f'a[{b}:{b+n-1}]'
def sr(b, n=1):
    return f's{b}' if n == 1 else f's[{b}:{b+n-1}]'

def kd(name, vgpr, sgpr, accum):
    return f'''.section .rodata,"a"
.p2align 6
.amdhsa_kernel {name}
  .amdhsa_next_free_vgpr {vgpr}
  .amdhsa_next_free_sgpr {sgpr}
  .amdhsa_accum_offset {accum}
  .amdhsa_group_segment_fixed_size 0
  .amdhsa_kernarg_size 104
  .amdhsa_user_sgpr_count 2
  .amdhsa_user_sgpr_kernarg_segment_ptr 1
  .amdhsa_system_sgpr_workgroup_id_x 1
.end_amdhsa_kernel
'''

def interleave(main, fill, start=0, per=None):
    out = []
    n = len(main)
    k = len(fill)
    idx = 0
    for i, m in enumerate(main):
        out.append(m)
        tgt = (k * (i + 1) + n - 1) // n
        while idx < tgt:
            out.append(fill[idx]); idx += 1
    return out
```

```python
import sys
from asmlib import *

NAME = 'concat_heads__mha_block_cached__gqa_block_cached__near_ridge'
MF = 'v_mfma_f32_32x32x16_bf16'

def load_ptrs(a):
    a('s_load_dwordx16 s[16:31], s[0:1], 0')
    a('s_load_dwordx8 s[32:39], s[0:1], 64')
    a('s_load_dwordx2 s[40:41], s[0:1], 96')

def srd(a, d, lo, hi, nbytes):
    a(f's_mov_b32 s{d}, s{lo}')
    a(f's_and_b32 s{d+1}, s{hi}, 0xffff')
    a(f's_mov_b32 s{d+2}, {hex(nbytes)}')
    a(f's_mov_b32 s{d+3}, 0x00020000')

def srd_sel(a, d, pa, pb, nbytes):
    a(f's_cselect_b32 s{d}, s{pb}, s{pa}')
    a(f's_cselect_b32 s{d+1}, s{pb+1}, s{pa+1}')
    a(f's_mov_b32 s{d+2}, {hex(nbytes)}')
    a(f's_mov_b32 s{d+3}, 0x00020000')

def gen_k1():
    a = Asm()
    a.raw('.p2align 8')
    a.raw('.type k1_kernel,@function')
    a.label('k1_kernel')
    a('s_cmp_ge_u32 s2, 256')
    a('s_cbranch_scc1 K1_END')
    load_ptrs(a)
    a('s_and_b32 s3, s2, 7')
    a('s_lshr_b32 s4, s2, 3')
    a('s_lshr_b32 s5, s3, 2')
    a('s_and_b32 s6, s3, 3')
    a('s_lshl_b32 s6, s6, 3')
    a('s_and_b32 s7, s4, 7')
    a('s_add_u32 s6, s6, s7')
    a('s_lshr_b32 s7, s4, 3')
    a('v_lshrrev_b32 v1, 6, v0')
    a('v_and_b32 v2, 63, v0')
    a('s_nop 0')
    a('v_readfirstlane_b32 s8, v1')
    a('s_nop 3')
    a('s_lshl_b32 s9, s7, 2')
    a('s_add_u32 s9, s9, s8')
    a('v_lshrrev_b32 v3, 3, v2')
    a('v_and_b32 v4, 7, v2')
    a('v_lshrrev_b32 v5, 4, v2')
    a('s_lshl_b32 s10, s9, 16')
    for i in range(4):
        a(f'v_add_u32 v6, {4*(i%2)}, v5')
        a('v_xor_b32 v6, v6, v4')
        a('v_lshlrev_b32 v6, 4, v6')
        a(f'v_add_u32 v7, {8*i}, v3')
        a('v_lshl_add_u32 v6, v7, 11, v6')
        a(f'v_add_u32 v6, s10, v6')
        a(f'v_subrev_u32 v{16+i}, {1024*i}, v6')
    a('v_and_b32 v6, 15, v2')
    a('v_lshlrev_b32 v7, 2, v5')
    a('v_xor_b32 v6, v6, v7')
    a('v_lshlrev_b32 v8, 4, v6')
    a('s_lshl_b32 s10, s8, 17')
    a('s_lshl_b32 s11, s6, 8')
    a('s_add_u32 s10, s10, s11')
    a('v_lshl_add_u32 v6, v5, 13, v8')
    a('v_add_u32 v20, s10, v6')
    for i in range(1, 4):
        a(f'v_add_u32 v{20+i}, {i*(4*8192-1024)}, v20')
    a('s_lshl_b32 s10, s9, 5')
    a('s_add_u32 s10, s10, s6')
    a('s_lshl_b32 s10, s10, 13')
    a('v_lshl_add_u32 v9, v5, 8, v8')
    a('v_add_u32 v9, s10, v9')
    a('v_and_b32 v6, 31, v2')
    a('v_lshrrev_b32 v11, 5, v2')
    a('v_and_b32 v7, 0x13, v6')
    a('v_bfe_u32 v12, v6, 2, 1')
    a('v_lshl_or_b32 v7, v12, 3, v7')
    a('v_bfe_u32 v12, v6, 3, 1')
    a('v_lshl_or_b32 v7, v12, 2, v7')
    a('v_lshlrev_b32 v7, 8, v7')
    a('v_lshl_add_u32 v7, v11, 4, v7')
    a('v_add_u32 v10, s10, v7')
    a('v_bfe_u32 v7, v6, 1, 3')
    a('v_xor_b32 v7, v7, v11')
    a('s_lshl_b32 s11, s8, 12')
    for s in range(4):
        a(f'v_xor_b32 v12, {2*s}, v7')
        a('v_lshlrev_b32 v12, 4, v12')
        a('v_lshl_add_u32 v12, v6, 7, v12')
        a(f'v_add_u32 v{24+s}, s11, v12')
        a(f'v_add_u32 v{28+s}, 0x10000, v{24+s}')
    a('v_bfe_u32 v12, v2, 2, 2')
    a('v_bfe_u32 v13, v2, 4, 1')
    a('v_bfe_u32 v14, v2, 0, 1')
    a('v_bfe_u32 v15, v2, 1, 1')
    a('v_lshl_or_b32 v14, v14, 1, v15')
    a('v_lshlrev_b32 v14, 3, v14')
    a('v_lshl_add_u32 v14, v13, 5, v14')
    a('v_lshl_add_u32 v15, v11, 3, v12')
    a('v_lshl_add_u32 v14, v15, 8, v14')
    a('v_add_u32 v14, 0x4000, v14')
    for t in range(4):
        a(f'v_xor_b32 v15, {t}, v12')
        a(f'v_lshl_add_u32 v{32+t}, v15, 6, v14')
        a(f'v_add_u32 v{36+t}, 0x10000, v{32+t}')
    a('s_waitcnt lgkmcnt(0)')
    a('s_cmp_eq_u32 s5, 1')
    srd_sel(a, 44, 16, 26, 1 << 20)
    srd_sel(a, 48, 18, 28, 4 << 20)
    srd_sel(a, 52, 20, 30, 4 << 20)
    srd_sel(a, 56, 22, 32, 8 << 20)
    srd(a, 60, 40, 41, 8 << 20)
    a('s_mov_b32 s64, 0')
    a('s_mov_b32 s65, 0')
    a('s_lshl_b32 s66, s8, 12')

    def dma_group(j):
        slot = j % 4
        L = []
        L.append(f's_add_u32 m0, s66, {slot*32768}')
        L.append(f's_mov_b32 s64, {j*128}')
        for i in range(4):
            L.append(f'buffer_load_dwordx4 v{16+i}, s[44:47], s64 offen offset:{1024*i} lds')
        L.append(f's_add_u32 m0, s66, {slot*32768+16384}')
        L.append(f's_mov_b32 s65, {j*524288}')
        for i in range(4):
            L.append(f'buffer_load_dwordx4 v{20+i}, s[56:59], s65 offen offset:{1024*i} lds')
        return L

    F = [40, 60]
    ACC = 80
    KF = 144
    def frag_reads(j, s, f):
        slot = j % 4
        hi = slot >= 2
        so = (slot % 2) * 32768
        L = []
        L.append(f'ds_read_b128 {vr(F[f]+16,4)}, v{(28 if hi else 24)+s} offset:{so}')
        for t in range(4):
            for u in range(2):
                L.append(f'ds_read_b64_tr_b16 {vr(F[f]+4*t+2*u,2)}, v{(36 if hi else 32)+t} offset:{so+s*4096+u*1024}')
        return L
    def mfmas(f, first):
        return [f'{MF} {vr(ACC+16*t,16)}, {vr(F[f]+4*t,4)}, {vr(F[f]+16,4)}, ' + ('0' if first else vr(ACC+16*t,16)) for t in range(4)]

    for l in dma_group(0): a(l)
    for s in range(8):
        a(f'buffer_load_dwordx4 {vr(KF+4*s,4)}, v10, s[48:51], 0 offen offset:{32*s}')
    a('s_lshl_b32 s67, s8, 13')
    a('s_add_u32 m0, s67, 0x20000')
    a('s_mov_b32 s68, 4096')
    for i in range(4):
        a(f'buffer_load_dwordx4 v9, s[52:55], 0 offen offset:{1024*i} lds')
    a('s_add_u32 m0, s67, 0x21000')
    a('s_nop 0')
    for i in range(4):
        a(f'buffer_load_dwordx4 v9, s[52:55], s68 offen offset:{1024*i} lds')
    for j in range(1, 4):
        for l in dma_group(j): a(l)
    a('s_waitcnt vmcnt(40)')
    a('s_barrier')
    for l in frag_reads(0, 0, 0): a(l)
    f = 0
    NS = 16
    for j in range(NS):
        for s in range(4):
            fill = []
            if s < 3:
                fill = frag_reads(j, s+1, f ^ 1)
                a('s_waitcnt lgkmcnt(0)')
            else:
                a('s_waitcnt lgkmcnt(0)')
                if j + 1 < NS:
                    n_out = min(j + 3, NS - 1) - (j + 1)
                    a(f's_waitcnt vmcnt({8*n_out})')
                    a('s_barrier')
                    fill = frag_reads(j+1, 0, f ^ 1)
                    if j + 4 < NS:
                        fill = fill + dma_group(j + 4)
            for l in interleave(mfmas(f, j == 0 and s == 0), fill): a(l)
            f ^= 1
    QF = 176
    a('s_nop 15')
    a('s_add_u32 s67, s67, 0x1c000')
    for t in range(4):
        a(f'v_add_u32 v{32+t}, s67, v{32+t}')
    VF = 40
    for t in range(4):
        for s in range(2):
            for u in range(2):
                a(f'ds_read_b64_tr_b16 {vr(VF+8*t+4*s+2*u,2)}, v{32+t} offset:{s*4096+u*1024}')
    for i in range(32):
        a(f'v_cvt_pk_bf16_f32 v{QF+i}, v{ACC+2*i}, v{ACC+2*i+1}')
    S = 208
    a('s_nop 1')
    for s in range(8):
        a(f'{MF} {vr(S,16)}, {vr(KF+4*s,4)}, {vr(QF+4*s,4)}, ' + ('0' if s == 0 else vr(S,16)))
    a('s_nop 15')
    a(f'v_max3_f32 v1, v{S}, v{S+1}, v{S+2}')
    for i in range(3, 15, 2):
        a(f'v_max3_f32 v1, v1, v{S+i}, v{S+i+1}')
    a(f'v_max_f32 v1, v1, v{S+15}')
    a('v_mov_b32 v3, v1')
    a('s_nop 1')
    a('v_permlane32_swap_b32 v1, v3')
    a('s_nop 1')
    a('v_max_f32 v1, v1, v3')
    import math, struct
    c = (128 ** -0.5) * math.log2(math.e)
    cbits = struct.unpack('<I', struct.pack('<f', c))[0]
    a(f's_mov_b32 s70, {hex(cbits)}')
    a('v_mul_f32 v1, s70, v1')
    for i in range(16):
        a(f'v_fma_f32 v{S+i}, v{S+i}, s70, -v1')
    for i in range(16):
        a(f'v_exp_f32 v{S+i}, v{S+i}')
    a('s_nop 0')
    a(f'v_add_f32 v3, v{S}, v{S+1}')
    for i in range(2, 16):
        a(f'v_add_f32 v3, v3, v{S+i}')
    a('v_mov_b32 v4, v3')
    a('s_nop 1')
    a('v_permlane32_swap_b32 v3, v4')
    a('s_nop 1')
    a('v_add_f32 v3, v3, v4')
    a('v_rcp_f32 v3, v3')
    a('s_nop 0')
    for i in range(16):
        a(f'v_mul_f32 v{S+i}, v{S+i}, v3')
    PF = 224
    for i in range(8):
        a(f'v_cvt_pk_bf16_f32 v{PF+i}, v{S+2*i}, v{S+2*i+1}')
    a('s_waitcnt lgkmcnt(0)')
    a('s_nop 1')
    for t in range(4):
        for s in range(2):
            a(f'{MF} {vr(ACC+16*t,16)}, {vr(VF+8*t+4*s,4)}, {vr(PF+4*s,4)}, ' + ('0' if s == 0 else vr(ACC+16*t,16)))
    a('s_lshl_b32 s10, s5, 4')
    a('s_add_u32 s10, s10, s9')
    a('s_lshl_b32 s10, s10, 5')
    a('s_add_u32 s10, s10, s6')
    a('s_lshl_b32 s10, s10, 13')
    a('s_add_u32 s11, s10, 4096')
    a('v_lshlrev_b32 v1, 4, v2')
    a('s_nop 15')
    for i in range(32):
        a(f'v_cvt_pk_bf16_f32 v{QF+i}, v{ACC+2*i}, v{ACC+2*i+1}')
    for s in range(8):
        a(f'buffer_store_dwordx4 {vr(QF+4*s,4)}, v1, s[60:63], s{10 if s < 4 else 11} offen offset:{1024*(s%4)}')
    a.label('K1_END')
    a('s_endpgm')
    return a.text()

def gen_k2():
    a = Asm()
    a.raw('.p2align 8')
    a.raw('.type k2_kernel,@function')
    a.label('k2_kernel')
    a('s_cmp_ge_u32 s2, 256')
    a('s_cbranch_scc1 K2_END')
    load_ptrs(a)
    a('s_and_b32 s3, s2, 7')
    a('s_lshr_b32 s4, s2, 3')
    a('s_lshr_b32 s5, s3, 2')
    a('s_bfe_u32 s6, s3, 0x10001')
    a('s_lshl_b32 s6, s6, 2')
    a('s_and_b32 s7, s4, 3')
    a('s_add_u32 s6, s6, s7')
    a('s_and_b32 s7, s3, 1')
    a('s_lshl_b32 s7, s7, 3')
    a('s_lshr_b32 s9, s4, 2')
    a('s_add_u32 s7, s7, s9')
    a('v_lshrrev_b32 v1, 6, v0')
    a('v_and_b32 v2, 63, v0')
    a('s_nop 0')
    a('v_readfirstlane_b32 s8, v1')
    a('s_nop 3')
    a('v_lshrrev_b32 v3, 3, v2')
    a('v_and_b32 v4, 7, v2')
    a('v_bfe_u32 v5, v2, 4, 1')
    a('v_lshlrev_b32 v5, 2, v5')
    a('v_xor_b32 v4, v4, v5')
    a('v_lshlrev_b32 v4, 4, v4')
    a('v_lshl_add_u32 v4, v3, 11, v4')
    a('s_lshl_b32 s10, s8, 21')
    a('s_lshl_b32 s11, s7, 7')
    a('s_add_u32 s10, s10, s11')
    a('v_add_u32 v16, s10, v4')
    for i in range(1, 4):
        a(f'v_add_u32 v{16+i}, {i*(16384-1024)}, v16')
    a('s_lshl_b32 s10, s5, 4')
    a('s_lshl_b32 s11, s6, 1')
    a('s_add_u32 s10, s10, s11')
    a('s_lshl_b32 s10, s10, 18')
    a('s_lshl_b32 s11, s8, 16')
    a('s_add_u32 s10, s10, s11')
    a('v_lshlrev_b32 v4, 4, v2')
    a('v_add_u32 v20, s10, v4')
    a('v_add_u32 v21, 0x40000, v20')
    a('v_lshrrev_b32 v11, 5, v2')
    a('v_bfe_u32 v12, v2, 2, 2')
    a('v_bfe_u32 v13, v2, 4, 1')
    a('v_bfe_u32 v14, v2, 0, 1')
    a('v_bfe_u32 v15, v2, 1, 1')
    a('v_lshlrev_b32 v14, 5, v14')
    a('v_lshl_add_u32 v14, v13, 4, v14')
    a('v_lshl_add_u32 v14, v15, 3, v14')
    a('v_lshl_add_u32 v15, v11, 3, v12')
    a('v_lshl_add_u32 v14, v15, 7, v14')
    a('s_lshl_b32 s66, s8, 15')
    a('v_add_u32 v14, s66, v14')
    a('v_lshrrev_b32 v15, 1, v12')
    a('v_lshl_add_u32 v22, v15, 6, v14')
    a('v_xor_b32 v23, 64, v22')
    a('s_waitcnt lgkmcnt(0)')
    a('s_cmp_eq_u32 s5, 1')
    srd_sel(a, 44, 24, 34, 8 << 20)
    srd(a, 48, 40, 41, 8 << 20)
    srd(a, 52, 36, 37, 2 << 20)
    OF = 96
    AF = [32, 48]
    ACC = 224
    def acc(T): return ar(16*T, 16)
    NG = 32
    def loads(g):
        slot = g % 8
        L = []
        L.append(f's_add_u32 m0, s66, {slot*4096}')
        L.append(f's_mov_b32 s64, {g*65536}')
        for i in range(4):
            L.append(f'buffer_load_dwordx4 v{16+i}, s[44:47], s64 offen offset:{1024*i} lds')
        L.append(f's_mov_b32 s65, {g*2048}')
        for ks in range(2):
            for mb in range(2):
                L.append(f'buffer_load_dwordx4 {vr(OF+16*slot+8*ks+4*mb,4)}, v{20+mb}, s[48:51], s65 offen offset:{1024*ks}')
        return L
    def areads(g):
        slot = g % 8
        L = []
        for ks in range(2):
            for t in range(2):
                for u in range(2):
                    L.append(f'ds_read_b64_tr_b16 {vr(AF[g%2]+8*ks+4*t+2*u,2)}, v{22+t} offset:{slot*4096+ks*2048+u*512}')
        return L
    def mfmas(g):
        slot = g % 8
        L = []
        for ks in range(2):
            for t in range(2):
                for mb in range(2):
                    T = 2*t + mb
                    L.append(f'{MF} {acc(T)}, {vr(AF[g%2]+8*ks+4*t,4)}, {vr(OF+16*slot+8*ks+4*mb,4)}, ' + ('0' if (g == 0 and ks == 0) else acc(T)))
        return L
    for g in range(7):
        for l in loads(g): a(l)
    a('s_waitcnt vmcnt(48)')
    for l in areads(0): a(l)
    for g in range(NG):
        fill = []
        a('s_waitcnt lgkmcnt(0)')
        if g + 1 < NG:
            last = min(g + 6, NG - 1)
            a(f's_waitcnt vmcnt({8*(last-(g+1))})')
            fill += areads(g + 1)
        if g + 7 < NG:
            fill += loads(g + 7)
        for l in interleave(mfmas(g), fill): a(l)
    a('s_nop 15')
    a('v_lshlrev_b32 v4, 4, v2')
    a('v_add_u32 v5, s66, v4')
    for T in range(4):
        for q in range(4):
            a(f'ds_write_b128 v5, {ar(16*T+4*q,4)} offset:{T*4096+q*1024}')
    a('s_lshl_b32 s10, s8, 12')
    a('v_add_u32 v6, s10, v4')
    a('v_add_u32 v7, 0x10000, v6')
    a('s_waitcnt lgkmcnt(0)')
    a('s_barrier')
    for src in range(4):
        for q in range(4):
            a(f'ds_read_b128 {vr(96+16*src+4*q,4)}, v{6 if src < 2 else 7} offset:{(src%2)*32768+q*1024}')
    a('s_and_b32 s10, s8, 1')
    a('s_lshl_b32 s11, s6, 1')
    a('s_add_u32 s10, s10, s11')
    a('s_lshl_b32 s10, s10, 17')
    a('s_lshl_b32 s11, s5, 11')
    a('s_add_u32 s10, s10, s11')
    a('s_lshl_b32 s11, s7, 7')
    a('s_add_u32 s10, s10, s11')
    a('s_lshr_b32 s11, s8, 1')
    a('s_lshl_b32 s11, s11, 6')
    a('s_add_u32 s10, s10, s11')
    a('v_and_b32 v8, 31, v2')
    a('v_lshlrev_b32 v8, 12, v8')
    a('v_lshl_add_u32 v8, v11, 5, v8')
    a('s_waitcnt lgkmcnt(0)')
    for i in range(16):
        a(f'v_add_f32 v{96+i}, v{96+i}, v{112+i}')
        a(f'v_add_f32 v{128+i}, v{128+i}, v{144+i}')
    for i in range(16):
        a(f'v_add_f32 v{96+i}, v{96+i}, v{128+i}')
    for i in range(8):
        a(f'v_cvt_pk_bf16_f32 v{160+i}, v{96+2*i}, v{96+2*i+1}')
    a('buffer_store_dwordx4 v[160:163], v8, s[52:55], s10 offen')
    a('buffer_store_dwordx4 v[164:167], v8, s[52:55], s10 offen offset:16')
    a.label('K2_END')
    a('s_endpgm')
    return a.text()

def main(out):
    hdr = open('header.txt').read().splitlines()[:14]
    t = '\n'.join(hdr) + '\n'
    t += '; @launch kernel=k1_kernel grid=(256,1,1) block=(256,1,1) lds=163840\n'
    t += '; @launch kernel=k2_kernel grid=(256,1,1) block=(256,1,1) lds=131072\n'
    t += '.amdgcn_target "amdgcn-amd-amdhsa--gfx950"\n.text\n'
    t += '.globl k1_kernel\n.globl k2_kernel\n'
    t += gen_k1() + gen_k2()
    t += kd('k1_kernel', 232, 80, 232)
    t += kd('k2_kernel', 288, 80, 224)
    open(out, 'w').write(t)

if __name__ == '__main__':
    main(sys.argv[1] if len(sys.argv) > 1 else f'cdna_kernels/{NAME}.s')
```

```python
import sys, math, struct
from asmlib import *

NAME = 'concat_heads__mha_block_cached__gqa_block_cached__near_ridge'
MF = 'v_mfma_f32_32x32x16_bf16'

class Cfg:
    stamps = False
    fx = 'nt'; fw = 'nt'; fk = 'nt'; fv = 'nt'; fo = 'nt'
    touch = ''
    poll_at = 19
    poll_lag = 1
    xst = 'sc1'; xld = 'sc1'
    spin = 1 << 16
    lprio = 3
    nodma = False; noread = False; nomfma = False
    stamp_loader = False

S_XCD, S_MT, S_BR, S_HG, S_J8, S_W, S_B, S_NT, S_HEAD = 3, 4, 5, 6, 7, 8, 9, 15, 12
SRD_X, SRD_K, SRD_V, SRD_WQ, SRD_WO, SRD_WS, SRD_OUT, SRD_DBG = 44, 48, 52, 56, 60, 64, 68, 72
S_SA, S_SW, S_IDX, S_LW = 24, 25, 26, 27
S_2HD = 28
S_TMP = 30
V_LANE = 2
V_RA = 4; V_RT = 8; V_L16 = 12; V_SP = 13; V_TAG = 14
ACC = 16; VWB = 80
ACCUM_OFF = 144
AF = [0, 20]; AP = 40; AO = 48
AK = AO
L_DX, L_DWQ, L_DV, L_DWO, L_DK = 16, 20, 24, 28, 32
L_TV, L_TWO, L_POLLA, L_POLL, L_JUNK = 36, 37, 38, 40, 42

WS_FLAG = 2 << 20
WS_X = 4 << 20
WS_BYTES = 16 << 20
AUX = 0x20000
OFFR = [0, 2, 1, 3]

def p1_sched(mt):
    L = [(0, mt, True)]
    for r in range(3):
        for q in range(4):
            L.append((r + 1, mt, True) if q == mt else (r, q, False))
    L += [(3, q, False) for q in range(4) if q != mt]
    return L
def p2_sched(mt):
    L = [(0, mt, True)]
    for q in range(4):
        L.append((1, mt, True) if q == mt else (0, q, False))
    L += [(1, q, False) for q in range(4) if q != mt]
    return L

def gen(c):
    a = Asm()
    def stamp(i):
        if c.stamps: a(f's_memrealtime s[{80+2*i}:{81+2*i}]')
    def cstamp(i):
        if not c.stamp_loader: stamp(i)
    def lstamp(i):
        if c.stamp_loader: stamp(i)
    a.raw('.p2align 8')
    a.raw(f'.type {NAME}_kernel,@function')
    a.label(f'{NAME}_kernel')
    a('s_cmp_ge_u32 s2, 256')
    a('s_cbranch_scc1 K_END')
    stamp(0)
    a('s_load_dwordx16 s[16:31], s[0:1], 0')
    a('s_load_dwordx8 s[32:39], s[0:1], 64')
    a('s_load_dwordx2 s[40:41], s[0:1], 96')
    a('s_memrealtime s[42:43]')
    a(f's_and_b32 s{S_XCD}, s2, 7')
    a(f's_lshr_b32 s{S_MT}, s2, 3')
    a(f's_lshr_b32 s{S_BR}, s{S_XCD}, 2')
    a(f's_and_b32 s{S_HG}, s{S_XCD}, 3')
    a(f's_and_b32 s{S_J8}, s{S_MT}, 7')
    a(f's_lshr_b32 s{S_MT}, s{S_MT}, 3')
    a('v_lshrrev_b32 v1, 6, v0')
    a(f'v_and_b32 v{V_LANE}, 63, v0')
    a(f's_sub_u32 s{S_NT}, s{S_J8}, s{S_MT}')
    a(f'v_readfirstlane_b32 s14, v1')
    a(f's_and_b32 s{S_NT}, s{S_NT}, 7')
    a(f's_lshl_b32 s{S_HEAD}, s{S_HG}, 3')
    a(f's_add_u32 s{S_HEAD}, s{S_HEAD}, s{S_J8}')
    a(f'v_lshlrev_b32 v{V_L16}, 4, v2')
    a(f's_and_b32 s{S_W}, s14, 3')
    a(f's_lshl_b32 s{S_B}, s{S_MT}, 2')
    a(f's_add_u32 s{S_B}, s{S_B}, s{S_W}')
    def srd_sel(d, pa, pb, nbytes):
        a(f's_cselect_b32 s{d}, s{pb}, s{pa}')
        a(f's_cselect_b32 s{d+1}, s{pb+1}, s{pa+1}')
        a(f's_mov_b32 s{d+2}, {hex(nbytes)}')
        a(f's_mov_b32 s{d+3}, 0x00020000')
    def srd(d, p, nbytes):
        a(f's_mov_b32 s{d}, s{p}')
        a(f's_mov_b32 s{d+1}, s{p+1}')
        a(f's_mov_b32 s{d+2}, {hex(nbytes)}')
        a(f's_mov_b32 s{d+3}, 0x00020000')
    a('s_cmp_lt_u32 s14, 4')
    a('s_cbranch_scc1 COMPUTE')

    if c.lprio: a(f's_setprio {c.lprio}')
    a('v_lshrrev_b32 v3, 3, v2')
    a('v_and_b32 v4, 7, v2')
    a('v_lshrrev_b32 v5, 4, v2')
    a(f's_lshl_b32 s10, s{S_B}, 16')
    for i in range(2):
        a(f'v_add_u32 v6, {4*i}, v5')
        a('v_xor_b32 v6, v6, v4')
        a(f'v_lshlrev_b32 v{8+i}, 4, v6')
    for i in range(4):
        a(f'v_add_u32 v7, {8*i}, v3')
        a(f'v_lshl_add_u32 v6, v7, 11, v{8+i%2}')
        a(f'v_add_u32 v6, s10, v6')
        a(f'v_subrev_u32 v{L_DX+i}, {1024*i}, v6')
    a('v_and_b32 v6, 15, v2')
    a('v_lshlrev_b32 v7, 2, v5')
    a('v_xor_b32 v6, v6, v7')
    a('v_lshlrev_b32 v10, 4, v6')
    a(f's_lshl_b32 s10, s{S_W}, 17')
    a(f's_lshl_b32 s13, s{S_HEAD}, 8')
    a('s_add_u32 s10, s10, s13')
    a('v_lshl_add_u32 v6, v5, 13, v10')
    a(f'v_add_u32 v{L_DWQ}, s10, v6')
    for i in range(1, 4):
        a(f'v_add_u32 v{L_DWQ+i}, {i*(4*8192-1024)}, v{L_DWQ}')
    a(f's_lshl_b32 s10, s{S_B}, 5')
    a(f's_add_u32 s10, s10, s{S_HEAD}')
    a('s_lshl_b32 s10, s10, 13')
    for i in range(4):
        a(f'v_xor_b32 v6, {i<<4}, v10')
        a('v_lshl_add_u32 v6, v5, 8, v6')
        a(f'v_add_u32 v{L_DK+i}, s10, v6')
    a('s_waitcnt lgkmcnt(0)')
    a(f's_cmp_eq_u32 s{S_BR}, 1')
    srd_sel(SRD_X, 16, 26, 1 << 20)
    srd_sel(SRD_WQ, 22, 32, 8 << 20)
    srd_sel(SRD_K, 18, 28, 4 << 20)
    srd_sel(SRD_V, 20, 30, 4 << 20)
    srd_sel(SRD_WO, 24, 34, 8 << 20)
    srd(SRD_WS, 40, WS_BYTES)
    srd(SRD_DBG, 38, 256)
    a(f's_lshl_b32 s{S_LW}, s{S_W}, 12')
    a(f's_lshl_b32 s{S_2HD}, s{S_J8}, 1')

    def late_setup():
        a(f's_lshl_b32 s11, s{S_B}, 5')
        a(f's_lshl_b32 s13, s{S_HG}, 3')
        a('s_add_u32 s11, s11, s13')
        a('s_lshl_b32 s11, s11, 13')
        for i in range(4):
            a(f'v_add_u32 v7, {8*i}, v3')
            a(f'v_lshl_add_u32 v6, v7, 8, v{8+i%2}')
            a(f'v_add_u32 v6, s11, v6')
            a(f'v_subrev_u32 v{L_DV+i}, {1024*i}, v6')
        a(f's_lshl_b32 s10, s{S_W}, 15')
        a(f's_lshl_b32 s13, s{S_NT}, 8')
        a('s_add_u32 s10, s10, s13')
        a(f's_lshl_b32 s13, s{S_HG}, 21')
        a('s_add_u32 s10, s10, s13')
        a('v_lshl_add_u32 v6, v5, 11, v10')
        a(f'v_add_u32 v{L_DWO}, s10, v6')
        for i in range(1, 4):
            a(f'v_add_u32 v{L_DWO+i}, {i*(4*2048-1024)}, v{L_DWO}')
        a('v_and_b32 v6, 31, v2')
        a('v_lshrrev_b32 v7, 1, v6')
        a('v_and_b32 v11, 1, v6')
        a('v_lshlrev_b32 v11, 7, v11')
        a('v_lshl_add_u32 v11, v7, 11, v11')
        a(f'v_add_u32 v{L_TWO}, s10, v11')
        a('v_lshlrev_b32 v7, 8, v6')
        a(f'v_add_u32 v{L_TV}, s11, v7')
        a(f'v_and_b32 v{L_POLLA}, 7, v2')
        a(f'v_lshlrev_b32 v{L_POLLA}, 3, v{L_POLLA}')
        a(f's_lshl_b32 s{S_TMP}, s{S_BR}, 4')
        a(f's_add_u32 s{S_TMP}, s{S_TMP}, s{S_B}')
        a(f's_lshl_b32 s{S_TMP}, s{S_TMP}, 2')
        a(f's_add_u32 s{S_TMP}, s{S_TMP}, s{S_HG}')
        a(f's_lshl_b32 s{S_TMP+2}, s{S_TMP}, 7')
        a(f's_add_u32 s{S_TMP+2}, s{S_TMP+2}, {WS_FLAG}')
        a(f's_lshl_b32 s{S_TMP+4}, s{S_TMP}, 14')
        a(f's_lshl_b32 s{S_TMP+5}, s{S_W}, 13')
        a(f's_add_u32 s{S_TMP+5}, s{S_TMP+5}, {AUX}')

    for mt in range(1, 4):
        a(f's_cmp_eq_u32 s{S_MT}, {mt}')
        a(f's_cbranch_scc1 LOADER{mt}')

    def loader(mt):
        s1, s2 = p1_sched(mt), p2_sched(mt)
        nops = [0]
        endpos = {}
        def op(l):
            a(l); nops[0] += 1
        def tile(kind, slot):
            if kind in ('x', 'v'):
                a(f's_add_u32 m0, s{S_LW}, {slot*16384}')
                v, s, so, f = (L_DX, SRD_X, S_SA, c.fx) if kind == 'x' else (L_DV, SRD_V, S_SA, c.fv)
            else:
                a(f's_add_u32 m0, s{S_LW}, {65536+slot*16384}')
                v, s, so, f = (L_DWQ, SRD_WQ, S_SW, c.fw) if kind == 'wq' else (L_DWO, SRD_WO, S_SW, c.fo)
            a('s_nop 0')
            for i in range(4):
                op(f'buffer_load_dwordx4 v{v+i}, s[{s}:{s+3}], s{so} offen offset:{1024*i} {f} lds')
        def touch(kind):
            if c.touch is None: return
            if kind == 'v': op(f'buffer_load_dword v{L_JUNK}, v{L_TV}, s[{SRD_V}:{SRD_V+3}], s{S_SA} offen {c.touch}')
            else: op(f'buffer_load_dword v{L_JUNK+1}, v{L_TWO}, s[{SRD_WO}:{SRD_WO+3}], s{S_SW} offen {c.touch}')
        def khalf(hf):
            a(f's_lshl_b32 s10, s{S_W}, 13')
            a(f's_add_u32 m0, s10, {AUX + hf*4096}')
            a(f's_mov_b32 s11, {hf*4096}')
            for i in range(4):
                op(f'buffer_load_dwordx4 v{L_DK+i}, s[{SRD_K}:{SRD_K+3}], s11 offen offset:{1024*i} {c.fk} lds')
        def issue(g):
            slot = g % 4
            if g < 16:
                r, i, own = s1[g]
                a(f's_add_u32 s{S_IDX}, s{S_2HD}, {4*i+OFFR[r]}')
                a(f's_and_b32 s{S_IDX}, s{S_IDX}, 15')
                a(f's_lshl_b32 s{S_SA}, s{S_IDX}, 7')
                a(f's_lshl_b32 s{S_SW}, s{S_IDX}, 19')
                tile('x', slot); tile('wq', slot)
                endpos[g] = nops[0]
                if own and r == 1: khalf(0)
                if own and r == 3: khalf(1)
                if g == 6:
                    op(f'buffer_load_dwordx2 v[{V_TAG}:{V_TAG+1}], off, s[{SRD_DBG}:{SRD_DBG+3}], 0 sc1')
            else:
                u, half = divmod(g - 16, 2)
                r, i, own = s2[u]
                a(f's_add_u32 s{S_IDX}, s{S_NT}, {4*r+i}')
                a(f's_and_b32 s{S_IDX}, s{S_IDX}, 7')
                a(f's_lshl_b32 s{S_SA}, s{S_IDX}, 13')
                a(f's_lshl_b32 s{S_SW}, s{S_IDX}, 18')
                if half:
                    a(f's_add_u32 s{S_SA}, s{S_SA}, 128')
                    a(f's_add_u32 s{S_SW}, s{S_SW}, {64*2048}')
                if half and own and r == 1:
                    tile('wo', slot); touch('wo'); tile('v', slot)
                    endpos[g] = nops[0]
                else:
                    tile('v', slot); tile('wo', slot)
                    endpos[g] = nops[0]
                    if own:
                        if r == 0: touch('v')
                        touch('wo')
        def pload(u):
            r, i, own = s2[u]
            a(f's_add_u32 s10, s{S_NT}, {4*r+i}')
            a(f's_and_b32 s10, s10, 7')
            a(f's_lshl_b32 s10, s10, 11')
            a(f's_add_u32 s10, s10, s{S_TMP+4}')
            a(f's_add_u32 m0, s{S_TMP+5}, {((u-1)%4)*2048}')
            a('s_nop 0')
            for G in range(2):
                op(f'buffer_load_dwordx4 v{V_L16}, s[{SRD_WS}:{SRD_WS+3}], s10 offen offset:{1024*G} sc1 lds')
        must = {}
        issue(0); issue(1)
        late_setup()
        for k in range(32):
            a(f's_waitcnt vmcnt({min(63, nops[0]-endpos[k])})')
            if k == 17:
                pass
            if k == c.poll_at:
                op(f'buffer_load_dwordx2 v[{L_POLL}:{L_POLL+1}], v{L_POLLA}, s[{SRD_WS}:{SRD_WS+3}], s{S_TMP+2} offen sc1')
                pollpos = nops[0]
            if k == c.poll_at + c.poll_lag:
                if endpos[k] < pollpos:
                    a(f's_waitcnt vmcnt({nops[0]-pollpos})')
                a(f's_mov_b32 s{S_TMP+3}, {c.spin}')
                a.label(f'PCHK{mt}')
                a(f'v_cmp_ne_u64 vcc, v[{L_POLL}:{L_POLL+1}], v[{V_TAG}:{V_TAG+1}]')
                a(f'v_cmp_eq_u64 s[10:11], 0, v[{V_TAG}:{V_TAG+1}]')
                a('s_or_b64 vcc, vcc, s[10:11]')
                a(f's_cbranch_scc0 POK{mt}')
                a(f's_sub_u32 s{S_TMP+3}, s{S_TMP+3}, 1')
                a(f's_cbranch_scc1 POK{mt}')
                a('s_sleep 1')
                a(f'buffer_load_dwordx2 v[{V_TAG}:{V_TAG+1}], off, s[{SRD_DBG}:{SRD_DBG+3}], 0 sc1')
                a(f'buffer_load_dwordx2 v[{L_POLL}:{L_POLL+1}], v{L_POLLA}, s[{SRD_WS}:{SRD_WS+3}], s{S_TMP+2} offen sc1')
                a('s_waitcnt vmcnt(0)')
                a(f's_branch PCHK{mt}')
                a.label(f'POK{mt}')
                for u in range(1, 5): pload(u)
                must[22] = max(must.get(22, 0), nops[0])
                assert k < 22
            if k == 24:
                pload(5); must[30] = nops[0]
            if k == 26:
                pload(6); must[31] = nops[0]
            if k == 28:
                pload(7); must[31] = nops[0]
            if k + 2 < 32:
                issue(k + 2)
            if must.get(k, 0) > endpos[k]:
                a(f's_waitcnt vmcnt({nops[0]-must[k]})')
            if k in (0, 8, 15, 16, 17, 18, 20, 24, 31): lstamp(1 + (0, 8, 15, 16, 17, 18, 20, 24, 31).index(k))
            a('s_barrier')
        a('s_branch L_END')
    for mt in range(4):
        if mt: a.label(f'LOADER{mt}')
        loader(mt)

    a.label('COMPUTE')
    T = ACC
    a('v_and_b32 v3, 31, v2')
    a('v_lshrrev_b32 v1, 5, v2')
    a(f's_lshl_b32 s13, s{S_W}, 12')
    a(f'v_bfe_u32 v{T}, v3, 1, 3')
    a(f'v_xor_b32 v{T}, v{T}, v1')
    for s in range(4):
        a(f'v_xor_b32 v{T+1}, {2*s}, v{T}')
        a(f'v_lshlrev_b32 v{T+1}, 4, v{T+1}')
        a(f'v_lshl_add_u32 v{T+1}, v3, 7, v{T+1}')
        a(f'v_add_u32 v{V_RA+s}, s13, v{T+1}')
    a(f'v_and_b32 v{T}, 3, v3')
    a(f'v_lshlrev_b32 v{T}, 2, v{T}')
    a(f'v_bfe_u32 v{T+1}, v3, 2, 2')
    a(f'v_or_b32 v{T}, v{T}, v{T+1}')
    a(f'v_xor_b32 v{T}, v{T}, v1')
    a(f'v_lshlrev_b32 v{T}, 4, v{T}')
    a(f'v_lshl_add_u32 v{T}, v3, 8, v{T}')
    a(f's_lshl_b32 s10, s{S_W}, 13')
    a(f's_add_u32 s10, s10, {AUX}')
    a(f'v_add_u32 v{V_SP}, s10, v{T}')
    def rt_setup(phase, T):
        L = []
        L.append(f'v_bfe_u32 v{T}, v2, 2, 2')
        L.append(f'v_bfe_u32 v{T+1}, v2, 4, 1')
        L.append(f'v_bfe_u32 v{T+2}, v2, 0, 1')
        L.append(f'v_bfe_u32 v{T+3}, v2, 1, 1')
        L.append(f'v_lshl_add_u32 v{T+4}, v1, 3, v{T}')
        L.append(f'v_lshlrev_b32 v{T+4}, 8, v{T+4}')
        L.append(f'v_add_u32 v{T+4}, 0x10000, v{T+4}')
        hi, lo = (T+1, T+2) if phase == 1 else (T+2, T+1)
        L.append(f'v_lshl_add_u32 v{T+4}, v{hi}, 5, v{T+4}')
        L.append(f'v_lshl_add_u32 v{T+4}, v{lo}, 4, v{T+4}')
        L.append(f'v_lshl_add_u32 v{T+4}, v{T+3}, 3, v{T+4}')
        for t in range(4):
            if phase == 1:
                L.append(f'v_xor_b32 v{T+5}, {t}, v{T}')
            else:
                L.append(f's_add_u32 s10, s{S_HG}, {t}')
                L.append('s_and_b32 s10, s10, 3')
                L.append(f'v_xor_b32 v{T+5}, s10, v{T}')
            L.append(f'v_lshl_add_u32 v{V_RT+t}, v{T+5}, 6, v{T+4}')
        return L
    for l in rt_setup(1, T): a(l)
    a('s_waitcnt lgkmcnt(0)')
    srd(SRD_WS, 40, WS_BYTES)
    srd(SRD_OUT, 36, 2 << 20)
    srd(SRD_DBG, 38, 256)
    a(f's_lshl_b32 s{S_LW}, s{S_W}, 12')
    a(f's_or_b32 s13, s2, s{S_W}')
    a('s_cmp_lg_u32 s13, 0')
    a('s_cbranch_scc1 NOTAG')
    a(f'v_mov_b32 v{T}, s42')
    a(f'v_mov_b32 v{T+1}, s43')
    a(f'buffer_store_dwordx2 v[{T}:{T+1}], off, s[{SRD_DBG}:{SRD_DBG+3}], 0 sc0 sc1')
    a.label('NOTAG')
    cstamp(1)

    def reads(j, s, f):
        slot = j % 4
        L = [f'ds_read_b128 {ar(AF[f]+16,4)}, v{V_RA+s} offset:{slot*16384}']
        for t in range(4):
            for u in range(2):
                L.append(f'ds_read_b64_tr_b16 {ar(AF[f]+4*t+2*u,2)}, v{V_RT+t} offset:{slot*16384+s*4096+u*1024}')
        return L
    def mfma(j, s, f, t):
        first = (j == 0 and s == 0) or (j >= 16 and j % 2 == 0 and s == 0)
        cc = '0' if first else vr(ACC+16*t, 16)
        wt, act = ar(AF[f]+4*t, 4), ar(AF[f]+16, 4)
        if j < 16: return f'{MF} {vr(ACC+16*t,16)}, {wt}, {act}, {cc}'
        return f'{MF} {vr(ACC+16*t,16)}, {act}, {wt}, {cc}'
    def cvts(u, t):
        d = VWB + 32 * (u % 2) + 8 * t
        return [f'v_cvt_pk_bf16_f32 v{d+i}, v{ACC+16*t+2*i}, v{ACC+16*t+2*i+1}' for i in range(8)]
    PF = VWB + 48
    def pstage(u, pbase=None):
        L = []
        for G in range(2):
            for t in (1, 2, 3, 0):
                o = ar(AO+16*t, 16)
                cc = '0' if (u == 0 and G == 0) else o
                p = vr(PF+4*G, 4) if u == 0 else (ar(AP+4*G, 4) if pbase is None else ar(pbase+4*G, 4))
                L.append(f'{MF} {o}, {vr(VWB+32*(u%2)+8*t+4*G,4)}, {p}, {cc}')
        return L
    def preads(u, dst=AP):
        return [f'ds_read_b128 {ar(dst+4*G,4)}, v{V_SP} offset:{((u-1)%4)*2048+1024*G}' for G in range(2)]

    a('s_barrier')
    cstamp(2)
    for l in reads(0, 0, 0): a(l)
    f = 0
    NG = 32
    carry = []
    prev_extra = 0
    for j in range(NG):
        if j == 16:
            softmax(a, c, cstamp, rt_setup, PF)
            a('s_barrier')
            cstamp(5)
            for l in reads(16, 0, f): a(l)
            prev_extra = 0
        for s in range(4):
            nxt = []; extra = []
            if s == 3 and j + 1 < NG and j != 15: a('s_waitcnt lgkmcnt(0)')
            else: a(f's_waitcnt lgkmcnt({4+prev_extra})')
            head_end = j >= 16 and j % 2 == 1 and s == 3
            u = (j - 16) // 2
            if s < 3:
                nxt = reads(j, s+1, f ^ 1)
                if j == 13 + 0 and False: pass
            elif j + 1 < NG and j != 15:
                if j == 16:
                    a('s_waitcnt vmcnt(0)')
                    a(f'buffer_store_dwordx2 v[{V_TAG}:{V_TAG+1}], off, s[{SRD_WS}:{SRD_WS+3}], s{S_TMP+1} sc0 sc1')
                a('s_barrier')
                if j + 1 == 8: cstamp(3)
                if j + 1 == 24: cstamp(6)
                nxt = reads(j+1, 0, f ^ 1)
            if j == 6 and s == 0:
                a(f'buffer_load_dwordx2 v[{V_TAG}:{V_TAG+1}], off, s[{SRD_DBG}:{SRD_DBG+3}], 0 sc1')
            pre = []
            if head_end and u >= 2:
                pre = preads(u - 1)
            if j == 14:
                extra = [f'KREAD{2*s}', f'KREAD{2*s+1}']
            if j == NG - 1 and s == 3:
                extra = [('P7', x) for x in preads(7, AF[f ^ 1])]
            allr = pre + nxt + extra
            gaps = [[], [], [], []]
            per = 3 if len(allr) <= 9 else 4
            if s == 2: per = 5 if len(allr) <= 10 else 6
            for i, r in enumerate(allr):
                gaps[min(3, i // per)].append(r)
            for t in range(4):
                if t == 2:
                    a(f's_waitcnt lgkmcnt({len(gaps[0])+len(gaps[1])})')
                a(mfma(j, s, f, t))
                if carry:
                    for l in carry.pop(0): a(l)
                if head_end and t >= 2:
                    for l in cvts(u, t - 2): a(l)
                for r in gaps[t]:
                    if isinstance(r, tuple): a(r[1])
                    elif r.startswith('KREAD'):
                        i = int(r[5:])
                        a(f'v_xor_b32 v3, {(2*i)<<4}, v{V_SP}')
                        a(f'ds_read_b128 {ar(AK+4*i,4)}, v3')
                    else: a(r)
            prev_extra = len(extra)
            if j == 18 and s == 1:
                for m in pstage(0): a(m)
            if head_end:
                rest = cvts(u, 2) + cvts(u, 3)
                if u >= 2:
                    a(f's_waitcnt lgkmcnt({len(nxt)+len(extra)})')
                    for i, m in enumerate(pstage(u - 1)):
                        a(m)
                        if i >= 1:
                            for l in rest[:4]: a(l)
                            rest = rest[4:]
                    assert not rest
                else:
                    carry = [rest[:8], rest[8:]]
            f ^= 1
    cstamp(7)
    a('s_waitcnt lgkmcnt(0)')
    for m in pstage(7, AF[f]): a(m)
    tail(a, c, cstamp)
    a.label('L_END')
    if c.stamps:
        n = 11
        a('s_waitcnt vmcnt(0) lgkmcnt(0)')
        a(f's_memrealtime s[{80+2*(n-1)}:{81+2*(n-1)}]')
        a('s_waitcnt lgkmcnt(0)')
        a(f's_cmp_lg_u32 s14, {4 if c.stamp_loader else 0}')
        a('s_cbranch_scc1 K_END')
        a('s_mov_b32 s76, s40')
        a('s_mov_b32 s77, s41')
        a('s_mov_b32 s78, 0x10000000')
        a('s_mov_b32 s79, 0x00020000')
        a('s_lshl_b32 s75, s2, 7')
        a(f's_add_u32 s75, s75, {128<<20}')
        a('v_mov_b32 v3, 0')
        for i in range(n):
            a(f'v_mov_b32 v4, s{80+2*i}')
            a(f'v_mov_b32 v5, s{81+2*i}')
            a(f'buffer_store_dwordx2 v[4:5], v3, s[76:79], s75 offen offset:{8*i}')
            a('s_nop 1')
    a.label('K_END')
    a('s_endpgm')
    return a.text()

def softmax(a, c, stamp, rt_setup, PF):
    QF = VWB; S = VWB + 32
    stamp(4)
    a('s_waitcnt vmcnt(0)')
    a(f's_mov_b32 s{S_TMP+3}, {c.spin}')
    a.label('TCHK')
    a(f'v_cmp_eq_u64 vcc, 0, v[{V_TAG}:{V_TAG+1}]')
    a('s_cbranch_vccz TOK')
    a(f's_sub_u32 s{S_TMP+3}, s{S_TMP+3}, 1')
    a('s_cbranch_scc1 TOK')
    a('s_sleep 1')
    a(f'buffer_load_dwordx2 v[{V_TAG}:{V_TAG+1}], off, s[{SRD_DBG}:{SRD_DBG+3}], 0 sc1')
    a('s_waitcnt vmcnt(0)')
    a('s_branch TCHK')
    a.label('TOK')
    a('s_nop 5')
    cv = [f'v_cvt_pk_bf16_f32 v{QF+i}, v{ACC+2*i}, v{ACC+2*i+1}' for i in range(32)]
    for l in cv[:8]: a(l)
    cv = cv[8:]
    fill = []
    for s in range(8):
        a(f'{MF} {vr(S,16)}, {ar(AK+4*s,4)}, {vr(QF+4*s,4)}, ' + ('0' if s == 0 else vr(S,16)))
        for l in cv[:4]: a(l)
        cv = cv[4:]
    cc = (128 ** -0.5) * math.log2(math.e)
    cbits = struct.unpack('<I', struct.pack('<f', cc))[0]
    a(f's_mov_b32 s{S_TMP+4}, {hex(cbits)}')
    a(f's_lshl_b32 s{S_TMP}, s{S_BR}, 4')
    a(f's_add_u32 s{S_TMP}, s{S_TMP}, s{S_B}')
    a(f's_lshl_b32 s{S_TMP+1}, s{S_TMP}, 2')
    a(f's_add_u32 s{S_TMP+1}, s{S_TMP+1}, s{S_HG}')
    a(f's_lshl_b32 s{S_TMP+1}, s{S_TMP+1}, 4')
    a(f's_add_u32 s{S_TMP+1}, s{S_TMP+1}, s{S_J8}')
    a(f's_lshl_b32 s{S_TMP+1}, s{S_TMP+1}, 3')
    a(f's_add_u32 s{S_TMP+1}, s{S_TMP+1}, {WS_FLAG}')
    a(f's_lshl_b32 s{S_TMP}, s{S_TMP}, 5')
    a(f's_add_u32 s{S_TMP}, s{S_TMP}, s{S_HEAD}')
    a(f's_lshl_b32 s{S_TMP}, s{S_TMP}, 11')
    a(f's_lshl_b32 s10, s{S_W}, 13')
    a(f's_add_u32 s10, s10, {AUX}')
    a(f'v_add_u32 v{V_SP}, s10, v{V_L16}')
    t1, t2 = ACC, ACC + 1
    a(f'v_max3_f32 v{t1}, v{S}, v{S+1}, v{S+2}')
    a(f'v_max3_f32 v{t2}, v{S+3}, v{S+4}, v{S+5}')
    a(f'v_max3_f32 v{t1}, v{t1}, v{S+6}, v{S+7}')
    a(f'v_max3_f32 v{t2}, v{t2}, v{S+8}, v{S+9}')
    a(f'v_max3_f32 v{t1}, v{t1}, v{S+10}, v{S+11}')
    a(f'v_max3_f32 v{t2}, v{t2}, v{S+12}, v{S+13}')
    a(f'v_max3_f32 v{t1}, v{t1}, v{S+14}, v{S+15}')
    a(f'v_max_f32 v{t1}, v{t1}, v{t2}')
    a(f'v_mov_b32 v{t2}, v{t1}')
    a('s_nop 1')
    a(f'v_permlane32_swap_b32 v{t1}, v{t2}')
    a('s_nop 1')
    a(f'v_max_f32 v{t1}, v{t1}, v{t2}')
    a(f'v_mul_f32 v{t1}, s{S_TMP+4}, v{t1}')
    for i in range(16):
        a(f'v_fma_f32 v{S+i}, v{S+i}, s{S_TMP+4}, -v{t1}')
    for i in range(16):
        a(f'v_exp_f32 v{S+i}, v{S+i}')
    a(f'v_add_f32 v{t1}, v{S}, v{S+1}')
    a(f'v_add_f32 v{t2}, v{S+2}, v{S+3}')
    for i in range(4, 16, 2):
        a(f'v_add_f32 v{t1}, v{t1}, v{S+i}')
        a(f'v_add_f32 v{t2}, v{t2}, v{S+i+1}')
    a(f'v_add_f32 v{t1}, v{t1}, v{t2}')
    a(f'v_mov_b32 v{t2}, v{t1}')
    a('s_nop 1')
    a(f'v_permlane32_swap_b32 v{t1}, v{t2}')
    a('s_nop 1')
    a(f'v_add_f32 v{t1}, v{t1}, v{t2}')
    a(f'v_rcp_f32 v{t1}, v{t1}')
    a('s_nop 0')
    for i in range(16):
        a(f'v_mul_f32 v{S+i}, v{S+i}, v{t1}')
    for i in range(8):
        a(f'v_cvt_pk_bf16_f32 v{PF+i}, v{S+2*i}, v{S+2*i+1}')
    for G in range(2):
        a(f'buffer_store_dwordx4 {vr(PF+4*G,4)}, v{V_L16}, s[{SRD_WS}:{SRD_WS+3}], s{S_TMP} offen offset:{1024*G} sc0 sc1')
    for l in rt_setup(2, ACC + 2): a(l)

def tail(a, c, stamp):
    O = ACC
    R = VWB
    TG = V_RA
    XT = V_RT
    a(f'v_and_b32 v{TG}, 0xfff, v{V_TAG}')
    a(f'v_bfe_u32 v{TG+1}, v{V_TAG}, 12, 12')
    a(f'v_lshrrev_b32 v{TG+2}, 24, v{V_TAG}')
    a(f'v_and_b32 v{TG+3}, 0xf, v{V_TAG+1}')
    a(f'v_lshl_or_b32 v{TG+2}, v{TG+3}, 8, v{TG+2}')
    a(f'v_bfe_u32 v{TG+3}, v{V_TAG+1}, 4, 12')
    a(f's_mov_b32 s{S_TMP+4}, 0xfffff000')
    a(f's_lshl_b32 s{S_TMP}, s{S_BR}, 2')
    a(f's_add_u32 s{S_TMP}, s{S_TMP}, s{S_MT}')
    a(f's_lshl_b32 s{S_TMP}, s{S_TMP}, 3')
    a(f's_add_u32 s{S_TMP}, s{S_TMP}, s{S_NT}')
    a(f's_mul_i32 s{S_TMP}, s{S_TMP}, {4*3*4*4096}')
    a(f's_add_u32 s{S_TMP}, s{S_TMP}, s{S_LW}')
    a(f's_add_u32 s{S_TMP}, s{S_TMP}, {WS_X}')
    for t in (1, 2, 3):
        a(f's_add_u32 s{S_TMP+1}, s{S_HG}, {t}')
        a(f's_and_b32 s{S_TMP+1}, s{S_TMP+1}, 3')
        a(f's_mul_i32 s{S_TMP+1}, s{S_TMP+1}, {3*16384}')
        a(f's_add_u32 s{S_TMP+1}, s{S_TMP+1}, s{S_TMP}')
        a(f's_add_u32 s{S_TMP+1}, s{S_TMP+1}, {(t-1)*16384}')
        for q in range(4):
            for i in range(4):
                r = 16*t + 4*q + i
                a(f'v_accvgpr_read_b32 v{O+r}, a{AO+r}')
            for i in range(4):
                r = 16*t + 4*q + i
                a(f'v_bfi_b32 v{O+r}, s{S_TMP+4}, v{O+r}, v{TG+i}')
            a(f'buffer_store_dwordx4 {vr(O+16*t+4*q,4)}, v{V_L16}, s[{SRD_WS}:{SRD_WS+3}], s{S_TMP+1} offen offset:{1024*q} {c.xst}')
    stamp(8)
    for r in range(16):
        a(f'v_accvgpr_read_b32 v{O+r}, a{AO+r}')
    a(f's_mul_i32 s{S_TMP+1}, s{S_HG}, {3*16384}')
    a(f's_add_u32 s{S_TMP+1}, s{S_TMP+1}, s{S_TMP}')
    a(f's_add_u32 s{S_TMP+2}, s{S_TMP+1}, 16384')
    a(f's_add_u32 s{S_TMP+5}, s{S_TMP+1}, 32768')
    a(f's_lshl_b32 s10, s{S_B}, 17')
    a(f's_lshl_b32 s11, s{S_BR}, 11')
    a('s_add_u32 s10, s10, s11')
    a(f's_lshl_b32 s11, s{S_NT}, 8')
    a('s_add_u32 s10, s10, s11')
    a(f's_lshl_b32 s11, s{S_HG}, 6')
    a('s_add_u32 s10, s10, s11')
    a(f'v_and_b32 v3, 31, v{V_LANE}')
    a('v_lshlrev_b32 v3, 12, v3')
    a('v_lshl_add_u32 v3, v1, 5, v3')
    a(f's_mov_b32 s{S_TMP+3}, {c.spin}')
    a.label('XLOOP')
    for k, sreg in enumerate((S_TMP+1, S_TMP+2, S_TMP+5)):
        for q in range(4):
            a(f'buffer_load_dwordx4 {vr(R+16*k+4*q,4)}, v{V_L16}, s[{SRD_WS}:{SRD_WS+3}], s{sreg} offen offset:{1024*q} {c.xld}')
    for n in range(12):
        a(f's_waitcnt vmcnt({11-n})')
        for i in range(4):
            a(f'v_xor_b32 v{XT+i}, v{R+4*n+i}, v{TG+i}')
        if n == 0:
            a(f'v_or3_b32 v0, v{XT}, v{XT+1}, v{XT+2}')
            a(f'v_or_b32 v0, v0, v{XT+3}')
        else:
            a(f'v_or3_b32 v0, v0, v{XT}, v{XT+1}')
            a(f'v_or3_b32 v0, v0, v{XT+2}, v{XT+3}')
    a('v_and_b32 v0, 0xfff, v0')
    a('v_cmp_ne_u32 vcc, 0, v0')
    a('s_cbranch_vccz XOK')
    a(f's_sub_u32 s{S_TMP+3}, s{S_TMP+3}, 1')
    a('s_cbranch_scc0 XLOOP')
    a.label('XOK')
    stamp(9)
    for r in range(16):
        a(f'v_add_f32 v{O+r}, v{O+r}, v{R+r}')
        a(f'v_add_f32 v{R+16+r}, v{R+16+r}, v{R+32+r}')
    for r in range(16):
        a(f'v_add_f32 v{O+r}, v{O+r}, v{R+16+r}')
    for i in range(8):
        a(f'v_cvt_pk_bf16_f32 v{R+i}, v{O+2*i}, v{O+2*i+1}')
    a(f'buffer_store_dwordx4 {vr(R,4)}, v3, s[{SRD_OUT}:{SRD_OUT+3}], s10 offen')
    a(f'buffer_store_dwordx4 {vr(R+4,4)}, v3, s[{SRD_OUT}:{SRD_OUT+3}], s10 offen offset:16')

def build(c, out):
    hdr = open('header.txt').read().splitlines()
    t = '\n'.join(hdr) + '\n'
    t += '; @launch grid=(256,1,1) block=(512,1,1) lds=163840\n'
    t += '.amdgcn_target "amdgcn-amd-amdhsa--gfx950"\n.text\n'
    t += f'.globl {NAME}_kernel\n'
    out_l = []
    for l in gen(c).split('\n'):
        if c.nodma and ' lds' in l and 'sc1' not in l: continue
        if c.noread and 'ds_read' in l: continue
        if c.nomfma and 'v_mfma' in l: continue
        out_l.append(l)
    t += '\n'.join(out_l)
    t += kd(f'{NAME}_kernel', 256, 102, ACCUM_OFF)
    open(out, 'w').write(t)

if __name__ == '__main__':
    c = Cfg()
    out = sys.argv[1]
    for kv in sys.argv[2:]:
        k, v = kv.split('=', 1)
        old = getattr(c, k)
        if v == 'None': v = None
        elif isinstance(old, bool): v = v in ('1', 'True')
        elif isinstance(old, int): v = int(v)
        setattr(c, k, v)
    build(c, out)
```

```python
import sys, math, struct
from asmlib import *

NAME = 'concat_heads__mha_block_cached__gqa_block_cached__near_ridge'
MF = 'v_mfma_f32_32x32x16_bf16'

class Cfg:
    stamps = False
    fx = 'nt'; fw = 'nt'; fk = 'nt'; fv = 'nt'; fo = 'nt'
    touch = ''
    poll_at = 19
    poll_lag = 1
    xst = 'sc1'; xld = 'sc1'
    spin = 1 << 16
    lprio = 3
    nodma = False; noread = False; nomfma = False
    stamp_loader = False
    dbgstamps = False

S_XCD, S_MT, S_BR, S_HG, S_J8, S_W, S_B, S_NT, S_HEAD = 3, 4, 5, 6, 7, 8, 9, 15, 12
SRD_X, SRD_K, SRD_V, SRD_WQ, SRD_WO, SRD_WS, SRD_OUT, SRD_DBG = 44, 48, 52, 56, 60, 64, 68, 72
S_SA, S_SW, S_IDX, S_LW = 24, 25, 26, 27
S_2HD = 28
S_TMP = 30
V_LANE = 2
V_RA = 4; V_RT = 8; V_L16 = 12; V_SP = 13; V_TAG = 14
ACC = 16; VWB = 80
ACCUM_OFF = 144
AF = [0, 20]; AP = 40; AO = 48
AK = AO
L_DX, L_DWQ, L_DV, L_DWO, L_DK = 16, 20, 24, 28, 32
L_TV, L_TWO, L_POLLA, L_POLL, L_JUNK = 36, 37, 38, 40, 42

WS_FLAG = 2 << 20
WS_X = 4 << 20
WS_BYTES = 16 << 20
AUX = 0x20000
OFFR = [0, 2, 1, 3]

def p1_sched(mt):
    L = [(0, mt, True)]
    for r in range(3):
        for q in range(4):
            L.append((r + 1, mt, True) if q == mt else (r, q, False))
    L += [(3, q, False) for q in range(4) if q != mt]
    return L
def p2_sched(mt):
    L = [(0, mt, True)]
    for q in range(4):
        L.append((1, mt, True) if q == mt else (0, q, False))
    L += [(1, q, False) for q in range(4) if q != mt]
    return L

def gen(c):
    a = Asm()
    def stamp(i):
        if c.stamps: a(f's_memrealtime s[{80+2*i}:{81+2*i}]')
    def cstamp(i):
        if not c.stamp_loader: stamp(i)
    def lstamp(i):
        if c.stamp_loader: stamp(i)
    a.raw('.p2align 8')
    a.raw(f'.type {NAME}_kernel,@function')
    a.label(f'{NAME}_kernel')
    a('s_cmp_ge_u32 s2, 256')
    a('s_cbranch_scc1 K_END')
    stamp(0)
    a('s_load_dwordx16 s[16:31], s[0:1], 0')
    a('s_load_dwordx8 s[32:39], s[0:1], 64')
    a('s_load_dwordx2 s[40:41], s[0:1], 96')
    a('s_memrealtime s[42:43]')
    a(f's_and_b32 s{S_XCD}, s2, 7')
    a(f's_lshr_b32 s{S_MT}, s2, 3')
    a(f's_lshr_b32 s{S_BR}, s{S_XCD}, 2')
    a(f's_and_b32 s{S_HG}, s{S_XCD}, 3')
    a(f's_and_b32 s{S_J8}, s{S_MT}, 7')
    a(f's_lshr_b32 s{S_MT}, s{S_MT}, 3')
    a('v_lshrrev_b32 v1, 6, v0')
    a(f'v_and_b32 v{V_LANE}, 63, v0')
    a(f's_sub_u32 s{S_NT}, s{S_J8}, s{S_MT}')
    a(f'v_readfirstlane_b32 s14, v1')
    a(f's_and_b32 s{S_NT}, s{S_NT}, 7')
    a(f's_lshl_b32 s{S_HEAD}, s{S_HG}, 3')
    a(f's_add_u32 s{S_HEAD}, s{S_HEAD}, s{S_J8}')
    a(f'v_lshlrev_b32 v{V_L16}, 4, v2')
    a(f's_and_b32 s{S_W}, s14, 3')
    a(f's_lshl_b32 s{S_B}, s{S_MT}, 2')
    a(f's_add_u32 s{S_B}, s{S_B}, s{S_W}')
    def srd_sel(d, pa, pb, nbytes):
        a(f's_cselect_b32 s{d}, s{pb}, s{pa}')
        a(f's_cselect_b32 s{d+1}, s{pb+1}, s{pa+1}')
        a(f's_mov_b32 s{d+2}, {hex(nbytes)}')
        a(f's_mov_b32 s{d+3}, 0x00020000')
    def srd(d, p, nbytes):
        a(f's_mov_b32 s{d}, s{p}')
        a(f's_mov_b32 s{d+1}, s{p+1}')
        a(f's_mov_b32 s{d+2}, {hex(nbytes)}')
        a(f's_mov_b32 s{d+3}, 0x00020000')
    a('s_cmp_lt_u32 s14, 4')
    a('s_cbranch_scc1 COMPUTE')

    if c.lprio: a(f's_setprio {c.lprio}')
    a('v_lshrrev_b32 v3, 3, v2')
    a('v_and_b32 v4, 7, v2')
    a('v_lshrrev_b32 v5, 4, v2')
    a(f's_lshl_b32 s10, s{S_B}, 16')
    for i in range(2):
        a(f'v_add_u32 v6, {4*i}, v5')
        a('v_xor_b32 v6, v6, v4')
        a(f'v_lshlrev_b32 v{8+i}, 4, v6')
    for i in range(4):
        a(f'v_add_u32 v7, {8*i}, v3')
        a(f'v_lshl_add_u32 v6, v7, 11, v{8+i%2}')
        a(f'v_add_u32 v6, s10, v6')
        a(f'v_subrev_u32 v{L_DX+i}, {1024*i}, v6')
    a('v_and_b32 v6, 15, v2')
    a('v_lshlrev_b32 v7, 2, v5')
    a('v_xor_b32 v6, v6, v7')
    a('v_lshlrev_b32 v10, 4, v6')
    a(f's_lshl_b32 s10, s{S_W}, 17')
    a(f's_lshl_b32 s13, s{S_HEAD}, 8')
    a('s_add_u32 s10, s10, s13')
    a('v_lshl_add_u32 v6, v5, 13, v10')
    a(f'v_add_u32 v{L_DWQ}, s10, v6')
    for i in range(1, 4):
        a(f'v_add_u32 v{L_DWQ+i}, {i*(4*8192-1024)}, v{L_DWQ}')
    a(f's_lshl_b32 s10, s{S_B}, 5')
    a(f's_add_u32 s10, s10, s{S_HEAD}')
    a('s_lshl_b32 s10, s10, 13')
    for i in range(4):
        a(f'v_xor_b32 v6, {i<<4}, v10')
        a('v_lshl_add_u32 v6, v5, 8, v6')
        a(f'v_add_u32 v{L_DK+i}, s10, v6')
    a('s_waitcnt lgkmcnt(0)')
    a(f's_cmp_eq_u32 s{S_BR}, 1')
    srd_sel(SRD_X, 16, 26, 1 << 20)
    srd_sel(SRD_WQ, 22, 32, 8 << 20)
    srd_sel(SRD_K, 18, 28, 4 << 20)
    srd_sel(SRD_V, 20, 30, 4 << 20)
    srd_sel(SRD_WO, 24, 34, 8 << 20)
    srd(SRD_WS, 40, WS_BYTES)
    srd(SRD_DBG, 38, 256)
    a(f's_lshl_b32 s{S_LW}, s{S_W}, 12')
    a(f's_lshl_b32 s{S_2HD}, s{S_J8}, 1')

    def late_setup():
        a(f's_lshl_b32 s11, s{S_B}, 5')
        a(f's_lshl_b32 s13, s{S_HG}, 3')
        a('s_add_u32 s11, s11, s13')
        a('s_lshl_b32 s11, s11, 13')
        for i in range(4):
            a(f'v_add_u32 v7, {8*i}, v3')
            a(f'v_lshl_add_u32 v6, v7, 8, v{8+i%2}')
            a(f'v_add_u32 v6, s11, v6')
            a(f'v_subrev_u32 v{L_DV+i}, {1024*i}, v6')
        a(f's_lshl_b32 s10, s{S_W}, 15')
        a(f's_lshl_b32 s13, s{S_NT}, 8')
        a('s_add_u32 s10, s10, s13')
        a(f's_lshl_b32 s13, s{S_HG}, 21')
        a('s_add_u32 s10, s10, s13')
        a('v_lshl_add_u32 v6, v5, 11, v10')
        a(f'v_add_u32 v{L_DWO}, s10, v6')
        for i in range(1, 4):
            a(f'v_add_u32 v{L_DWO+i}, {i*(4*2048-1024)}, v{L_DWO}')
        a('v_and_b32 v6, 31, v2')
        a('v_lshrrev_b32 v7, 1, v6')
        a('v_and_b32 v11, 1, v6')
        a('v_lshlrev_b32 v11, 7, v11')
        a('v_lshl_add_u32 v11, v7, 11, v11')
        a(f'v_add_u32 v{L_TWO}, s10, v11')
        a('v_lshlrev_b32 v7, 8, v6')
        a(f'v_add_u32 v{L_TV}, s11, v7')
        a(f'v_and_b32 v{L_POLLA}, 7, v2')
        a(f'v_lshlrev_b32 v{L_POLLA}, 3, v{L_POLLA}')
        a(f's_lshl_b32 s{S_TMP}, s{S_BR}, 4')
        a(f's_add_u32 s{S_TMP}, s{S_TMP}, s{S_B}')
        a(f's_lshl_b32 s{S_TMP}, s{S_TMP}, 2')
        a(f's_add_u32 s{S_TMP}, s{S_TMP}, s{S_HG}')
        a(f's_lshl_b32 s{S_TMP+2}, s{S_TMP}, 7')
        a(f's_add_u32 s{S_TMP+2}, s{S_TMP+2}, {WS_FLAG}')
        a(f's_lshl_b32 s{S_TMP+4}, s{S_TMP}, 14')
        a(f's_lshl_b32 s{S_TMP+5}, s{S_W}, 13')
        a(f's_add_u32 s{S_TMP+5}, s{S_TMP+5}, {AUX}')

    for mt in range(1, 4):
        a(f's_cmp_eq_u32 s{S_MT}, {mt}')
        a(f's_cbranch_scc1 LOADER{mt}')

    def loader(mt):
        s1, s2 = p1_sched(mt), p2_sched(mt)
        nops = [0]
        endpos = {}
        def op(l):
            a(l); nops[0] += 1
        def tile(kind, slot):
            if kind in ('x', 'v'):
                a(f's_add_u32 m0, s{S_LW}, {slot*16384}')
                v, s, so, f = (L_DX, SRD_X, S_SA, c.fx) if kind == 'x' else (L_DV, SRD_V, S_SA, c.fv)
            else:
                a(f's_add_u32 m0, s{S_LW}, {65536+slot*16384}')
                v, s, so, f = (L_DWQ, SRD_WQ, S_SW, c.fw) if kind == 'wq' else (L_DWO, SRD_WO, S_SW, c.fo)
            a('s_nop 0')
            for i in range(4):
                op(f'buffer_load_dwordx4 v{v+i}, s[{s}:{s+3}], s{so} offen offset:{1024*i} {f} lds')
        def touch(kind):
            if c.touch is None: return
            if kind == 'v': op(f'buffer_load_dword v{L_JUNK}, v{L_TV}, s[{SRD_V}:{SRD_V+3}], s{S_SA} offen {c.touch}')
            else: op(f'buffer_load_dword v{L_JUNK+1}, v{L_TWO}, s[{SRD_WO}:{SRD_WO+3}], s{S_SW} offen {c.touch}')
        def khalf(hf):
            a(f's_lshl_b32 s10, s{S_W}, 13')
            a(f's_add_u32 m0, s10, {AUX + hf*4096}')
            a(f's_mov_b32 s11, {hf*4096}')
            for i in range(4):
                op(f'buffer_load_dwordx4 v{L_DK+i}, s[{SRD_K}:{SRD_K+3}], s11 offen offset:{1024*i} {c.fk} lds')
        def issue(g):
            slot = g % 4
            if g < 16:
                r, i, own = s1[g]
                a(f's_add_u32 s{S_IDX}, s{S_2HD}, {4*i+OFFR[r]}')
                a(f's_and_b32 s{S_IDX}, s{S_IDX}, 15')
                a(f's_lshl_b32 s{S_SA}, s{S_IDX}, 7')
                a(f's_lshl_b32 s{S_SW}, s{S_IDX}, 19')
                tile('x', slot); tile('wq', slot)
                endpos[g] = nops[0]
                if own and r == 1: khalf(0)
                if own and r == 3: khalf(1)
                if g == 6:
                    op(f'buffer_load_dwordx2 v[{V_TAG}:{V_TAG+1}], off, s[{SRD_DBG}:{SRD_DBG+3}], 0 sc1')
            else:
                u, half = divmod(g - 16, 2)
                r, i, own = s2[u]
                a(f's_add_u32 s{S_IDX}, s{S_NT}, {4*r+i}')
                a(f's_and_b32 s{S_IDX}, s{S_IDX}, 7')
                a(f's_lshl_b32 s{S_SA}, s{S_IDX}, 13')
                a(f's_lshl_b32 s{S_SW}, s{S_IDX}, 18')
                if half:
                    a(f's_add_u32 s{S_SA}, s{S_SA}, 128')
                    a(f's_add_u32 s{S_SW}, s{S_SW}, {64*2048}')
                if half and own and r == 1:
                    tile('wo', slot); touch('wo'); tile('v', slot)
                    endpos[g] = nops[0]
                else:
                    tile('v', slot); tile('wo', slot)
                    endpos[g] = nops[0]
                    if own:
                        if r == 0: touch('v')
                        touch('wo')
        def pload(u):
            r, i, own = s2[u]
            a(f's_add_u32 s10, s{S_NT}, {4*r+i}')
            a(f's_and_b32 s10, s10, 7')
            a(f's_lshl_b32 s10, s10, 11')
            a(f's_add_u32 s10, s10, s{S_TMP+4}')
            a(f's_add_u32 m0, s{S_TMP+5}, {((u-1)%4)*2048}')
            a('s_nop 0')
            for G in range(2):
                op(f'buffer_load_dwordx4 v{V_L16}, s[{SRD_WS}:{SRD_WS+3}], s10 offen offset:{1024*G} sc1 lds')
        must = {}
        issue(0); issue(1)
        late_setup()
        for k in range(32):
            a(f's_waitcnt vmcnt({min(63, nops[0]-endpos[k])})')
            if k == 17:
                pass
            if k == c.poll_at:
                op(f'buffer_load_dwordx2 v[{L_POLL}:{L_POLL+1}], v{L_POLLA}, s[{SRD_WS}:{SRD_WS+3}], s{S_TMP+2} offen sc1')
                pollpos = nops[0]
            if k == c.poll_at + c.poll_lag:
                if endpos[k] < pollpos:
                    a(f's_waitcnt vmcnt({nops[0]-pollpos})')
                a(f's_mov_b32 s{S_TMP+3}, {c.spin}')
                a.label(f'PCHK{mt}')
                a(f'v_cmp_ne_u64 vcc, v[{L_POLL}:{L_POLL+1}], v[{V_TAG}:{V_TAG+1}]')
                a(f'v_cmp_eq_u64 s[10:11], 0, v[{V_TAG}:{V_TAG+1}]')
                a('s_or_b64 vcc, vcc, s[10:11]')
                a(f's_cbranch_scc0 POK{mt}')
                a(f's_sub_u32 s{S_TMP+3}, s{S_TMP+3}, 1')
                a(f's_cbranch_scc1 POK{mt}')
                a('s_sleep 1')
                a(f'buffer_load_dwordx2 v[{V_TAG}:{V_TAG+1}], off, s[{SRD_DBG}:{SRD_DBG+3}], 0 sc1')
                a(f'buffer_load_dwordx2 v[{L_POLL}:{L_POLL+1}], v{L_POLLA}, s[{SRD_WS}:{SRD_WS+3}], s{S_TMP+2} offen sc1')
                a('s_waitcnt vmcnt(0)')
                a(f's_branch PCHK{mt}')
                a.label(f'POK{mt}')
                for u in range(1, 5): pload(u)
                must[22] = max(must.get(22, 0), nops[0])
                assert k < 22
            if k == 24:
                pload(5); must[30] = nops[0]
            if k == 26:
                pload(6); must[31] = nops[0]
            if k == 28:
                pload(7); must[31] = nops[0]
            if k + 2 < 32:
                issue(k + 2)
            if must.get(k, 0) > endpos[k]:
                a(f's_waitcnt vmcnt({nops[0]-must[k]})')
            if k in (0, 8, 15, 16, 17, 18, 20, 24, 31): lstamp(1 + (0, 8, 15, 16, 17, 18, 20, 24, 31).index(k))
            a('s_barrier')
        a('s_branch L_END')
    for mt in range(4):
        if mt: a.label(f'LOADER{mt}')
        loader(mt)

    a.label('COMPUTE')
    T = ACC
    a('v_and_b32 v3, 31, v2')
    a('v_lshrrev_b32 v1, 5, v2')
    a(f's_lshl_b32 s13, s{S_W}, 12')
    a(f'v_bfe_u32 v{T}, v3, 1, 3')
    a(f'v_xor_b32 v{T}, v{T}, v1')
    for s in range(4):
        a(f'v_xor_b32 v{T+1}, {2*s}, v{T}')
        a(f'v_lshlrev_b32 v{T+1}, 4, v{T+1}')
        a(f'v_lshl_add_u32 v{T+1}, v3, 7, v{T+1}')
        a(f'v_add_u32 v{V_RA+s}, s13, v{T+1}')
    a(f'v_and_b32 v{T}, 3, v3')
    a(f'v_lshlrev_b32 v{T}, 2, v{T}')
    a(f'v_bfe_u32 v{T+1}, v3, 2, 2')
    a(f'v_or_b32 v{T}, v{T}, v{T+1}')
    a(f'v_xor_b32 v{T}, v{T}, v1')
    a(f'v_lshlrev_b32 v{T}, 4, v{T}')
    a(f'v_lshl_add_u32 v{T}, v3, 8, v{T}')
    a(f's_lshl_b32 s10, s{S_W}, 13')
    a(f's_add_u32 s10, s10, {AUX}')
    a(f'v_add_u32 v{V_SP}, s10, v{T}')
    def rt_setup(phase, T):
        L = []
        L.append(f'v_bfe_u32 v{T}, v2, 2, 2')
        L.append(f'v_bfe_u32 v{T+1}, v2, 4, 1')
        L.append(f'v_bfe_u32 v{T+2}, v2, 0, 1')
        L.append(f'v_bfe_u32 v{T+3}, v2, 1, 1')
        L.append(f'v_lshl_add_u32 v{T+4}, v1, 3, v{T}')
        L.append(f'v_lshlrev_b32 v{T+4}, 8, v{T+4}')
        L.append(f'v_add_u32 v{T+4}, 0x10000, v{T+4}')
        hi, lo = (T+1, T+2) if phase == 1 else (T+2, T+1)
        L.append(f'v_lshl_add_u32 v{T+4}, v{hi}, 5, v{T+4}')
        L.append(f'v_lshl_add_u32 v{T+4}, v{lo}, 4, v{T+4}')
        L.append(f'v_lshl_add_u32 v{T+4}, v{T+3}, 3, v{T+4}')
        for t in range(4):
            if phase == 1:
                L.append(f'v_xor_b32 v{T+5}, {t}, v{T}')
            else:
                L.append(f's_add_u32 s10, s{S_HG}, {t}')
                L.append('s_and_b32 s10, s10, 3')
                L.append(f'v_xor_b32 v{T+5}, s10, v{T}')
            L.append(f'v_lshl_add_u32 v{V_RT+t}, v{T+5}, 6, v{T+4}')
        return L
    for l in rt_setup(1, T): a(l)
    a('s_waitcnt lgkmcnt(0)')
    srd(SRD_WS, 40, WS_BYTES)
    srd(SRD_OUT, 36, 2 << 20)
    srd(SRD_DBG, 38, 256)
    a(f's_lshl_b32 s{S_LW}, s{S_W}, 12')
    a(f's_or_b32 s13, s2, s{S_W}')
    a('s_cmp_lg_u32 s13, 0')
    a('s_cbranch_scc1 NOTAG')
    a(f'v_mov_b32 v{T}, s42')
    a(f'v_mov_b32 v{T+1}, s43')
    a(f'buffer_store_dwordx2 v[{T}:{T+1}], off, s[{SRD_DBG}:{SRD_DBG+3}], 0 sc0 sc1')
    a.label('NOTAG')
    cstamp(1)

    def reads(j, s, f):
        slot = j % 4
        L = [f'ds_read_b128 {ar(AF[f]+16,4)}, v{V_RA+s} offset:{slot*16384}']
        for t in range(4):
            for u in range(2):
                L.append(f'ds_read_b64_tr_b16 {ar(AF[f]+4*t+2*u,2)}, v{V_RT+t} offset:{slot*16384+s*4096+u*1024}')
        return L
    def mfma(j, s, f, t):
        first = (j == 0 and s == 0) or (j >= 16 and j % 2 == 0 and s == 0)
        cc = '0' if first else vr(ACC+16*t, 16)
        wt, act = ar(AF[f]+4*t, 4), ar(AF[f]+16, 4)
        if j < 16: return f'{MF} {vr(ACC+16*t,16)}, {wt}, {act}, {cc}'
        return f'{MF} {vr(ACC+16*t,16)}, {act}, {wt}, {cc}'
    def cvts(u, t):
        d = VWB + 32 * (u % 2) + 8 * t
        return [f'v_cvt_pk_bf16_f32 v{d+i}, v{ACC+16*t+2*i}, v{ACC+16*t+2*i+1}' for i in range(8)]
    PF = VWB + 48
    def pstage(u, pbase=None):
        L = []
        for G in range(2):
            for t in (1, 2, 3, 0):
                o = ar(AO+16*t, 16)
                cc = '0' if (u == 0 and G == 0) else o
                p = vr(PF+4*G, 4) if u == 0 else (ar(AP+4*G, 4) if pbase is None else ar(pbase+4*G, 4))
                L.append(f'{MF} {o}, {vr(VWB+32*(u%2)+8*t+4*G,4)}, {p}, {cc}')
        return L
    def preads(u, dst=AP):
        return [f'ds_read_b128 {ar(dst+4*G,4)}, v{V_SP} offset:{((u-1)%4)*2048+1024*G}' for G in range(2)]

    a('s_barrier')
    cstamp(2)
    for l in reads(0, 0, 0): a(l)
    f = 0
    NG = 32
    carry = []
    prev_extra = 0
    for j in range(NG):
        if j == 16:
            softmax(a, c, cstamp, rt_setup, PF)
            a('s_barrier')
            cstamp(5)
            for l in reads(16, 0, f): a(l)
            prev_extra = 0
        for s in range(4):
            nxt = []; extra = []
            if s == 3 and j + 1 < NG and j != 15: a('s_waitcnt lgkmcnt(0)')
            else: a(f's_waitcnt lgkmcnt({4+prev_extra})')
            head_end = j >= 16 and j % 2 == 1 and s == 3
            u = (j - 16) // 2
            if s < 3:
                nxt = reads(j, s+1, f ^ 1)
                if j == 13 + 0 and False: pass
            elif j + 1 < NG and j != 15:
                if j == 16:
                    a('s_waitcnt vmcnt(0)')
                    a(f'buffer_store_dwordx2 v[{V_TAG}:{V_TAG+1}], off, s[{SRD_WS}:{SRD_WS+3}], s{S_TMP+1} sc0 sc1')
                a('s_barrier')
                if j + 1 == 8: cstamp(3)
                if j + 1 == 24: cstamp(6)
                nxt = reads(j+1, 0, f ^ 1)
            if j == 6 and s == 0:
                a(f'buffer_load_dwordx2 v[{V_TAG}:{V_TAG+1}], off, s[{SRD_DBG}:{SRD_DBG+3}], 0 sc1')
            pre = []
            if head_end and u >= 2:
                pre = preads(u - 1)
            if j == 14:
                extra = [f'KREAD{2*s}', f'KREAD{2*s+1}']
            if j == NG - 1 and s == 3:
                extra = [('P7', x) for x in preads(7, AF[f ^ 1])]
            allr = pre + nxt + extra
            gaps = [[], [], [], []]
            per = 3 if len(allr) <= 9 else 4
            if s == 2: per = 5 if len(allr) <= 10 else 6
            for i, r in enumerate(allr):
                gaps[min(3, i // per)].append(r)
            for t in range(4):
                if t == 2:
                    a(f's_waitcnt lgkmcnt({len(gaps[0])+len(gaps[1])})')
                a(mfma(j, s, f, t))
                if carry:
                    for l in carry.pop(0): a(l)
                if head_end and t >= 2:
                    for l in cvts(u, t - 2): a(l)
                for r in gaps[t]:
                    if isinstance(r, tuple): a(r[1])
                    elif r.startswith('KREAD'):
                        i = int(r[5:])
                        a(f'v_xor_b32 v3, {(2*i)<<4}, v{V_SP}')
                        a(f'ds_read_b128 {ar(AK+4*i,4)}, v3')
                    else: a(r)
            prev_extra = len(extra)
            if j == 18 and s == 1:
                for m in pstage(0): a(m)
            if head_end:
                rest = cvts(u, 2) + cvts(u, 3)
                if u >= 2:
                    a(f's_waitcnt lgkmcnt({len(nxt)+len(extra)})')
                    for i, m in enumerate(pstage(u - 1)):
                        a(m)
                        if i >= 1:
                            for l in rest[:4]: a(l)
                            rest = rest[4:]
                    assert not rest
                else:
                    carry = [rest[:8], rest[8:]]
            f ^= 1
    cstamp(7)
    a('s_waitcnt lgkmcnt(0)')
    for m in pstage(7, AF[f]): a(m)
    tail(a, c, cstamp)
    a.label('L_END')
    if c.stamps:
        n = 11
        a('s_waitcnt vmcnt(0) lgkmcnt(0)')
        a(f's_memrealtime s[{80+2*(n-1)}:{81+2*(n-1)}]')
        a('s_waitcnt lgkmcnt(0)')
        a(f's_cmp_lg_u32 s14, {4 if c.stamp_loader else 0}')
        a('s_cbranch_scc1 K_END')
        if c.dbgstamps:
            a('s_not_b32 s79, s80')
            a('v_mov_b32 v4, s79')
            a('s_mov_b64 exec, 1')
            a(f'buffer_atomic_umax v4, off, s[{SRD_DBG}:{SRD_DBG+3}], 0 offset:8 sc1')
            for i in range(n):
                a(f'v_mov_b32 v{5+i}, s{80+2*i}')
                a(f'buffer_atomic_umax v{5+i}, off, s[{SRD_DBG}:{SRD_DBG+3}], 0 offset:{12+4*i} sc1')
            a('s_branch K_END')
        a('s_mov_b32 s76, s40')
        a('s_mov_b32 s77, s41')
        a('s_mov_b32 s78, 0x10000000')
        a('s_mov_b32 s79, 0x00020000')
        a('s_lshl_b32 s75, s2, 7')
        a(f's_add_u32 s75, s75, {128<<20}')
        a('v_mov_b32 v3, 0')
        for i in range(n):
            a(f'v_mov_b32 v4, s{80+2*i}')
            a(f'v_mov_b32 v5, s{81+2*i}')
            a(f'buffer_store_dwordx2 v[4:5], v3, s[76:79], s75 offen offset:{8*i}')
            a('s_nop 1')
    a.label('K_END')
    a('s_endpgm')
    return a.text()

def softmax(a, c, stamp, rt_setup, PF):
    QF = VWB; S = VWB + 32
    stamp(4)
    a('s_waitcnt vmcnt(0)')
    a(f's_mov_b32 s{S_TMP+3}, {c.spin}')
    a.label('TCHK')
    a(f'v_cmp_eq_u64 vcc, 0, v[{V_TAG}:{V_TAG+1}]')
    a('s_cbranch_vccz TOK')
    a(f's_sub_u32 s{S_TMP+3}, s{S_TMP+3}, 1')
    a('s_cbranch_scc1 TOK')
    a('s_sleep 1')
    a(f'buffer_load_dwordx2 v[{V_TAG}:{V_TAG+1}], off, s[{SRD_DBG}:{SRD_DBG+3}], 0 sc1')
    a('s_waitcnt vmcnt(0)')
    a('s_branch TCHK')
    a.label('TOK')
    a('s_nop 5')
    cv = [f'v_cvt_pk_bf16_f32 v{QF+i}, v{ACC+2*i}, v{ACC+2*i+1}' for i in range(32)]
    for l in cv[:8]: a(l)
    cv = cv[8:]
    fill = []
    for s in range(8):
        a(f'{MF} {vr(S,16)}, {ar(AK+4*s,4)}, {vr(QF+4*s,4)}, ' + ('0' if s == 0 else vr(S,16)))
        for l in cv[:4]: a(l)
        cv = cv[4:]
    cc = (128 ** -0.5) * math.log2(math.e)
    cbits = struct.unpack('<I', struct.pack('<f', cc))[0]
    a(f's_mov_b32 s{S_TMP+4}, {hex(cbits)}')
    a(f's_lshl_b32 s{S_TMP}, s{S_BR}, 4')
    a(f's_add_u32 s{S_TMP}, s{S_TMP}, s{S_B}')
    a(f's_lshl_b32 s{S_TMP+1}, s{S_TMP}, 2')
    a(f's_add_u32 s{S_TMP+1}, s{S_TMP+1}, s{S_HG}')
    a(f's_lshl_b32 s{S_TMP+1}, s{S_TMP+1}, 4')
    a(f's_add_u32 s{S_TMP+1}, s{S_TMP+1}, s{S_J8}')
    a(f's_lshl_b32 s{S_TMP+1}, s{S_TMP+1}, 3')
    a(f's_add_u32 s{S_TMP+1}, s{S_TMP+1}, {WS_FLAG}')
    a(f's_lshl_b32 s{S_TMP}, s{S_TMP}, 5')
    a(f's_add_u32 s{S_TMP}, s{S_TMP}, s{S_HEAD}')
    a(f's_lshl_b32 s{S_TMP}, s{S_TMP}, 11')
    a(f's_lshl_b32 s10, s{S_W}, 13')
    a(f's_add_u32 s10, s10, {AUX}')
    a(f'v_add_u32 v{V_SP}, s10, v{V_L16}')
    t1, t2 = ACC, ACC + 1
    a(f'v_max3_f32 v{t1}, v{S}, v{S+1}, v{S+2}')
    a(f'v_max3_f32 v{t2}, v{S+3}, v{S+4}, v{S+5}')
    a(f'v_max3_f32 v{t1}, v{t1}, v{S+6}, v{S+7}')
    a(f'v_max3_f32 v{t2}, v{t2}, v{S+8}, v{S+9}')
    a(f'v_max3_f32 v{t1}, v{t1}, v{S+10}, v{S+11}')
    a(f'v_max3_f32 v{t2}, v{t2}, v{S+12}, v{S+13}')
    a(f'v_max3_f32 v{t1}, v{t1}, v{S+14}, v{S+15}')
    a(f'v_max_f32 v{t1}, v{t1}, v{t2}')
    a(f'v_mov_b32 v{t2}, v{t1}')
    a('s_nop 1')
    a(f'v_permlane32_swap_b32 v{t1}, v{t2}')
    a('s_nop 1')
    a(f'v_max_f32 v{t1}, v{t1}, v{t2}')
    a(f'v_mul_f32 v{t1}, s{S_TMP+4}, v{t1}')
    for i in range(16):
        a(f'v_fma_f32 v{S+i}, v{S+i}, s{S_TMP+4}, -v{t1}')
    for i in range(16):
        a(f'v_exp_f32 v{S+i}, v{S+i}')
    a(f'v_add_f32 v{t1}, v{S}, v{S+1}')
    a(f'v_add_f32 v{t2}, v{S+2}, v{S+3}')
    for i in range(4, 16, 2):
        a(f'v_add_f32 v{t1}, v{t1}, v{S+i}')
        a(f'v_add_f32 v{t2}, v{t2}, v{S+i+1}')
    a(f'v_add_f32 v{t1}, v{t1}, v{t2}')
    a(f'v_mov_b32 v{t2}, v{t1}')
    a('s_nop 1')
    a(f'v_permlane32_swap_b32 v{t1}, v{t2}')
    a('s_nop 1')
    a(f'v_add_f32 v{t1}, v{t1}, v{t2}')
    a(f'v_rcp_f32 v{t1}, v{t1}')
    a('s_nop 0')
    for i in range(16):
        a(f'v_mul_f32 v{S+i}, v{S+i}, v{t1}')
    for i in range(8):
        a(f'v_cvt_pk_bf16_f32 v{PF+i}, v{S+2*i}, v{S+2*i+1}')
    for G in range(2):
        a(f'buffer_store_dwordx4 {vr(PF+4*G,4)}, v{V_L16}, s[{SRD_WS}:{SRD_WS+3}], s{S_TMP} offen offset:{1024*G} sc0 sc1')
    for l in rt_setup(2, ACC + 2): a(l)

def tail(a, c, stamp):
    O = ACC
    R = VWB
    TG = V_RA
    XT = V_RT
    a(f'v_and_b32 v{TG}, 0xfff, v{V_TAG}')
    a(f'v_bfe_u32 v{TG+1}, v{V_TAG}, 12, 12')
    a(f'v_lshrrev_b32 v{TG+2}, 24, v{V_TAG}')
    a(f'v_and_b32 v{TG+3}, 0xf, v{V_TAG+1}')
    a(f'v_lshl_or_b32 v{TG+2}, v{TG+3}, 8, v{TG+2}')
    a(f'v_bfe_u32 v{TG+3}, v{V_TAG+1}, 4, 12')
    a(f's_mov_b32 s{S_TMP+4}, 0xfffff000')
    a(f's_lshl_b32 s{S_TMP}, s{S_BR}, 2')
    a(f's_add_u32 s{S_TMP}, s{S_TMP}, s{S_MT}')
    a(f's_lshl_b32 s{S_TMP}, s{S_TMP}, 3')
    a(f's_add_u32 s{S_TMP}, s{S_TMP}, s{S_NT}')
    a(f's_mul_i32 s{S_TMP}, s{S_TMP}, {4*3*4*4096}')
    a(f's_add_u32 s{S_TMP}, s{S_TMP}, s{S_LW}')
    a(f's_add_u32 s{S_TMP}, s{S_TMP}, {WS_X}')
    for t in (1, 2, 3):
        a(f's_add_u32 s{S_TMP+1}, s{S_HG}, {t}')
        a(f's_and_b32 s{S_TMP+1}, s{S_TMP+1}, 3')
        a(f's_mul_i32 s{S_TMP+1}, s{S_TMP+1}, {3*16384}')
        a(f's_add_u32 s{S_TMP+1}, s{S_TMP+1}, s{S_TMP}')
        a(f's_add_u32 s{S_TMP+1}, s{S_TMP+1}, {(t-1)*16384}')
        for q in range(4):
            for i in range(4):
                r = 16*t + 4*q + i
                a(f'v_accvgpr_read_b32 v{O+r}, a{AO+r}')
            for i in range(4):
                r = 16*t + 4*q + i
                a(f'v_bfi_b32 v{O+r}, s{S_TMP+4}, v{O+r}, v{TG+i}')
            a(f'buffer_store_dwordx4 {vr(O+16*t+4*q,4)}, v{V_L16}, s[{SRD_WS}:{SRD_WS+3}], s{S_TMP+1} offen offset:{1024*q} {c.xst}')
    stamp(8)
    for r in range(16):
        a(f'v_accvgpr_read_b32 v{O+r}, a{AO+r}')
    a(f's_mul_i32 s{S_TMP+1}, s{S_HG}, {3*16384}')
    a(f's_add_u32 s{S_TMP+1}, s{S_TMP+1}, s{S_TMP}')
    a(f's_add_u32 s{S_TMP+2}, s{S_TMP+1}, 16384')
    a(f's_add_u32 s{S_TMP+5}, s{S_TMP+1}, 32768')
    a(f's_lshl_b32 s10, s{S_B}, 17')
    a(f's_lshl_b32 s11, s{S_BR}, 11')
    a('s_add_u32 s10, s10, s11')
    a(f's_lshl_b32 s11, s{S_NT}, 8')
    a('s_add_u32 s10, s10, s11')
    a(f's_lshl_b32 s11, s{S_HG}, 6')
    a('s_add_u32 s10, s10, s11')
    a(f'v_and_b32 v3, 31, v{V_LANE}')
    a('v_lshlrev_b32 v3, 12, v3')
    a('v_lshl_add_u32 v3, v1, 5, v3')
    a(f's_mov_b32 s{S_TMP+3}, {c.spin}')
    a.label('XLOOP')
    for k, sreg in enumerate((S_TMP+1, S_TMP+2, S_TMP+5)):
        for q in range(4):
            a(f'buffer_load_dwordx4 {vr(R+16*k+4*q,4)}, v{V_L16}, s[{SRD_WS}:{SRD_WS+3}], s{sreg} offen offset:{1024*q} {c.xld}')
    for n in range(12):
        a(f's_waitcnt vmcnt({11-n})')
        for i in range(4):
            a(f'v_xor_b32 v{XT+i}, v{R+4*n+i}, v{TG+i}')
        if n == 0:
            a(f'v_or3_b32 v0, v{XT}, v{XT+1}, v{XT+2}')
            a(f'v_or_b32 v0, v0, v{XT+3}')
        else:
            a(f'v_or3_b32 v0, v0, v{XT}, v{XT+1}')
            a(f'v_or3_b32 v0, v0, v{XT+2}, v{XT+3}')
    a('v_and_b32 v0, 0xfff, v0')
    a('v_cmp_ne_u32 vcc, 0, v0')
    a('s_cbranch_vccz XOK')
    a(f's_sub_u32 s{S_TMP+3}, s{S_TMP+3}, 1')
    a('s_cbranch_scc0 XLOOP')
    a.label('XOK')
    stamp(9)
    for r in range(16):
        a(f'v_add_f32 v{O+r}, v{O+r}, v{R+r}')
        a(f'v_add_f32 v{R+16+r}, v{R+16+r}, v{R+32+r}')
    for r in range(16):
        a(f'v_add_f32 v{O+r}, v{O+r}, v{R+16+r}')
    for i in range(8):
        a(f'v_cvt_pk_bf16_f32 v{R+i}, v{O+2*i}, v{O+2*i+1}')
    a(f'buffer_store_dwordx4 {vr(R,4)}, v3, s[{SRD_OUT}:{SRD_OUT+3}], s10 offen')
    a(f'buffer_store_dwordx4 {vr(R+4,4)}, v3, s[{SRD_OUT}:{SRD_OUT+3}], s10 offen offset:16')

def build(c, out):
    hdr = open('header.txt').read().splitlines()
    t = '\n'.join(hdr) + '\n'
    t += '; @launch grid=(256,1,1) block=(512,1,1) lds=163840\n'
    t += '.amdgcn_target "amdgcn-amd-amdhsa--gfx950"\n.text\n'
    t += f'.globl {NAME}_kernel\n'
    out_l = []
    for l in gen(c).split('\n'):
        if c.nodma and ' lds' in l and 'sc1' not in l: continue
        if c.noread and 'ds_read' in l: continue
        if c.nomfma and 'v_mfma' in l: continue
        out_l.append(l)
    t += '\n'.join(out_l)
    t += kd(f'{NAME}_kernel', 256, 102, ACCUM_OFF)
    open(out, 'w').write(t)

if __name__ == '__main__':
    c = Cfg()
    out = sys.argv[1]
    for kv in sys.argv[2:]:
        k, v = kv.split('=', 1)
        old = getattr(c, k)
        if v == 'None': v = None
        elif isinstance(old, bool): v = v in ('1', 'True')
        elif isinstance(old, int): v = int(v)
        setattr(c, k, v)
    build(c, out)
```

```python
import sys, math, struct
from asmlib import *

NAME = 'concat_heads__mha_block_cached__gqa_block_cached__near_ridge'
MF = 'v_mfma_f32_32x32x16_bf16'

class Cfg:
    stamps = False; cyc = False; trace = False
    fx = ''; fw = ''; fk = ''; fv = ''; fo = ''
    xst = 'sc1'; xld = 'sc1'
    spin = 1 << 16
    lspin = 1 << 20
    cprio = 1
    early = 16
    psleep = 8
    pfirst = 21
    budget = 320
    pfv = -1
    pfo = -1
    pfo2 = -1
    xsleep = 0
    vthr = 4
    pprog = 18
    slowpath = True
    nodma = False; noread = False; nomfma = False
    padto = 0
    lsleep = 1
    ctrace = False
    nofree = False
    noprog = False
    noflag = False
    lpace = 0
    fewflags = False
    progop = ''
    ex1 = True

S_XCD, S_MT, S_BR, S_HG, S_J8, S_W, S_B, S_NT, S_HEAD, S_WID = 3, 4, 5, 6, 7, 8, 9, 15, 12, 14
SRD_X, SRD_K, SRD_V, SRD_WQ, SRD_WO, SRD_WS, SRD_OUT, SRD_DBG = 44, 48, 52, 56, 60, 64, 68, 72
S_SA, S_SW, S_IDX, S_LW = 24, 25, 26, 27
S_2HD = 28; S_PD = 29
S_TMP = 30
S_T0 = 16
S_SA2, S_SW2 = 18, 19
S_CNT = 20
S_NB = 21
S_TB = 22
S_TAB = 36
S_NOW = 38
V_FL = 0
V_LANE = 2; V_T3 = 3
V_RA = 4; V_RT = 8; V_L16 = 12; V_SP = 13; V_PA = 14; V_CB = 15
ACC = 16; VWB = 80
ACCUM_OFF = 144
AF = [0, 20]; AP = 40; AO = 48
AK = AO
L_DX, L_DWQ, L_DV, L_DWO = 16, 20, 24, 28
L_POLLA, L_POLL, L_TAG, L_THR, L_WA, L_WV, L_FA, L_TMP, L_THR2 = 32, 34, 36, 38, 39, 40, 41, 42, 43
L_PFV, L_PFO, L_JUNK = 44, 45, 46

WS_FLAG = 2 << 20
WS_X = 4 << 20
WS_BYTES = 16 << 20
AUX = 0x20000
CB = 163840 - 2048
CB_FULL = CB + 1024; CB_PRDY = CB + 1040; CB_TAG = CB + 1056
OFFR = [0, 2, 1, 3]
NG = 32

def p1_sched(mt):
    L = [(0, mt, True)]
    for r in range(3):
        for q in range(4):
            L.append((r + 1, mt, True) if q == mt else (r, q, False))
    L += [(3, q, False) for q in range(4) if q != mt]
    return L
def p2_sched(mt):
    L = [(0, mt, True)]
    for q in range(4):
        L.append((1, mt, True) if q == mt else (0, q, False))
    L += [(1, q, False) for q in range(4) if q != mt]
    return L

def gen(c):
    a = Asm()
    def stamp(i):
        if c.stamps: a(f'{"s_memtime" if (c.cyc and i > 0) else "s_memrealtime"} s[{80+2*i}:{81+2*i}]')
    a.raw('.p2align 8')
    a.raw(f'.type {NAME}_kernel,@function')
    a.label(f'{NAME}_kernel')
    a('s_cmp_ge_u32 s2, 256')
    a('s_cbranch_scc1 K_END')
    stamp(0)
    a('s_load_dwordx16 s[16:31], s[0:1], 0')
    a('s_load_dwordx8 s[32:39], s[0:1], 64')
    a('s_load_dwordx2 s[40:41], s[0:1], 96')
    a('s_memrealtime s[42:43]')
    a(f's_and_b32 s{S_XCD}, s2, 7')
    a(f's_lshr_b32 s{S_MT}, s2, 3')
    a(f's_lshr_b32 s{S_BR}, s{S_XCD}, 2')
    a(f's_and_b32 s{S_HG}, s{S_XCD}, 3')
    a(f's_and_b32 s{S_J8}, s{S_MT}, 7')
    a(f's_lshr_b32 s{S_MT}, s{S_MT}, 3')
    a('v_lshrrev_b32 v1, 6, v0')
    a(f'v_and_b32 v{V_LANE}, 63, v0')
    a(f's_sub_u32 s{S_NT}, s{S_J8}, s{S_MT}')
    a(f'v_readfirstlane_b32 s{S_WID}, v1')
    a(f's_and_b32 s{S_NT}, s{S_NT}, 7')
    a(f's_lshl_b32 s{S_HEAD}, s{S_HG}, 3')
    a(f's_add_u32 s{S_HEAD}, s{S_HEAD}, s{S_J8}')
    a(f'v_lshlrev_b32 v{V_L16}, 4, v2')
    def srd_sel(d, pa, pb, nbytes):
        a(f's_cselect_b32 s{d}, s{pb}, s{pa}')
        a(f's_cselect_b32 s{d+1}, s{pb+1}, s{pa+1}')
        a(f's_mov_b32 s{d+2}, {hex(nbytes)}')
        a(f's_mov_b32 s{d+3}, 0x00020000')
    def srd(d, p, nbytes):
        a(f's_mov_b32 s{d}, s{p}')
        a(f's_mov_b32 s{d+1}, s{p+1}')
        a(f's_mov_b32 s{d+2}, {hex(nbytes)}')
        a(f's_mov_b32 s{d+3}, 0x00020000')
    a(f's_cmp_lt_u32 s{S_WID}, 4')
    a('s_cbranch_scc1 COMPUTE')

    a(f's_and_b32 s{S_W}, s{S_WID}, 3')
    a(f's_lshl_b32 s{S_B}, s{S_MT}, 2')
    a(f's_add_u32 s{S_B}, s{S_B}, s{S_W}')
    a('v_lshrrev_b32 v3, 3, v2')
    a('v_and_b32 v4, 7, v2')
    a('v_lshrrev_b32 v5, 4, v2')
    a(f's_lshl_b32 s10, s{S_B}, 16')
    for i in range(2):
        a(f'v_add_u32 v6, {4*i}, v5')
        a('v_xor_b32 v6, v6, v4')
        a(f'v_lshlrev_b32 v{8+i}, 4, v6')
    for i in range(4):
        a(f'v_add_u32 v7, {8*i}, v3')
        a(f'v_lshl_add_u32 v6, v7, 11, v{8+i%2}')
        a(f'v_add_u32 v6, s10, v6')
        a(f'v_subrev_u32 v{L_DX+i}, {1024*i}, v6')
    a('v_and_b32 v6, 15, v2')
    a('v_lshlrev_b32 v7, 2, v5')
    a('v_xor_b32 v6, v6, v7')
    a('v_lshlrev_b32 v10, 4, v6')
    a(f's_lshl_b32 s10, s{S_W}, 17')
    a(f's_lshl_b32 s13, s{S_HEAD}, 8')
    a('s_add_u32 s10, s10, s13')
    a('v_lshl_add_u32 v6, v5, 13, v10')
    a(f'v_add_u32 v{L_DWQ}, s10, v6')
    for i in range(1, 4):
        a(f'v_add_u32 v{L_DWQ+i}, {i*(4*8192-1024)}, v{L_DWQ}')
    a(f's_lshl_b32 s11, s{S_B}, 5')
    a(f's_lshl_b32 s13, s{S_HG}, 3')
    a('s_add_u32 s11, s11, s13')
    a('s_lshl_b32 s11, s11, 13')
    for i in range(4):
        a(f'v_add_u32 v7, {8*i}, v3')
        a(f'v_lshl_add_u32 v6, v7, 8, v{8+i%2}')
        a(f'v_add_u32 v6, s11, v6')
        a(f'v_subrev_u32 v{L_DV+i}, {1024*i}, v6')
    a('s_waitcnt lgkmcnt(0)')
    a(f's_cmp_eq_u32 s{S_BR}, 1')
    srd_sel(SRD_X, 16, 26, 1 << 20)
    srd_sel(SRD_WQ, 22, 32, 8 << 20)
    srd_sel(SRD_K, 18, 28, 4 << 20)
    srd_sel(SRD_V, 20, 30, 4 << 20)
    srd_sel(SRD_WO, 24, 34, 8 << 20)
    srd(SRD_WS, 40, WS_BYTES)
    srd(SRD_DBG, 38, 256)
    a(f's_lshl_b32 s{S_LW}, s{S_W}, 12')
    a(f's_lshl_b32 s{S_2HD}, s{S_J8}, 1')
    a(f's_mov_b32 s{S_PD}, 0')

    def late_setup():
        a(f's_lshl_b32 s10, s{S_W}, 15')
        a(f's_lshl_b32 s13, s{S_NT}, 8')
        a('s_add_u32 s10, s10, s13')
        a(f's_lshl_b32 s13, s{S_HG}, 21')
        a('s_add_u32 s10, s10, s13')
        a('v_lshl_add_u32 v6, v5, 11, v10')
        a(f'v_add_u32 v{L_DWO}, s10, v6')
        for i in range(1, 4):
            a(f'v_add_u32 v{L_DWO+i}, {i*(4*2048-1024)}, v{L_DWO}')
        a(f'v_and_b32 v6, 7, v2')
        a(f'v_lshlrev_b32 v{L_POLLA}, 3, v6')
        a(f's_lshl_b32 s{S_TMP}, s{S_BR}, 4')
        a(f's_add_u32 s{S_TMP}, s{S_TMP}, s{S_B}')
        a(f's_lshl_b32 s{S_TMP}, s{S_TMP}, 2')
        a(f's_add_u32 s{S_TMP}, s{S_TMP}, s{S_HG}')
        a(f's_lshl_b32 s{S_TMP+2}, s{S_TMP}, 7')
        a(f's_add_u32 s{S_TMP+2}, s{S_TMP+2}, {WS_FLAG}')
        a(f's_lshl_b32 s{S_TMP+4}, s{S_TMP}, 14')
        a(f's_mul_i32 s{S_TMP+5}, s{S_W}, 6144')
        a(f's_add_u32 s{S_TMP+5}, s{S_TMP+5}, {AUX}')
        a(f'v_lshlrev_b32 v{L_WA}, 2, v2')
        a(f's_lshl_b32 s10, s{S_B}, 5')
        a(f's_add_u32 s10, s10, s{S_HEAD}')
        a('s_lshl_b32 s10, s10, 13')
        a('v_lshlrev_b32 v6, 7, v2')
        a(f'v_add_u32 v{L_PFV}, s10, v6')
        a(f's_lshl_b32 s10, s{S_HG}, 21')
        a(f's_lshl_b32 s11, s{S_W}, 16')
        a('s_add_u32 s10, s10, s11')
        a(f's_lshl_b32 s11, s{S_NT}, 8')
        a('s_add_u32 s10, s10, s11')
        a('v_lshrrev_b32 v6, 1, v2')
        a('v_lshlrev_b32 v6, 11, v6')
        a('v_and_b32 v7, 1, v2')
        a('v_lshl_add_u32 v6, v7, 7, v6')
        a(f'v_add_u32 v{L_PFO}, s10, v6')

    a(f's_getpc_b64 s[{S_TAB}:{S_TAB+1}]')
    a.label('PCREF')
    a(f's_add_u32 s{S_TAB}, s{S_TAB}, SEQTAB-PCREF')
    a(f's_addc_u32 s{S_TAB+1}, s{S_TAB+1}, 0')
    a(f's_lshl_b32 s{S_TMP+3}, s{S_W}, 2')
    a(f's_add_u32 s{S_TMP+3}, s{S_TMP+3}, {CB_FULL}')
    a(f's_mov_b32 s{S_NB}, 0')
    for v in range(1, 4):
        a(f's_cmp_eq_u32 s{S_MT}, {v}')
        a(f's_cbranch_scc1 LOADER{v}')

    def loader(mt):
        tagn = f'{mt}'
        s1, s2 = p1_sched(mt), p2_sched(mt)
        nops = [0]; endpos = {}
        def tile(kind, slot):
            if kind in ('x', 'v', 'k'):
                base = slot*16384 if kind != 'k' else AUX
                v, s, f = {'x': (L_DX, SRD_X, c.fx), 'v': (L_DV, SRD_V, c.fv), 'k': (L_DV, SRD_K, c.fk)}[kind]
                so = S_SA
            else:
                base = 65536 + slot*16384
                v, s, f = (L_DWQ, SRD_WQ, c.fw) if kind == 'wq' else (L_DWO, SRD_WO, c.fo)
                so = S_SW
            a(f's_add_u32 m0, s{S_LW}, {base}')
            a('s_nop 0')
            for i in range(4):
                a(f'buffer_load_dwordx4 v{v+i}, s[{s}:{s+3}], s{so} offen offset:{1024*i} {f} lds')
                nops[0] += 1
        def wflag(off, val):
            a(f's_add_u32 m0, s{S_TMP+3}, {off}')
            a(f'v_mov_b32 v{L_WV}, {4*val}')
            a('s_mov_b64 exec, 1')
            a(f'global_load_lds_dword v{L_WV}, s[{S_TAB}:{S_TAB+1}]')
            a('s_mov_b64 exec, -1')
        def pload(u, count):
            r, i, own = s2[u]
            a(f's_add_u32 s10, s{S_NT}, {4*r+i}')
            a(f's_and_b32 s10, s10, 7')
            a(f's_lshl_b32 s10, s10, 11')
            a(f's_add_u32 m0, s{S_TMP+5}, {((u-1)%3)*2048}')
            a(f's_add_u32 s10, s10, s{S_TMP+4}')
            for G in range(2):
                a(f'buffer_load_dwordx4 v{V_L16}, s[{SRD_WS}:{SRD_WS+3}], s10 offen offset:{1024*G} sc1 lds')
                if count: nops[0] += 1
        def poll():
            a(f'buffer_load_dwordx2 v[{L_POLL}:{L_POLL+1}], v{L_POLLA}, s[{SRD_WS}:{SRD_WS+3}], s{S_TMP+2} offen sc1')
        def bar():
            a('s_barrier')
            a(f's_memtime s[{S_TB}:{S_TB+1}]')
            a(f's_add_u32 s{S_NB}, s{S_NB}, 1')
        def gate(n):
            nm = f'{tagn}_{n}'
            if n < 3: return
            a.label(f'GA{nm}')
            if n >= 4:
                a(f's_cmp_ge_u32 s{S_NB}, {n-3}')
                a(f's_cbranch_scc1 GB{nm}')
                bar()
                a.label(f'GB{nm}')
            a(f's_cmp_ge_u32 s{S_NB}, {n-2}')
            a(f's_cbranch_scc1 GO{nm}')
            a.label(f'GP{nm}')
            a(f's_getreg_b32 s10, hwreg(HW_REG_IB_STS)')
            a(f's_memtime s[{S_NOW}:{S_NOW+1}]')
            a('s_and_b32 s10, s10, 0xc0000f')
            a(f's_cmp_le_u32 s10, {c.vthr}')
            a(f's_cbranch_scc1 GO{nm}')
            a('s_waitcnt lgkmcnt(0)')
            a(f's_sub_u32 s10, s{S_NOW}, s{S_TB}')
            nb = n - 3
            bud = c.budget + (1100 if nb == 16 else 0) + (256 if (nb == 18 or (nb >= 22 and nb % 2 == 0)) else 0)
            a(f's_cmp_lt_u32 s10, {bud if n > 3 else 1 << 20}')
            a(f's_cbranch_scc1 GP{nm}')
            bar()
            a.label(f'GO{nm}')
        def tr(lane, reg):
            if c.trace:
                a('s_memrealtime s[76:77]')
                a('s_waitcnt lgkmcnt(0)')
                a(f'v_writelane_b32 v{reg}, s76, {lane}')
        PA = list(range(c.pfirst, 24))
        a(f's_memtime s[{S_TB}:{S_TB+1}]')
        for g in range(NG):
            slot = g % 4
            gate(g)
            tr(g, 50)
            if g in PA:
                if g > PA[0]:
                    a(f's_cmp_lg_u32 s{S_PD}, 0')
                    a(f's_cbranch_scc1 NP{tagn}_{g}')
                poll()
                if g > PA[0]: a.label(f'NP{tagn}_{g}')
            if g == 6:
                a(f'buffer_load_dwordx2 v[{L_TAG}:{L_TAG+1}], off, s[{SRD_DBG}:{SRD_DBG+3}], 0 sc1')
            start = nops[0]
            if g < 16:
                r, i, own = s1[g]
                a(f's_add_u32 s{S_IDX}, s{S_2HD}, {4*i+OFFR[r]}')
                a(f's_and_b32 s{S_IDX}, s{S_IDX}, 15')
                a(f's_lshl_b32 s{S_SA}, s{S_IDX}, 7')
                a(f's_lshl_b32 s{S_SW}, s{S_IDX}, 19')
                tile('x', slot); tile('wq', slot)
                if g == 0:
                    late_setup()
                    a('s_barrier')
                wflag(0, g + 1); nops[0] += 1
                if own and r in (1, 3):
                    a(f's_lshl_b32 s{S_SA}, s{S_J8}, 13')
                    if r == 3: a(f's_add_u32 s{S_SA}, s{S_SA}, 128')
                    tile('k', 0)
            else:
                u, half = divmod(g - 16, 2)
                r, i, own = s2[u]
                a(f's_add_u32 s{S_IDX}, s{S_NT}, {4*r+i}')
                a(f's_and_b32 s{S_IDX}, s{S_IDX}, 7')
                a(f's_lshl_b32 s{S_SA}, s{S_IDX}, 13')
                a(f's_lshl_b32 s{S_SW}, s{S_IDX}, 18')
                if half:
                    a(f's_add_u32 s{S_SA}, s{S_SA}, 128')
                    a(f's_add_u32 s{S_SW}, s{S_SW}, {64*2048}')
                if g in (25, 27, 29, 31): pload((g - 25) // 2 + 4, True)
                if half and own and r == 1: tile('wo', slot); tile('v', slot)
                else: tile('v', slot); tile('wo', slot)
                wflag(0, g + 1); nops[0] += 1
            if c.pfv >= 0 and g == c.pfv + mt:
                a(f'buffer_load_dword v{L_JUNK}, v{L_PFV}, s[{SRD_V}:{SRD_V+3}], 0 offen'); nops[0] += 1
            if c.pfo >= 0 and g == c.pfo + mt:
                a(f's_lshl_b32 s10, s{S_J8}, 18')
                a(f'buffer_load_dword v{L_JUNK+1}, v{L_PFO}, s[{SRD_WO}:{SRD_WO+3}], s10 offen'); nops[0] += 1
            if c.pfo2 >= 0 and g == c.pfo2 + mt:
                a(f's_add_u32 s10, s{S_J8}, 4')
                a('s_and_b32 s10, s10, 7')
                a(f's_lshl_b32 s10, s10, 18')
                a(f'buffer_load_dword v{L_JUNK+2}, v{L_PFO}, s[{SRD_WO}:{SRD_WO+3}], s10 offen'); nops[0] += 1
            n_this = nops[0] - start
            tr(32 + g, 50)
            if g == 6:
                a(f's_waitcnt vmcnt({n_this})')
                a(f's_mov_b32 s{S_CNT}, {c.spin}')
                a.label(f'TG{tagn}')
                a(f'v_cmp_eq_u64 vcc, 0, v[{L_TAG}:{L_TAG+1}]')
                a(f's_cbranch_vccz TGOK{tagn}')
                a(f's_sub_u32 s{S_CNT}, s{S_CNT}, 1')
                a(f's_cbranch_scc1 TGOK{tagn}')
                a('s_sleep 1')
                a(f'buffer_load_dwordx2 v[{L_TAG}:{L_TAG+1}], off, s[{SRD_DBG}:{SRD_DBG+3}], 0 sc1')
                a('s_waitcnt vmcnt(0)')
                a(f's_branch TG{tagn}')
                a.label(f'TGOK{tagn}')
                a(f's_mov_b32 m0, {CB_TAG}')
                a('s_mov_b64 exec, 3')
                a(f'buffer_load_dword v{L_WA}, s[{SRD_DBG}:{SRD_DBG+3}], 0 offen sc1 lds')
                a('s_mov_b64 exec, -1')
            if g in PA:
                last = g == PA[-1]
                a(f's_cmp_lg_u32 s{S_PD}, 0')
                a(f's_cbranch_scc1 PD{tagn}_{g}')
                a(f's_waitcnt vmcnt({n_this})')
                if last:
                    a(f's_mov_b32 s{S_CNT}, {c.spin}')
                    a.label(f'PC{tagn}')
                a(f'v_cmp_ne_u64 vcc, v[{L_POLL}:{L_POLL+1}], v[{L_TAG}:{L_TAG+1}]')
                if not last:
                    a(f's_cbranch_vccnz PD{tagn}_{g}')
                else:
                    a(f's_cbranch_vccz PG{tagn}')
                    a(f's_sub_u32 s{S_CNT}, s{S_CNT}, 1')
                    a(f's_cbranch_scc1 PG{tagn}')
                    a(f's_cmp_ge_u32 s{S_NB}, 21')
                    a(f's_cbranch_scc1 PB{tagn}')
                    bar()
                    a.label(f'PB{tagn}')
                    poll()
                    a('s_waitcnt vmcnt(0)')
                    a(f's_branch PC{tagn}')
                    a.label(f'PG{tagn}')
                for u in (1, 2, 3): pload(u, False)
                wflag(CB_PRDY - CB_FULL, 1)
                a(f's_mov_b32 s{S_PD}, 1')
                tr(60, 51)
                a.label(f'PD{tagn}_{g}')
        a('s_waitcnt vmcnt(0)')
        if c.trace:
            a(f'v_writelane_b32 v51, s42, 63')
            a('s_mov_b32 s76, s40')
            a('s_mov_b32 s77, s41')
            a('s_mov_b32 s78, 0x10000000')
            a('s_mov_b32 s79, 0x00020000')
            a('s_lshl_b32 s75, s2, 2')
            a(f's_add_u32 s75, s75, s{S_W}')
            a('s_lshl_b32 s75, s75, 9')
            a(f's_add_u32 s75, s75, {(130<<20)}')
            a('v_lshlrev_b32 v3, 2, v2')
            a('buffer_store_dword v50, v3, s[76:79], s75 offen')
            a('buffer_store_dword v51, v3, s[76:79], s75 offen offset:256')
        a('s_endpgm')
    for v in range(4):
        if v: a.label(f'LOADER{v}')
        loader(v)

    a.label('COMPUTE')
    if c.cprio: a(f's_setprio {c.cprio}')
    a(f's_mov_b32 s{S_W}, s{S_WID}')
    a(f's_lshl_b32 s{S_B}, s{S_MT}, 2')
    a(f's_add_u32 s{S_B}, s{S_B}, s{S_W}')
    T = ACC
    a(f's_lshl_b32 s13, s{S_W}, 8')
    a(f's_add_u32 s13, s13, {CB}')
    a(f'v_lshlrev_b32 v{T}, 2, v2')
    a(f'v_add_u32 v{V_PA}, s13, v{T}')
    a(f'v_mov_b32 v{T+1}, 0')
    a(f'ds_write_b32 v{V_PA}, v{T+1}')
    a(f'v_add_u32 v{T}, {CB_FULL}, v{T}')
    a(f'ds_write_b32 v{T}, v{T+1}')
    a(f'v_and_b32 v{V_CB}, 3, v2')
    a(f'v_lshlrev_b32 v{V_CB}, 2, v{V_CB}')
    a(f'v_add_u32 v{V_CB}, {CB_FULL}, v{V_CB}')
    a('s_waitcnt lgkmcnt(0)')
    a('s_barrier')
    a('v_and_b32 v3, 31, v2')
    a('v_lshrrev_b32 v1, 5, v2')
    a(f's_lshl_b32 s{S_LW}, s{S_W}, 12')
    a(f'v_bfe_u32 v{T}, v3, 1, 3')
    a(f'v_xor_b32 v{T}, v{T}, v1')
    for s in range(4):
        a(f'v_xor_b32 v{T+1}, {2*s}, v{T}')
        a(f'v_lshlrev_b32 v{T+1}, 4, v{T+1}')
        a(f'v_lshl_add_u32 v{T+1}, v3, 7, v{T+1}')
        a(f'v_add_u32 v{V_RA+s}, s{S_LW}, v{T+1}')
    def rt_setup(phase, T):
        L = []
        L.append(f'v_bfe_u32 v{T}, v2, 2, 2')
        L.append(f'v_bfe_u32 v{T+1}, v2, 4, 1')
        L.append(f'v_bfe_u32 v{T+2}, v2, 0, 1')
        L.append(f'v_bfe_u32 v{T+3}, v2, 1, 1')
        L.append(f'v_lshrrev_b32 v{T+4}, 5, v2')
        L.append(f'v_lshl_add_u32 v{T+4}, v{T+4}, 3, v{T}')
        L.append(f'v_lshlrev_b32 v{T+4}, 8, v{T+4}')
        L.append(f'v_add_u32 v{T+4}, 0x10000, v{T+4}')
        hi, lo = (T+1, T+2) if phase == 1 else (T+2, T+1)
        L.append(f'v_lshl_add_u32 v{T+4}, v{hi}, 5, v{T+4}')
        L.append(f'v_lshl_add_u32 v{T+4}, v{lo}, 4, v{T+4}')
        L.append(f'v_lshl_add_u32 v{T+4}, v{T+3}, 3, v{T+4}')
        for t in range(4):
            if phase == 1:
                L.append(f'v_xor_b32 v{T+5}, {t}, v{T}')
            else:
                L.append(f's_add_u32 s10, s{S_HG}, {t}')
                L.append('s_and_b32 s10, s10, 3')
                L.append(f'v_xor_b32 v{T+5}, s10, v{T}')
            L.append(f'v_lshl_add_u32 v{V_RT+t}, v{T+5}, 6, v{T+4}')
        return L
    for l in rt_setup(1, T): a(l)
    srd(SRD_WS, 40, WS_BYTES)
    srd(SRD_OUT, 36, 2 << 20)
    srd(SRD_DBG, 38, 256)
    a(f's_mul_i32 s10, s{S_W}, 6144')
    a(f's_add_u32 s10, s10, {AUX}')
    a(f'v_add_u32 v{V_SP}, s10, v{V_L16}')
    a(f's_or_b32 s13, s2, s{S_W}')
    a('s_cmp_lg_u32 s13, 0')
    a('s_cbranch_scc1 NOTAG')
    a(f'v_mov_b32 v{T}, s42')
    a(f'v_mov_b32 v{T+1}, s43')
    a(f'buffer_store_dwordx2 v[{T}:{T+1}], off, s[{SRD_DBG}:{SRD_DBG+3}], 0 sc0 sc1')
    a.label('NOTAG')
    stamp(1)

    def reads(j, s, f):
        slot = j % 4
        L = [f'ds_read_b128 {ar(AF[f]+16,4)}, v{V_RA+s} offset:{slot*16384}']
        for t in range(4):
            for u in range(2):
                L.append(f'ds_read_b64_tr_b16 {ar(AF[f]+4*t+2*u,2)}, v{V_RT+t} offset:{slot*16384+s*4096+u*1024}')
        return L
    def mfma(j, s, f, t):
        first = (j == 0 and s == 0) or (j >= 16 and j % 2 == 0 and s == 0)
        cc = '0' if first else vr(ACC+16*t, 16)
        wt, act = ar(AF[f]+4*t, 4), ar(AF[f]+16, 4)
        if j < 16: return f'{MF} {vr(ACC+16*t,16)}, {wt}, {act}, {cc}'
        return f'{MF} {vr(ACC+16*t,16)}, {act}, {wt}, {cc}'
    def cvts(u, t):
        d = VWB + 32 * (u % 2) + 8 * t
        return [f'v_cvt_pk_bf16_f32 v{d+i}, v{ACC+16*t+2*i}, v{ACC+16*t+2*i+1}' for i in range(8)]
    PF = VWB + 48
    def pstage(u, pbase=None):
        L = []
        for G in range(2):
            for t in (1, 2, 3, 0):
                o = ar(AO+16*t, 16)
                cc = '0' if (u == 0 and G == 0) else o
                p = vr(PF+4*G, 4) if u == 0 else (ar(AP+4*G, 4) if pbase is None else ar(pbase+4*G, 4))
                L.append(f'{MF} {o}, {vr(VWB+32*(u%2)+8*t+4*G,4)}, {p}, {cc}')
        return L
    def preads(u, dst=AP):
        return [f'ds_read_b128 {ar(dst+4*G,4)}, v{V_SP} offset:{((u-1)%3)*2048+1024*G}' for G in range(2)]
    def flagread(g):
        return f'ds_read_b32 v{V_FL}, v{V_CB}'
    def flagtest(g):
        a(f'v_cmp_ge_u32 vcc, {g}, v{V_FL}')
    def spin(name, rd, test):
        a(f's_mov_b32 s{S_CNT}, {c.lspin}')
        a.label(name)
        a(rd)
        a(f's_sub_u32 s{S_CNT}, s{S_CNT}, 1')
        a('s_cbranch_scc1 K_END')
        a('s_waitcnt lgkmcnt(0)')
        test()
        a(f's_cbranch_vccnz {name}')

    def step(j, s, f, lds_ops, carry, old_extra, skip_first=False, dobar=True):
        head_end = j >= 16 and j % 2 == 1 and s == 3
        u = (j - 16) // 2
        gaps = [[], [], [], []]
        per = 3 if len(lds_ops) <= 9 else 4
        for i, r in enumerate(lds_ops):
            gaps[min(3, i // per)].append(r)
        carry = list(carry)
        cv = []
        if head_end:
            for t in range(4): cv += cvts(u, t)
        ncv = 4 if u >= 2 else 8
        newn = 0
        for t in range(4):
            remain_old = (6, 4, 2, 0)[t] + (old_extra if t < 3 else 0)
            if not (t == 0 and skip_first):
                a(f's_waitcnt lgkmcnt({remain_old + newn})')
            a(mfma(j, s, f, t))
            for r in gaps[t]:
                for l in r: a(l)
                if r[-1].startswith('ds_'): newn += 1
            if carry:
                for l in carry.pop(0): a(l)
            if head_end and t >= 2:
                for l in cv[:ncv]: a(l)
                cv = cv[ncv:]
        if s == 3 and dobar and j <= NG - 3: a('s_barrier')
        if j == 18 and s == 1:
            for m in pstage(0): a(m)
        nc = []
        if head_end:
            if u >= 2:
                for i, m in enumerate(pstage(u - 1)):
                    a(m)
                    for l in cv[:4]: a(l)
                    cv = cv[4:]
                assert not cv
            else:
                nc = [cv[:8], cv[8:]]
        return nc

    slow = []
    if c.progop: a(f's_lshl_b32 m0, s{S_W}, 8')
    if c.ctrace: a('s_mov_b32 s95, 0')
    spin('W0', flagread(0), lambda: flagtest(0))
    stamp(2)
    for l in reads(0, 0, 0): a(l)
    f = 0
    carry = []
    prev_extra = 0
    for j in range(NG):
        if j == 16:
            softmax(a, c, stamp, rt_setup, PF)
            spin('W16', flagread(16), lambda: flagtest(16))
            stamp(5)
            for l in reads(16, 0, f): a(l)
            prev_extra = 0
        u = (j - 16) // 2
        if c.ctrace:
            if j > 0: a(f'v_writelane_b32 v1, s{96+2*((j-1)%2)}, {j-1}')
            a(f's_memtime s[{96+2*(j%2)}:{97+2*(j%2)}]')
        for s in range(4):
            if s < 3:
                ops = [[r] for r in reads(j, s+1, f ^ 1)]
                extra = []
                if j in (5, 13) and s < 2:
                    hf = 0 if j == 5 else 1
                    for ss in (2*s, 2*s+1):
                        extra.append([f'v_add_u32 v{V_T3}, {AUX}, v{V_RA+ss}', f'ds_read_b128 {ar(AK+16*hf+4*ss,4)}, v{V_T3}'])
                if j >= 21 and j % 2 == 1 and s == 1:
                    if j == 21:
                        spin('WP', f'ds_read_b32 v{V_FL}, v{V_CB} offset:{CB_PRDY-CB_FULL}', lambda: a(f'v_cmp_eq_u32 vcc, 0, v{V_FL}'))
                    extra += [[r] for r in preads(u - 1)]
                if s == 2:
                    if j + 1 < NG and j != 15:
                        ops = [[flagread(j + 1)]] + ops
                    if j == 16:
                        extra.append(['s_waitcnt vmcnt(0)', f'v_mov_b32 v{ACC_TAGT}, s{S_T0}', f'v_mov_b32 v{ACC_TAGT+1}, s{S_T0+1}',
                                      f'buffer_store_dwordx2 v[{ACC_TAGT}:{ACC_TAGT+1}], off, s[{SRD_WS}:{SRD_WS+3}], s{S_TMP+1} sc0 sc1', 's_nop 0'])
                n_lds_extra = sum(1 for e in extra if e[-1].startswith('ds_'))
                ops2 = ops + extra
                carry = step(j, s, f, ops2, carry, prev_extra)
                prev_extra = n_lds_extra
            else:
                if j + 1 < NG and j != 15:
                    a(f's_waitcnt lgkmcnt({6 + prev_extra})')
                    flagtest(j + 1)
                    nxt = reads(j+1, 0, f ^ 1)
                    if c.slowpath:
                        a(f's_cbranch_vccnz SLOW{j}')
                        c2 = step(j, s, f, [[r] for r in nxt], carry, prev_extra, True)
                        a.label(f'JOIN{j}')
                        slow.append((j, f, list(carry), nxt, prev_extra))
                        carry = c2
                    else:
                        a(f's_cbranch_vccz RDY{j}')
                        spin(f'W{j+1}', flagread(j+1), lambda: flagtest(j+1))
                        a.label(f'RDY{j}')
                        carry = step(j, s, f, [[r] for r in nxt], carry, prev_extra, True)
                    if j + 1 == 8: stamp(3)
                    if j + 1 == 24: stamp(6)
                    prev_extra = 0
                else:
                    ops = []
                    if j == NG - 1: ops = [[r] for r in preads(7, AF[f ^ 1])]
                    carry = step(j, s, f, ops, carry, prev_extra)
            f ^= 1
    stamp(7)
    a('s_waitcnt lgkmcnt(0)')
    if c.ctrace:
        a(f'v_writelane_b32 v1, s98, 31')
        a('s_memtime s[96:97]')
        a('s_waitcnt lgkmcnt(0)')
        a(f'v_writelane_b32 v1, s96, 32')
        a(f'v_writelane_b32 v1, s95, 33')
        a('s_mov_b32 s76, s40')
        a('s_mov_b32 s77, s41')
        a('s_mov_b32 s78, 0x10000000')
        a('s_mov_b32 s79, 0x00020000')
        a('s_lshl_b32 s75, s2, 2')
        a(f's_add_u32 s75, s75, s{S_W}')
        a('s_lshl_b32 s75, s75, 8')
        a(f's_add_u32 s75, s75, {132<<20}')
        a('v_lshlrev_b32 v3, 2, v2')
        a('buffer_store_dword v1, v3, s[76:79], s75 offen')
    tail_pre(a, c)
    pl = pstage(7, AF[f])
    pm = {t: [pl[i], pl[4+i]] for i, t in enumerate((1, 2, 3, 0))}
    tail(a, c, stamp, pm)
    if c.padto:
        a.label('PADL')
        a('s_memrealtime s[76:77]')
        a('s_waitcnt lgkmcnt(0)')
        a(f's_sub_u32 s76, s76, s{S_T0}')
        a(f's_cmp_lt_u32 s76, {c.padto}')
        a('s_cbranch_scc1 PADL')
    if c.stamps:
        n = 11
        a('s_waitcnt vmcnt(0) lgkmcnt(0)')
        stamp(n - 1)
        a('s_waitcnt lgkmcnt(0)')
        a(f's_cmp_lg_u32 s{S_WID}, 0')
        a('s_cbranch_scc1 K_END')
        a('s_mov_b32 s76, s40')
        a('s_mov_b32 s77, s41')
        a('s_mov_b32 s78, 0x10000000')
        a('s_mov_b32 s79, 0x00020000')
        a('s_lshl_b32 s75, s2, 7')
        a(f's_add_u32 s75, s75, {128<<20}')
        a('v_mov_b32 v3, 0')
        for i in range(n):
            a(f'v_mov_b32 v4, s{80+2*i}')
            a(f'v_mov_b32 v5, s{81+2*i}')
            a(f'buffer_store_dwordx2 v[4:5], v3, s[76:79], s75 offen offset:{8*i}')
            a('s_nop 1')
    a.label('K_END')
    a('s_endpgm')
    for (j, f, cr, nxt, pe) in slow:
        a.label(f'SLOW{j}')
        if c.ctrace: a(f's_bitset1_b32 s95, {j}')
        step(j, 3, f, [], cr, pe, True, dobar=False)
        spin(f'W{j+1}', flagread(j+1), lambda: flagtest(j+1))
        for l in nxt: a(l)
        if j <= NG - 3: a('s_barrier')
        a(f's_branch JOIN{j}')
    a.raw('.p2align 8')
    a.raw('.type SEQTAB,@object')
    a.label('SEQTAB')
    for i in range(64): a(f'.long {i}')
    a.raw('.size SEQTAB, 256')
    return a.text()

ACC_TAGT = VWB + 32

def step_nowait(a, step, j, s, f, ops, carry):
    n0 = len(a.lines)
    r = step(j, s, f, ops, carry, 0)
    assert a.lines[n0].strip() == 's_waitcnt lgkmcnt(0)'
    del a.lines[n0]
    return r

def softmax(a, c, stamp, rt_setup, PF):
    QF = VWB; S = VWB + 32
    stamp(4)
    a(f'v_mov_b32 v{V_T3}, {CB_TAG}')
    a(f'ds_read_b64 v[{VWB+56}:{VWB+57}], v{V_T3}')
    a('s_nop 9')
    cv = [f'v_cvt_pk_bf16_f32 v{QF+i}, v{ACC+2*i}, v{ACC+2*i+1}' for i in range(32)]
    for l in cv[:8]: a(l)
    cv = cv[8:]
    for s in range(8):
        a(f'{MF} {vr(S,16)}, {ar(AK+4*s,4)}, {vr(QF+4*s,4)}, ' + ('0' if s == 0 else vr(S,16)))
        for l in cv[:4]: a(l)
        cv = cv[4:]
    cc = (128 ** -0.5) * math.log2(math.e)
    cbits = struct.unpack('<I', struct.pack('<f', cc))[0]
    a('s_waitcnt lgkmcnt(0)')
    a(f'v_readfirstlane_b32 s{S_T0}, v{VWB+56}')
    a(f'v_readfirstlane_b32 s{S_T0+1}, v{VWB+57}')
    a(f's_mov_b32 s{S_TMP+4}, {hex(cbits)}')
    a(f's_lshl_b32 s{S_TMP}, s{S_BR}, 4')
    a(f's_add_u32 s{S_TMP}, s{S_TMP}, s{S_B}')
    a(f's_lshl_b32 s{S_TMP+1}, s{S_TMP}, 2')
    a(f's_add_u32 s{S_TMP+1}, s{S_TMP+1}, s{S_HG}')
    a(f's_lshl_b32 s{S_TMP+1}, s{S_TMP+1}, 4')
    a(f's_add_u32 s{S_TMP+1}, s{S_TMP+1}, s{S_J8}')
    a(f's_lshl_b32 s{S_TMP+1}, s{S_TMP+1}, 3')
    a(f's_add_u32 s{S_TMP+1}, s{S_TMP+1}, {WS_FLAG}')
    a(f's_lshl_b32 s{S_TMP}, s{S_TMP}, 5')
    a(f's_add_u32 s{S_TMP}, s{S_TMP}, s{S_HEAD}')
    a(f's_lshl_b32 s{S_TMP}, s{S_TMP}, 11')
    t1, t2 = ACC, ACC + 1
    a(f'v_max3_f32 v{t1}, v{S}, v{S+1}, v{S+2}')
    a(f'v_max3_f32 v{t2}, v{S+3}, v{S+4}, v{S+5}')
    a(f'v_max3_f32 v{t1}, v{t1}, v{S+6}, v{S+7}')
    a(f'v_max3_f32 v{t2}, v{t2}, v{S+8}, v{S+9}')
    a(f'v_max3_f32 v{t1}, v{t1}, v{S+10}, v{S+11}')
    a(f'v_max3_f32 v{t2}, v{t2}, v{S+12}, v{S+13}')
    a(f'v_max3_f32 v{t1}, v{t1}, v{S+14}, v{S+15}')
    a(f'v_max_f32 v{t1}, v{t1}, v{t2}')
    a(f'v_mov_b32 v{t2}, v{t1}')
    a('s_nop 1')
    a(f'v_permlane32_swap_b32 v{t1}, v{t2}')
    a('s_nop 1')
    a(f'v_max_f32 v{t1}, v{t1}, v{t2}')
    a(f'v_mul_f32 v{t1}, s{S_TMP+4}, v{t1}')
    for i in range(16):
        a(f'v_fma_f32 v{S+i}, v{S+i}, s{S_TMP+4}, -v{t1}')
    for i in range(16):
        a(f'v_exp_f32 v{S+i}, v{S+i}')
    a(f'v_add_f32 v{t1}, v{S}, v{S+1}')
    a(f'v_add_f32 v{t2}, v{S+2}, v{S+3}')
    for i in range(4, 16, 2):
        a(f'v_add_f32 v{t1}, v{t1}, v{S+i}')
        a(f'v_add_f32 v{t2}, v{t2}, v{S+i+1}')
    a(f'v_add_f32 v{t1}, v{t1}, v{t2}')
    a(f'v_mov_b32 v{t2}, v{t1}')
    a('s_nop 1')
    a(f'v_permlane32_swap_b32 v{t1}, v{t2}')
    a('s_nop 1')
    a(f'v_add_f32 v{t1}, v{t1}, v{t2}')
    a(f'v_rcp_f32 v{t1}, v{t1}')
    a('s_nop 0')
    for i in range(16):
        a(f'v_mul_f32 v{S+i}, v{S+i}, v{t1}')
    for i in range(8):
        a(f'v_cvt_pk_bf16_f32 v{PF+i}, v{S+2*i}, v{S+2*i+1}')
    for G in range(2):
        a(f'buffer_store_dwordx4 {vr(PF+4*G,4)}, v{V_L16}, s[{SRD_WS}:{SRD_WS+3}], s{S_TMP} offen offset:{1024*G} sc0 sc1')
    for l in rt_setup(2, ACC + 2): a(l)

def tail_pre(a, c):
    a(f's_mul_i32 s10, s{S_T0}, 0x9e3779b1')
    a(f's_xor_b32 s10, s10, s{S_T0+1}')
    a(f'v_and_b32 v0, 1, v{V_LANE}')
    a('v_cmp_eq_u32 vcc, 0, v0')
    a('v_mov_b32 v0, s10')
    a(f'v_mov_b32 v1, s{S_T0}')
    a(f'v_cndmask_b32 v{V_RA}, v0, v1, vcc')
    a(f's_lshl_b32 s{S_TMP}, s{S_BR}, 2')
    a(f's_add_u32 s{S_TMP}, s{S_TMP}, s{S_MT}')
    a(f's_lshl_b32 s{S_TMP}, s{S_TMP}, 3')
    a(f's_add_u32 s{S_TMP}, s{S_TMP}, s{S_NT}')
    a(f's_mul_i32 s{S_TMP}, s{S_TMP}, {4*3*4*4096}')
    a(f's_add_u32 s{S_TMP}, s{S_TMP}, s{S_LW}')
    a(f's_add_u32 s{S_TMP}, s{S_TMP}, {WS_X}')
    for t in (1, 2, 3):
        d = 21 + t
        a(f's_add_u32 s{d}, s{S_HG}, {t}')
        a(f's_and_b32 s{d}, s{d}, 3')
        a(f's_mul_i32 s{d}, s{d}, {3*16384}')
        a(f's_add_u32 s{d}, s{d}, s{S_TMP}')
        a(f's_add_u32 s{d}, s{d}, {(t-1)*16384}')
    a(f's_mul_i32 s{S_TMP+1}, s{S_HG}, {3*16384}')
    a(f's_add_u32 s{S_TMP+1}, s{S_TMP+1}, s{S_TMP}')
    a(f's_add_u32 s{S_TMP+2}, s{S_TMP+1}, 16384')
    a(f's_add_u32 s{S_TMP+5}, s{S_TMP+1}, 32768')
    a(f's_lshl_b32 s10, s{S_B}, 17')
    a(f's_lshl_b32 s11, s{S_BR}, 11')
    a('s_add_u32 s10, s10, s11')
    a(f's_lshl_b32 s11, s{S_NT}, 8')
    a('s_add_u32 s10, s10, s11')
    a(f's_lshl_b32 s11, s{S_HG}, 6')
    a('s_add_u32 s10, s10, s11')
    a(f'v_and_b32 v3, 31, v{V_LANE}')
    a(f'v_lshrrev_b32 v1, 5, v{V_LANE}')
    a('v_lshlrev_b32 v3, 12, v3')
    a('v_lshl_add_u32 v3, v1, 5, v3')
    a(f'v_min_u32 v0, 5, v{V_LANE}')
    a(f'v_and_b32 v1, 1, v{V_LANE}')
    a('v_lshrrev_b32 v0, 1, v0')
    a('v_lshlrev_b32 v0, 14, v0')
    a('v_lshl_add_u32 v0, v1, 4, v0')
    a(f'v_add_u32 v{V_RA+1}, {2048 + 62*16 + 12}, v0')

def tail(a, c, stamp, pm):
    TGV = V_RA
    O = ACC
    SB = ACC + 16
    R = VWB
    for t in (1, 2, 3):
        for q in range(3):
            a(f'v_mov_b32 v{SB+12*(t-1)+4*q+3}, v{TGV}')
    def send(t):
        L = []
        b = SB + 12*(t-1)
        for i in range(8):
            L.append(f'v_accvgpr_read_b32 v{O+2*i}, a{AO+16*t+2*i}')
            L.append(f'v_accvgpr_read_b32 v{O+2*i+1}, a{AO+16*t+2*i+1}')
            L.append(f'v_cvt_pk_bf16_f32 v{b+4*(i//3)+i%3}, v{O+2*i}, v{O+2*i+1}')
            if i in (2, 5, 7):
                q = i // 3
                L.append(f'buffer_store_dwordx4 {vr(b+4*q,4)}, v{V_L16}, s[{SRD_WS}:{SRD_WS+3}], s{21+t} offen offset:{1024*q} {c.xst}')
        return L
    ms = pm[1] + pm[2] + pm[3] + pm[0]
    for m in ms[:4]: a(m)
    work = send(1)
    for m in ms[4:]:
        a(m)
        for l in work[:7]: a(l)
        work = work[7:]
    for l in work: a(l)
    for l in send(2) + send(3): a(l)
    stamp(8)
    for r in range(16):
        a(f'v_accvgpr_read_b32 v{O+r}, a{AO+r}')
    a(f's_mov_b32 s{S_TMP+3}, {c.spin}')
    a('s_branch XP1')
    a.label('XPOLL')
    a(f's_sleep {c.xsleep}')
    a.label('XP1')
    a(f'buffer_load_dword v0, v{V_RA+1}, s[{SRD_WS}:{SRD_WS+3}], s{S_TMP+1} offen {c.xld}')
    a(f's_sub_u32 s{S_TMP+3}, s{S_TMP+3}, 1')
    a('s_cbranch_scc1 XGO')
    a('s_waitcnt vmcnt(0)')
    a(f'v_cmp_ne_u32 vcc, v0, v{TGV}')
    a('s_cbranch_vccnz XPOLL')
    a.label('XGO')
    for k, sreg in enumerate((S_TMP+1, S_TMP+2, S_TMP+5)):
        for q in range(3):
            a(f'buffer_load_dwordx4 {vr(R+12*k+4*q,4)}, v{V_L16}, s[{SRD_WS}:{SRD_WS+3}], s{sreg} offen offset:{1024*q} {c.xld}')
    XT = V_RT
    a('s_waitcnt vmcnt(0)')
    tg = [R + 4*n + 3 for n in range(9)]
    for n in range(9):
        a(f'v_xor_b32 v{tg[n]}, v{tg[n]}, v{TGV}')
    a(f'v_or3_b32 v0, v{tg[0]}, v{tg[1]}, v{tg[2]}')
    a(f'v_or3_b32 v1, v{tg[3]}, v{tg[4]}, v{tg[5]}')
    a(f'v_or3_b32 v0, v0, v{tg[6]}, v{tg[7]}')
    a(f'v_or3_b32 v0, v0, v1, v{tg[8]}')
    a('v_cmp_ne_u32 vcc, 0, v0')
    a('s_cbranch_vccz XOK')
    a(f's_sub_u32 s{S_TMP+3}, s{S_TMP+3}, 1')
    a('s_cbranch_scc0 XGO')
    a.label('XOK')
    stamp(9)
    a(f's_mov_b32 s{S_TMP+4}, 0xffff0000')
    for k in range(3):
        for i in range(8):
            d = R + 12*k + 4*(i//3) + i%3
            a(f'v_lshlrev_b32 v{XT+(2*i)%4}, 16, v{d}')
            a(f'v_and_b32 v{XT+(2*i+1)%4}, s{S_TMP+4}, v{d}')
            a(f'v_add_f32 v{O+2*i}, v{O+2*i}, v{XT+(2*i)%4}')
            a(f'v_add_f32 v{O+2*i+1}, v{O+2*i+1}, v{XT+(2*i+1)%4}')
    for i in range(8):
        a(f'v_cvt_pk_bf16_f32 v{R+i}, v{O+2*i}, v{O+2*i+1}')
    a(f'buffer_store_dwordx4 {vr(R,4)}, v3, s[{SRD_OUT}:{SRD_OUT+3}], s10 offen')
    a(f'buffer_store_dwordx4 {vr(R+4,4)}, v3, s[{SRD_OUT}:{SRD_OUT+3}], s10 offen offset:16')

def build(c, out):
    hdr = open('header.txt').read().splitlines()
    t = '\n'.join(hdr) + '\n'
    t += '; @launch grid=(256,1,1) block=(512,1,1) lds=163840\n'
    t += '.amdgcn_target "amdgcn-amd-amdhsa--gfx950"\n.text\n'
    t += f'.globl {NAME}_kernel\n'
    out_l = []
    for l in gen(c).split('\n'):
        if c.nodma and ' lds' in l and 'sc1' not in l: continue
        if c.noread and ('ds_read_b128' in l or 'ds_read_b64_tr' in l): continue
        if c.nomfma and 'v_mfma' in l: continue
        if c.noprog and f'ds_write_b32 v{V_PA}, v{V_T3}' in l: l = f'    ds_read_b32 v{V_T3}, v{V_PA}'
        if c.progop == 'append' and f'ds_write_b32 v{V_PA}, v{V_T3}' in l: l = f'    ds_append v{V_T3} offset:64'
        if c.progop == 'inc' and f'ds_write_b32 v{V_PA}, v{V_T3}' in l: l = f'    ds_add_rtn_u32 v{V_T3}, v{V_PA}, v{V_T3}'
        if c.progop == 'addtid' and f'ds_write_b32 v{V_PA}, v{V_T3}' in l: l = f'    ds_write_addtid_b32 v{V_T3} offset:64'
        if c.noflag and 's_cbranch_vccnz SLOW' in l: continue
        out_l.append(l)
    t += '\n'.join(out_l)
    t += kd(f'{NAME}_kernel', 256, 102, ACCUM_OFF)
    open(out, 'w').write(t)

if __name__ == '__main__':
    c = Cfg()
    out = sys.argv[1]
    for kv in sys.argv[2:]:
        k, v = kv.split('=', 1)
        old = getattr(c, k)
        if v == 'None': v = None
        elif isinstance(old, bool): v = v in ('1', 'True')
        elif isinstance(old, int): v = int(v)
        setattr(c, k, v)
    build(c, out)
```

```python
import sys, math, struct
from asmlib import *

NAME = 'concat_heads__mha_block_cached__gqa_block_cached__near_ridge'
MF = 'v_mfma_f32_32x32x16_bf16'

class Cfg:
    stamps = False; cyc = False; trace = False
    fx = ''; fw = ''; fk = ''; fv = ''; fo = ''
    xst = 'sc1'; xld = 'sc1'
    spin = 1 << 16
    lspin = 1 << 20
    cprio = 1
    early = 16
    psleep = 8
    pfirst = 21
    budget = 320
    pfv = -1
    pfo = -1
    pfo2 = -1
    xsleep = 0
    leak = -1
    vthr = 4
    pprog = 18
    slowpath = True
    nodma = False; noread = False; nomfma = False
    padto = 0
    lsleep = 1
    ctrace = False
    nofree = False
    noprog = False
    noflag = False
    lpace = 0
    fewflags = False
    progop = ''
    ex1 = True

S_XCD, S_MT, S_BR, S_HG, S_J8, S_W, S_B, S_NT, S_HEAD, S_WID = 3, 4, 5, 6, 7, 8, 9, 15, 12, 14
SRD_X, SRD_K, SRD_V, SRD_WQ, SRD_WO, SRD_WS, SRD_OUT, SRD_DBG = 44, 48, 52, 56, 60, 64, 68, 72
S_SA, S_SW, S_IDX, S_LW = 24, 25, 26, 27
S_2HD = 28; S_PD = 29
S_TMP = 30
S_T0 = 16
S_SA2, S_SW2 = 18, 19
S_CNT = 20
S_NB = 21
S_TB = 22
S_TAB = 36
S_NOW = 38
V_FL = 0
V_LANE = 2; V_T3 = 3
V_RA = 4; V_RT = 8; V_L16 = 12; V_SP = 13; V_PA = 14; V_CB = 15
ACC = 16; VWB = 80
ACCUM_OFF = 144
AF = [0, 20]; AP = 40; AO = 48
AK = AO
L_DX, L_DWQ, L_DV, L_DWO = 16, 20, 24, 28
L_POLLA, L_POLL, L_TAG, L_THR, L_WA, L_WV, L_FA, L_TMP, L_THR2 = 32, 34, 36, 38, 39, 40, 41, 42, 43
L_PFV, L_PFO, L_JUNK = 44, 45, 46

WS_FLAG = 2 << 20
WS_X = 4 << 20
WS_BYTES = 16 << 20
AUX = 0x20000
CB = 163840 - 2048
CB_FULL = CB + 1024; CB_PRDY = CB + 1040; CB_TAG = CB + 1056
OFFR = [0, 2, 1, 3]
NG = 32

def p1_sched(mt):
    L = [(0, mt, True)]
    for r in range(3):
        for q in range(4):
            L.append((r + 1, mt, True) if q == mt else (r, q, False))
    L += [(3, q, False) for q in range(4) if q != mt]
    return L
def p2_sched(mt):
    L = [(0, mt, True)]
    for q in range(4):
        L.append((1, mt, True) if q == mt else (0, q, False))
    L += [(1, q, False) for q in range(4) if q != mt]
    return L

def gen(c):
    a = Asm()
    def stamp(i):
        if c.leak == i: a('s_memrealtime s[80:81]')
        if c.stamps: a(f'{"s_memtime" if (c.cyc and i > 0) else "s_memrealtime"} s[{80+2*i}:{81+2*i}]')
    a.raw('.p2align 8')
    a.raw(f'.type {NAME}_kernel,@function')
    a.label(f'{NAME}_kernel')
    a('s_cmp_ge_u32 s2, 256')
    a('s_cbranch_scc1 K_END')
    stamp(0)
    a('s_load_dwordx16 s[16:31], s[0:1], 0')
    a('s_load_dwordx8 s[32:39], s[0:1], 64')
    a('s_load_dwordx2 s[40:41], s[0:1], 96')
    a('s_memrealtime s[42:43]')
    a(f's_and_b32 s{S_XCD}, s2, 7')
    a(f's_lshr_b32 s{S_MT}, s2, 3')
    a(f's_lshr_b32 s{S_BR}, s{S_XCD}, 2')
    a(f's_and_b32 s{S_HG}, s{S_XCD}, 3')
    a(f's_and_b32 s{S_J8}, s{S_MT}, 7')
    a(f's_lshr_b32 s{S_MT}, s{S_MT}, 3')
    a('v_lshrrev_b32 v1, 6, v0')
    a(f'v_and_b32 v{V_LANE}, 63, v0')
    a(f's_sub_u32 s{S_NT}, s{S_J8}, s{S_MT}')
    a(f'v_readfirstlane_b32 s{S_WID}, v1')
    a(f's_and_b32 s{S_NT}, s{S_NT}, 7')
    a(f's_lshl_b32 s{S_HEAD}, s{S_HG}, 3')
    a(f's_add_u32 s{S_HEAD}, s{S_HEAD}, s{S_J8}')
    a(f'v_lshlrev_b32 v{V_L16}, 4, v2')
    def srd_sel(d, pa, pb, nbytes):
        a(f's_cselect_b32 s{d}, s{pb}, s{pa}')
        a(f's_cselect_b32 s{d+1}, s{pb+1}, s{pa+1}')
        a(f's_mov_b32 s{d+2}, {hex(nbytes)}')
        a(f's_mov_b32 s{d+3}, 0x00020000')
    def srd(d, p, nbytes):
        a(f's_mov_b32 s{d}, s{p}')
        a(f's_mov_b32 s{d+1}, s{p+1}')
        a(f's_mov_b32 s{d+2}, {hex(nbytes)}')
        a(f's_mov_b32 s{d+3}, 0x00020000')
    a(f's_cmp_lt_u32 s{S_WID}, 4')
    a('s_cbranch_scc1 COMPUTE')

    a(f's_and_b32 s{S_W}, s{S_WID}, 3')
    a(f's_lshl_b32 s{S_B}, s{S_MT}, 2')
    a(f's_add_u32 s{S_B}, s{S_B}, s{S_W}')
    a('v_lshrrev_b32 v3, 3, v2')
    a('v_and_b32 v4, 7, v2')
    a('v_lshrrev_b32 v5, 4, v2')
    a(f's_lshl_b32 s10, s{S_B}, 16')
    for i in range(2):
        a(f'v_add_u32 v6, {4*i}, v5')
        a('v_xor_b32 v6, v6, v4')
        a(f'v_lshlrev_b32 v{8+i}, 4, v6')
    for i in range(4):
        a(f'v_add_u32 v7, {8*i}, v3')
        a(f'v_lshl_add_u32 v6, v7, 11, v{8+i%2}')
        a(f'v_add_u32 v6, s10, v6')
        a(f'v_subrev_u32 v{L_DX+i}, {1024*i}, v6')
    a('v_and_b32 v6, 15, v2')
    a('v_lshlrev_b32 v7, 2, v5')
    a('v_xor_b32 v6, v6, v7')
    a('v_lshlrev_b32 v10, 4, v6')
    a(f's_lshl_b32 s10, s{S_W}, 17')
    a(f's_lshl_b32 s13, s{S_HEAD}, 8')
    a('s_add_u32 s10, s10, s13')
    a('v_lshl_add_u32 v6, v5, 13, v10')
    a(f'v_add_u32 v{L_DWQ}, s10, v6')
    for i in range(1, 4):
        a(f'v_add_u32 v{L_DWQ+i}, {i*(4*8192-1024)}, v{L_DWQ}')
    a(f's_lshl_b32 s11, s{S_B}, 5')
    a(f's_lshl_b32 s13, s{S_HG}, 3')
    a('s_add_u32 s11, s11, s13')
    a('s_lshl_b32 s11, s11, 13')
    for i in range(4):
        a(f'v_add_u32 v7, {8*i}, v3')
        a(f'v_lshl_add_u32 v6, v7, 8, v{8+i%2}')
        a(f'v_add_u32 v6, s11, v6')
        a(f'v_subrev_u32 v{L_DV+i}, {1024*i}, v6')
    a('s_waitcnt lgkmcnt(0)')
    a(f's_cmp_eq_u32 s{S_BR}, 1')
    srd_sel(SRD_X, 16, 26, 1 << 20)
    srd_sel(SRD_WQ, 22, 32, 8 << 20)
    srd_sel(SRD_K, 18, 28, 4 << 20)
    srd_sel(SRD_V, 20, 30, 4 << 20)
    srd_sel(SRD_WO, 24, 34, 8 << 20)
    srd(SRD_WS, 40, WS_BYTES)
    srd(SRD_DBG, 38, 256)
    a(f's_lshl_b32 s{S_LW}, s{S_W}, 12')
    a(f's_lshl_b32 s{S_2HD}, s{S_J8}, 1')
    a(f's_mov_b32 s{S_PD}, 0')

    def late_setup():
        a(f's_lshl_b32 s10, s{S_W}, 15')
        a(f's_lshl_b32 s13, s{S_NT}, 8')
        a('s_add_u32 s10, s10, s13')
        a(f's_lshl_b32 s13, s{S_HG}, 21')
        a('s_add_u32 s10, s10, s13')
        a('v_lshl_add_u32 v6, v5, 11, v10')
        a(f'v_add_u32 v{L_DWO}, s10, v6')
        for i in range(1, 4):
            a(f'v_add_u32 v{L_DWO+i}, {i*(4*2048-1024)}, v{L_DWO}')
        a(f'v_and_b32 v6, 7, v2')
        a(f'v_lshlrev_b32 v{L_POLLA}, 3, v6')
        a(f's_lshl_b32 s{S_TMP}, s{S_BR}, 4')
        a(f's_add_u32 s{S_TMP}, s{S_TMP}, s{S_B}')
        a(f's_lshl_b32 s{S_TMP}, s{S_TMP}, 2')
        a(f's_add_u32 s{S_TMP}, s{S_TMP}, s{S_HG}')
        a(f's_lshl_b32 s{S_TMP+2}, s{S_TMP}, 7')
        a(f's_add_u32 s{S_TMP+2}, s{S_TMP+2}, {WS_FLAG}')
        a(f's_lshl_b32 s{S_TMP+4}, s{S_TMP}, 14')
        a(f's_mul_i32 s{S_TMP+5}, s{S_W}, 6144')
        a(f's_add_u32 s{S_TMP+5}, s{S_TMP+5}, {AUX}')
        a(f'v_lshlrev_b32 v{L_WA}, 2, v2')
        a(f's_lshl_b32 s10, s{S_B}, 5')
        a(f's_add_u32 s10, s10, s{S_HEAD}')
        a('s_lshl_b32 s10, s10, 13')
        a('v_lshlrev_b32 v6, 7, v2')
        a(f'v_add_u32 v{L_PFV}, s10, v6')
        a(f's_lshl_b32 s10, s{S_HG}, 21')
        a(f's_lshl_b32 s11, s{S_W}, 16')
        a('s_add_u32 s10, s10, s11')
        a(f's_lshl_b32 s11, s{S_NT}, 8')
        a('s_add_u32 s10, s10, s11')
        a('v_lshrrev_b32 v6, 1, v2')
        a('v_lshlrev_b32 v6, 11, v6')
        a('v_and_b32 v7, 1, v2')
        a('v_lshl_add_u32 v6, v7, 7, v6')
        a(f'v_add_u32 v{L_PFO}, s10, v6')

    a(f's_getpc_b64 s[{S_TAB}:{S_TAB+1}]')
    a.label('PCREF')
    a(f's_add_u32 s{S_TAB}, s{S_TAB}, SEQTAB-PCREF')
    a(f's_addc_u32 s{S_TAB+1}, s{S_TAB+1}, 0')
    a(f's_lshl_b32 s{S_TMP+3}, s{S_W}, 2')
    a(f's_add_u32 s{S_TMP+3}, s{S_TMP+3}, {CB_FULL}')
    a(f's_mov_b32 s{S_NB}, 0')
    for v in range(1, 4):
        a(f's_cmp_eq_u32 s{S_MT}, {v}')
        a(f's_cbranch_scc1 LOADER{v}')

    def loader(mt):
        tagn = f'{mt}'
        s1, s2 = p1_sched(mt), p2_sched(mt)
        nops = [0]; endpos = {}
        def tile(kind, slot):
            if kind in ('x', 'v', 'k'):
                base = slot*16384 if kind != 'k' else AUX
                v, s, f = {'x': (L_DX, SRD_X, c.fx), 'v': (L_DV, SRD_V, c.fv), 'k': (L_DV, SRD_K, c.fk)}[kind]
                so = S_SA
            else:
                base = 65536 + slot*16384
                v, s, f = (L_DWQ, SRD_WQ, c.fw) if kind == 'wq' else (L_DWO, SRD_WO, c.fo)
                so = S_SW
            a(f's_add_u32 m0, s{S_LW}, {base}')
            a('s_nop 0')
            for i in range(4):
                a(f'buffer_load_dwordx4 v{v+i}, s[{s}:{s+3}], s{so} offen offset:{1024*i} {f} lds')
                nops[0] += 1
        def wflag(off, val):
            a(f's_add_u32 m0, s{S_TMP+3}, {off}')
            a(f'v_mov_b32 v{L_WV}, {4*val}')
            a('s_mov_b64 exec, 1')
            a(f'global_load_lds_dword v{L_WV}, s[{S_TAB}:{S_TAB+1}]')
            a('s_mov_b64 exec, -1')
        def pload(u, count):
            r, i, own = s2[u]
            a(f's_add_u32 s10, s{S_NT}, {4*r+i}')
            a(f's_and_b32 s10, s10, 7')
            a(f's_lshl_b32 s10, s10, 11')
            a(f's_add_u32 m0, s{S_TMP+5}, {((u-1)%3)*2048}')
            a(f's_add_u32 s10, s10, s{S_TMP+4}')
            for G in range(2):
                a(f'buffer_load_dwordx4 v{V_L16}, s[{SRD_WS}:{SRD_WS+3}], s10 offen offset:{1024*G} sc1 lds')
                if count: nops[0] += 1
        def poll():
            a(f'buffer_load_dwordx2 v[{L_POLL}:{L_POLL+1}], v{L_POLLA}, s[{SRD_WS}:{SRD_WS+3}], s{S_TMP+2} offen sc1')
        def bar():
            a('s_barrier')
            a(f's_memtime s[{S_TB}:{S_TB+1}]')
            a(f's_add_u32 s{S_NB}, s{S_NB}, 1')
        def gate(n):
            nm = f'{tagn}_{n}'
            if n < 3: return
            a.label(f'GA{nm}')
            if n >= 4:
                a(f's_cmp_ge_u32 s{S_NB}, {n-3}')
                a(f's_cbranch_scc1 GB{nm}')
                bar()
                a.label(f'GB{nm}')
            a(f's_cmp_ge_u32 s{S_NB}, {n-2}')
            a(f's_cbranch_scc1 GO{nm}')
            a.label(f'GP{nm}')
            a(f's_getreg_b32 s10, hwreg(HW_REG_IB_STS)')
            a(f's_memtime s[{S_NOW}:{S_NOW+1}]')
            a('s_and_b32 s10, s10, 0xc0000f')
            a(f's_cmp_le_u32 s10, {c.vthr}')
            a(f's_cbranch_scc1 GO{nm}')
            a('s_waitcnt lgkmcnt(0)')
            a(f's_sub_u32 s10, s{S_NOW}, s{S_TB}')
            nb = n - 3
            bud = c.budget + (1100 if nb == 16 else 0) + (256 if (nb == 18 or (nb >= 22 and nb % 2 == 0)) else 0)
            a(f's_cmp_lt_u32 s10, {bud if n > 3 else 1 << 20}')
            a(f's_cbranch_scc1 GP{nm}')
            bar()
            a.label(f'GO{nm}')
        def tr(lane, reg):
            if c.trace:
                a('s_memrealtime s[76:77]')
                a('s_waitcnt lgkmcnt(0)')
                a(f'v_writelane_b32 v{reg}, s76, {lane}')
        PA = list(range(c.pfirst, 24))
        a(f's_memtime s[{S_TB}:{S_TB+1}]')
        for g in range(NG):
            slot = g % 4
            gate(g)
            tr(g, 50)
            if g in PA:
                if g > PA[0]:
                    a(f's_cmp_lg_u32 s{S_PD}, 0')
                    a(f's_cbranch_scc1 NP{tagn}_{g}')
                poll()
                if g > PA[0]: a.label(f'NP{tagn}_{g}')
            if g == 6:
                a(f'buffer_load_dwordx2 v[{L_TAG}:{L_TAG+1}], off, s[{SRD_DBG}:{SRD_DBG+3}], 0 sc1')
            start = nops[0]
            if g < 16:
                r, i, own = s1[g]
                a(f's_add_u32 s{S_IDX}, s{S_2HD}, {4*i+OFFR[r]}')
                a(f's_and_b32 s{S_IDX}, s{S_IDX}, 15')
                a(f's_lshl_b32 s{S_SA}, s{S_IDX}, 7')
                a(f's_lshl_b32 s{S_SW}, s{S_IDX}, 19')
                tile('x', slot); tile('wq', slot)
                if g == 0:
                    late_setup()
                    a('s_barrier')
                wflag(0, g + 1); nops[0] += 1
                if own and r in (1, 3):
                    a(f's_lshl_b32 s{S_SA}, s{S_J8}, 13')
                    if r == 3: a(f's_add_u32 s{S_SA}, s{S_SA}, 128')
                    tile('k', 0)
            else:
                u, half = divmod(g - 16, 2)
                r, i, own = s2[u]
                a(f's_add_u32 s{S_IDX}, s{S_NT}, {4*r+i}')
                a(f's_and_b32 s{S_IDX}, s{S_IDX}, 7')
                a(f's_lshl_b32 s{S_SA}, s{S_IDX}, 13')
                a(f's_lshl_b32 s{S_SW}, s{S_IDX}, 18')
                if half:
                    a(f's_add_u32 s{S_SA}, s{S_SA}, 128')
                    a(f's_add_u32 s{S_SW}, s{S_SW}, {64*2048}')
                if g in (25, 27, 29, 31): pload((g - 25) // 2 + 4, True)
                if half and own and r == 1: tile('wo', slot); tile('v', slot)
                else: tile('v', slot); tile('wo', slot)
                wflag(0, g + 1); nops[0] += 1
            if c.pfv >= 0 and g == c.pfv + mt:
                a(f'buffer_load_dword v{L_JUNK}, v{L_PFV}, s[{SRD_V}:{SRD_V+3}], 0 offen'); nops[0] += 1
            if c.pfo >= 0 and g == c.pfo + mt:
                a(f's_lshl_b32 s10, s{S_J8}, 18')
                a(f'buffer_load_dword v{L_JUNK+1}, v{L_PFO}, s[{SRD_WO}:{SRD_WO+3}], s10 offen'); nops[0] += 1
            if c.pfo2 >= 0 and g == c.pfo2 + mt:
                a(f's_add_u32 s10, s{S_J8}, 4')
                a('s_and_b32 s10, s10, 7')
                a(f's_lshl_b32 s10, s10, 18')
                a(f'buffer_load_dword v{L_JUNK+2}, v{L_PFO}, s[{SRD_WO}:{SRD_WO+3}], s10 offen'); nops[0] += 1
            n_this = nops[0] - start
            tr(32 + g, 50)
            if g == 6:
                a(f's_waitcnt vmcnt({n_this})')
                a(f's_mov_b32 s{S_CNT}, {c.spin}')
                a.label(f'TG{tagn}')
                a(f'v_cmp_eq_u64 vcc, 0, v[{L_TAG}:{L_TAG+1}]')
                a(f's_cbranch_vccz TGOK{tagn}')
                a(f's_sub_u32 s{S_CNT}, s{S_CNT}, 1')
                a(f's_cbranch_scc1 TGOK{tagn}')
                a('s_sleep 1')
                a(f'buffer_load_dwordx2 v[{L_TAG}:{L_TAG+1}], off, s[{SRD_DBG}:{SRD_DBG+3}], 0 sc1')
                a('s_waitcnt vmcnt(0)')
                a(f's_branch TG{tagn}')
                a.label(f'TGOK{tagn}')
                a(f's_mov_b32 m0, {CB_TAG}')
                a('s_mov_b64 exec, 3')
                a(f'buffer_load_dword v{L_WA}, s[{SRD_DBG}:{SRD_DBG+3}], 0 offen sc1 lds')
                a('s_mov_b64 exec, -1')
            if g in PA:
                last = g == PA[-1]
                a(f's_cmp_lg_u32 s{S_PD}, 0')
                a(f's_cbranch_scc1 PD{tagn}_{g}')
                a(f's_waitcnt vmcnt({n_this})')
                if last:
                    a(f's_mov_b32 s{S_CNT}, {c.spin}')
                    a.label(f'PC{tagn}')
                a(f'v_cmp_ne_u64 vcc, v[{L_POLL}:{L_POLL+1}], v[{L_TAG}:{L_TAG+1}]')
                if not last:
                    a(f's_cbranch_vccnz PD{tagn}_{g}')
                else:
                    a(f's_cbranch_vccz PG{tagn}')
                    a(f's_sub_u32 s{S_CNT}, s{S_CNT}, 1')
                    a(f's_cbranch_scc1 PG{tagn}')
                    a(f's_cmp_ge_u32 s{S_NB}, 21')
                    a(f's_cbranch_scc1 PB{tagn}')
                    bar()
                    a.label(f'PB{tagn}')
                    poll()
                    a('s_waitcnt vmcnt(0)')
                    a(f's_branch PC{tagn}')
                    a.label(f'PG{tagn}')
                for u in (1, 2, 3): pload(u, False)
                wflag(CB_PRDY - CB_FULL, 1)
                a(f's_mov_b32 s{S_PD}, 1')
                tr(60, 51)
                a.label(f'PD{tagn}_{g}')
        a('s_waitcnt vmcnt(0)')
        if c.trace:
            a(f'v_writelane_b32 v51, s42, 63')
            a('s_mov_b32 s76, s40')
            a('s_mov_b32 s77, s41')
            a('s_mov_b32 s78, 0x10000000')
            a('s_mov_b32 s79, 0x00020000')
            a('s_lshl_b32 s75, s2, 2')
            a(f's_add_u32 s75, s75, s{S_W}')
            a('s_lshl_b32 s75, s75, 9')
            a(f's_add_u32 s75, s75, {(130<<20)}')
            a('v_lshlrev_b32 v3, 2, v2')
            a('buffer_store_dword v50, v3, s[76:79], s75 offen')
            a('buffer_store_dword v51, v3, s[76:79], s75 offen offset:256')
        a('s_endpgm')
    for v in range(4):
        if v: a.label(f'LOADER{v}')
        loader(v)

    a.label('COMPUTE')
    if c.cprio: a(f's_setprio {c.cprio}')
    a(f's_mov_b32 s{S_W}, s{S_WID}')
    a(f's_lshl_b32 s{S_B}, s{S_MT}, 2')
    a(f's_add_u32 s{S_B}, s{S_B}, s{S_W}')
    T = ACC
    a(f's_lshl_b32 s13, s{S_W}, 8')
    a(f's_add_u32 s13, s13, {CB}')
    a(f'v_lshlrev_b32 v{T}, 2, v2')
    a(f'v_add_u32 v{V_PA}, s13, v{T}')
    a(f'v_mov_b32 v{T+1}, 0')
    a(f'ds_write_b32 v{V_PA}, v{T+1}')
    a(f'v_add_u32 v{T}, {CB_FULL}, v{T}')
    a(f'ds_write_b32 v{T}, v{T+1}')
    a(f'v_and_b32 v{V_CB}, 3, v2')
    a(f'v_lshlrev_b32 v{V_CB}, 2, v{V_CB}')
    a(f'v_add_u32 v{V_CB}, {CB_FULL}, v{V_CB}')
    a('s_waitcnt lgkmcnt(0)')
    a('s_barrier')
    a('v_and_b32 v3, 31, v2')
    a('v_lshrrev_b32 v1, 5, v2')
    a(f's_lshl_b32 s{S_LW}, s{S_W}, 12')
    a(f'v_bfe_u32 v{T}, v3, 1, 3')
    a(f'v_xor_b32 v{T}, v{T}, v1')
    for s in range(4):
        a(f'v_xor_b32 v{T+1}, {2*s}, v{T}')
        a(f'v_lshlrev_b32 v{T+1}, 4, v{T+1}')
        a(f'v_lshl_add_u32 v{T+1}, v3, 7, v{T+1}')
        a(f'v_add_u32 v{V_RA+s}, s{S_LW}, v{T+1}')
    def rt_setup(phase, T):
        L = []
        L.append(f'v_bfe_u32 v{T}, v2, 2, 2')
        L.append(f'v_bfe_u32 v{T+1}, v2, 4, 1')
        L.append(f'v_bfe_u32 v{T+2}, v2, 0, 1')
        L.append(f'v_bfe_u32 v{T+3}, v2, 1, 1')
        L.append(f'v_lshrrev_b32 v{T+4}, 5, v2')
        L.append(f'v_lshl_add_u32 v{T+4}, v{T+4}, 3, v{T}')
        L.append(f'v_lshlrev_b32 v{T+4}, 8, v{T+4}')
        L.append(f'v_add_u32 v{T+4}, 0x10000, v{T+4}')
        hi, lo = (T+1, T+2) if phase == 1 else (T+2, T+1)
        L.append(f'v_lshl_add_u32 v{T+4}, v{hi}, 5, v{T+4}')
        L.append(f'v_lshl_add_u32 v{T+4}, v{lo}, 4, v{T+4}')
        L.append(f'v_lshl_add_u32 v{T+4}, v{T+3}, 3, v{T+4}')
        for t in range(4):
            if phase == 1:
                L.append(f'v_xor_b32 v{T+5}, {t}, v{T}')
            else:
                L.append(f's_add_u32 s10, s{S_HG}, {t}')
                L.append('s_and_b32 s10, s10, 3')
                L.append(f'v_xor_b32 v{T+5}, s10, v{T}')
            L.append(f'v_lshl_add_u32 v{V_RT+t}, v{T+5}, 6, v{T+4}')
        return L
    for l in rt_setup(1, T): a(l)
    srd(SRD_WS, 40, WS_BYTES)
    srd(SRD_OUT, 36, 2 << 20)
    srd(SRD_DBG, 38, 256)
    a(f's_mul_i32 s10, s{S_W}, 6144')
    a(f's_add_u32 s10, s10, {AUX}')
    a(f'v_add_u32 v{V_SP}, s10, v{V_L16}')
    a(f's_or_b32 s13, s2, s{S_W}')
    a('s_cmp_lg_u32 s13, 0')
    a('s_cbranch_scc1 NOTAG')
    a(f'v_mov_b32 v{T}, s42')
    a(f'v_mov_b32 v{T+1}, s43')
    a(f'buffer_store_dwordx2 v[{T}:{T+1}], off, s[{SRD_DBG}:{SRD_DBG+3}], 0 sc0 sc1')
    a.label('NOTAG')
    stamp(1)

    def reads(j, s, f):
        slot = j % 4
        L = [f'ds_read_b128 {ar(AF[f]+16,4)}, v{V_RA+s} offset:{slot*16384}']
        for t in range(4):
            for u in range(2):
                L.append(f'ds_read_b64_tr_b16 {ar(AF[f]+4*t+2*u,2)}, v{V_RT+t} offset:{slot*16384+s*4096+u*1024}')
        return L
    def mfma(j, s, f, t):
        first = (j == 0 and s == 0) or (j >= 16 and j % 2 == 0 and s == 0)
        cc = '0' if first else vr(ACC+16*t, 16)
        wt, act = ar(AF[f]+4*t, 4), ar(AF[f]+16, 4)
        if j < 16: return f'{MF} {vr(ACC+16*t,16)}, {wt}, {act}, {cc}'
        return f'{MF} {vr(ACC+16*t,16)}, {act}, {wt}, {cc}'
    def cvts(u, t):
        d = VWB + 32 * (u % 2) + 8 * t
        return [f'v_cvt_pk_bf16_f32 v{d+i}, v{ACC+16*t+2*i}, v{ACC+16*t+2*i+1}' for i in range(8)]
    PF = VWB + 48
    def pstage(u, pbase=None):
        L = []
        for G in range(2):
            for t in (1, 2, 3, 0):
                o = ar(AO+16*t, 16)
                cc = '0' if (u == 0 and G == 0) else o
                p = vr(PF+4*G, 4) if u == 0 else (ar(AP+4*G, 4) if pbase is None else ar(pbase+4*G, 4))
                L.append(f'{MF} {o}, {vr(VWB+32*(u%2)+8*t+4*G,4)}, {p}, {cc}')
        return L
    def preads(u, dst=AP):
        return [f'ds_read_b128 {ar(dst+4*G,4)}, v{V_SP} offset:{((u-1)%3)*2048+1024*G}' for G in range(2)]
    def flagread(g):
        return f'ds_read_b32 v{V_FL}, v{V_CB}'
    def flagtest(g):
        a(f'v_cmp_ge_u32 vcc, {g}, v{V_FL}')
    def spin(name, rd, test):
        a(f's_mov_b32 s{S_CNT}, {c.lspin}')
        a.label(name)
        a(rd)
        a(f's_sub_u32 s{S_CNT}, s{S_CNT}, 1')
        a('s_cbranch_scc1 K_END')
        a('s_waitcnt lgkmcnt(0)')
        test()
        a(f's_cbranch_vccnz {name}')

    def step(j, s, f, lds_ops, carry, old_extra, skip_first=False, dobar=True):
        head_end = j >= 16 and j % 2 == 1 and s == 3
        u = (j - 16) // 2
        gaps = [[], [], [], []]
        per = 3 if len(lds_ops) <= 9 else 4
        for i, r in enumerate(lds_ops):
            gaps[min(3, i // per)].append(r)
        carry = list(carry)
        cv = []
        if head_end:
            for t in range(4): cv += cvts(u, t)
        ncv = 4 if u >= 2 else 8
        newn = 0
        for t in range(4):
            remain_old = (6, 4, 2, 0)[t] + (old_extra if t < 3 else 0)
            if not (t == 0 and skip_first):
                a(f's_waitcnt lgkmcnt({remain_old + newn})')
            a(mfma(j, s, f, t))
            for r in gaps[t]:
                for l in r: a(l)
                if r[-1].startswith('ds_'): newn += 1
            if carry:
                for l in carry.pop(0): a(l)
            if head_end and t >= 2:
                for l in cv[:ncv]: a(l)
                cv = cv[ncv:]
        if s == 3 and dobar and j <= NG - 3: a('s_barrier')
        if j == 18 and s == 1:
            for m in pstage(0): a(m)
        nc = []
        if head_end:
            if u >= 2:
                for i, m in enumerate(pstage(u - 1)):
                    a(m)
                    for l in cv[:4]: a(l)
                    cv = cv[4:]
                assert not cv
            else:
                nc = [cv[:8], cv[8:]]
        return nc

    slow = []
    if c.progop: a(f's_lshl_b32 m0, s{S_W}, 8')
    if c.ctrace: a('s_mov_b32 s95, 0')
    spin('W0', flagread(0), lambda: flagtest(0))
    stamp(2)
    for l in reads(0, 0, 0): a(l)
    f = 0
    carry = []
    prev_extra = 0
    for j in range(NG):
        if j == 16:
            softmax(a, c, stamp, rt_setup, PF)
            spin('W16', flagread(16), lambda: flagtest(16))
            stamp(5)
            for l in reads(16, 0, f): a(l)
            prev_extra = 0
        u = (j - 16) // 2
        if c.ctrace:
            if j > 0: a(f'v_writelane_b32 v1, s{96+2*((j-1)%2)}, {j-1}')
            a(f's_memtime s[{96+2*(j%2)}:{97+2*(j%2)}]')
        for s in range(4):
            if s < 3:
                ops = [[r] for r in reads(j, s+1, f ^ 1)]
                extra = []
                if j in (5, 13) and s < 2:
                    hf = 0 if j == 5 else 1
                    for ss in (2*s, 2*s+1):
                        extra.append([f'v_add_u32 v{V_T3}, {AUX}, v{V_RA+ss}', f'ds_read_b128 {ar(AK+16*hf+4*ss,4)}, v{V_T3}'])
                if j >= 21 and j % 2 == 1 and s == 1:
                    if j == 21:
                        spin('WP', f'ds_read_b32 v{V_FL}, v{V_CB} offset:{CB_PRDY-CB_FULL}', lambda: a(f'v_cmp_eq_u32 vcc, 0, v{V_FL}'))
                    extra += [[r] for r in preads(u - 1)]
                if s == 2:
                    if j + 1 < NG and j != 15:
                        ops = [[flagread(j + 1)]] + ops
                    if j == 16:
                        extra.append(['s_waitcnt vmcnt(0)', f'v_mov_b32 v{ACC_TAGT}, s{S_T0}', f'v_mov_b32 v{ACC_TAGT+1}, s{S_T0+1}',
                                      f'buffer_store_dwordx2 v[{ACC_TAGT}:{ACC_TAGT+1}], off, s[{SRD_WS}:{SRD_WS+3}], s{S_TMP+1} sc0 sc1', 's_nop 0'])
                n_lds_extra = sum(1 for e in extra if e[-1].startswith('ds_'))
                ops2 = ops + extra
                carry = step(j, s, f, ops2, carry, prev_extra)
                prev_extra = n_lds_extra
            else:
                if j + 1 < NG and j != 15:
                    a(f's_waitcnt lgkmcnt({6 + prev_extra})')
                    flagtest(j + 1)
                    nxt = reads(j+1, 0, f ^ 1)
                    if c.slowpath:
                        a(f's_cbranch_vccnz SLOW{j}')
                        c2 = step(j, s, f, [[r] for r in nxt], carry, prev_extra, True)
                        a.label(f'JOIN{j}')
                        slow.append((j, f, list(carry), nxt, prev_extra))
                        carry = c2
                    else:
                        a(f's_cbranch_vccz RDY{j}')
                        spin(f'W{j+1}', flagread(j+1), lambda: flagtest(j+1))
                        a.label(f'RDY{j}')
                        carry = step(j, s, f, [[r] for r in nxt], carry, prev_extra, True)
                    if j + 1 == 8: stamp(3)
                    if j + 1 == 24: stamp(6)
                    prev_extra = 0
                else:
                    ops = []
                    if j == NG - 1: ops = [[r] for r in preads(7, AF[f ^ 1])]
                    carry = step(j, s, f, ops, carry, prev_extra)
            f ^= 1
    stamp(7)
    a('s_waitcnt lgkmcnt(0)')
    if c.ctrace:
        a(f'v_writelane_b32 v1, s98, 31')
        a('s_memtime s[96:97]')
        a('s_waitcnt lgkmcnt(0)')
        a(f'v_writelane_b32 v1, s96, 32')
        a(f'v_writelane_b32 v1, s95, 33')
        a('s_mov_b32 s76, s40')
        a('s_mov_b32 s77, s41')
        a('s_mov_b32 s78, 0x10000000')
        a('s_mov_b32 s79, 0x00020000')
        a('s_lshl_b32 s75, s2, 2')
        a(f's_add_u32 s75, s75, s{S_W}')
        a('s_lshl_b32 s75, s75, 8')
        a(f's_add_u32 s75, s75, {132<<20}')
        a('v_lshlrev_b32 v3, 2, v2')
        a('buffer_store_dword v1, v3, s[76:79], s75 offen')
    tail_pre(a, c)
    pl = pstage(7, AF[f])
    pm = {t: [pl[i], pl[4+i]] for i, t in enumerate((1, 2, 3, 0))}
    tail(a, c, stamp, pm)
    if c.leak >= 0:
        a.label('LEAKL')
        a('s_memrealtime s[76:77]')
        a('s_waitcnt lgkmcnt(0)')
        a('s_sub_u32 s76, s76, s80')
        a('s_cmp_lt_u32 s76, 3000')
        a('s_cbranch_scc1 LEAKL')
    if c.padto:
        a.label('PADL')
        a('s_memrealtime s[76:77]')
        a('s_waitcnt lgkmcnt(0)')
        a(f's_sub_u32 s76, s76, s{S_T0}')
        a(f's_cmp_lt_u32 s76, {c.padto}')
        a('s_cbranch_scc1 PADL')
    if c.stamps:
        n = 11
        a('s_waitcnt vmcnt(0) lgkmcnt(0)')
        stamp(n - 1)
        a('s_waitcnt lgkmcnt(0)')
        a(f's_cmp_lg_u32 s{S_WID}, 0')
        a('s_cbranch_scc1 K_END')
        a('s_mov_b32 s76, s40')
        a('s_mov_b32 s77, s41')
        a('s_mov_b32 s78, 0x10000000')
        a('s_mov_b32 s79, 0x00020000')
        a('s_lshl_b32 s75, s2, 7')
        a(f's_add_u32 s75, s75, {128<<20}')
        a('v_mov_b32 v3, 0')
        for i in range(n):
            a(f'v_mov_b32 v4, s{80+2*i}')
            a(f'v_mov_b32 v5, s{81+2*i}')
            a(f'buffer_store_dwordx2 v[4:5], v3, s[76:79], s75 offen offset:{8*i}')
            a('s_nop 1')
    a.label('K_END')
    a('s_endpgm')
    for (j, f, cr, nxt, pe) in slow:
        a.label(f'SLOW{j}')
        if c.ctrace: a(f's_bitset1_b32 s95, {j}')
        step(j, 3, f, [], cr, pe, True, dobar=False)
        spin(f'W{j+1}', flagread(j+1), lambda: flagtest(j+1))
        for l in nxt: a(l)
        if j <= NG - 3: a('s_barrier')
        a(f's_branch JOIN{j}')
    a.raw('.p2align 8')
    a.raw('.type SEQTAB,@object')
    a.label('SEQTAB')
    for i in range(64): a(f'.long {i}')
    a.raw('.size SEQTAB, 256')
    return a.text()

ACC_TAGT = VWB + 32

def step_nowait(a, step, j, s, f, ops, carry):
    n0 = len(a.lines)
    r = step(j, s, f, ops, carry, 0)
    assert a.lines[n0].strip() == 's_waitcnt lgkmcnt(0)'
    del a.lines[n0]
    return r

def softmax(a, c, stamp, rt_setup, PF):
    QF = VWB; S = VWB + 32
    stamp(4)
    a(f'v_mov_b32 v{V_T3}, {CB_TAG}')
    a(f'ds_read_b64 v[{VWB+56}:{VWB+57}], v{V_T3}')
    a('s_nop 9')
    cv = [f'v_cvt_pk_bf16_f32 v{QF+i}, v{ACC+2*i}, v{ACC+2*i+1}' for i in range(32)]
    for l in cv[:8]: a(l)
    cv = cv[8:]
    for s in range(8):
        a(f'{MF} {vr(S,16)}, {ar(AK+4*s,4)}, {vr(QF+4*s,4)}, ' + ('0' if s == 0 else vr(S,16)))
        for l in cv[:4]: a(l)
        cv = cv[4:]
    cc = (128 ** -0.5) * math.log2(math.e)
    cbits = struct.unpack('<I', struct.pack('<f', cc))[0]
    a('s_waitcnt lgkmcnt(0)')
    a(f'v_readfirstlane_b32 s{S_T0}, v{VWB+56}')
    a(f'v_readfirstlane_b32 s{S_T0+1}, v{VWB+57}')
    a(f's_mov_b32 s{S_TMP+4}, {hex(cbits)}')
    a(f's_lshl_b32 s{S_TMP}, s{S_BR}, 4')
    a(f's_add_u32 s{S_TMP}, s{S_TMP}, s{S_B}')
    a(f's_lshl_b32 s{S_TMP+1}, s{S_TMP}, 2')
    a(f's_add_u32 s{S_TMP+1}, s{S_TMP+1}, s{S_HG}')
    a(f's_lshl_b32 s{S_TMP+1}, s{S_TMP+1}, 4')
    a(f's_add_u32 s{S_TMP+1}, s{S_TMP+1}, s{S_J8}')
    a(f's_lshl_b32 s{S_TMP+1}, s{S_TMP+1}, 3')
    a(f's_add_u32 s{S_TMP+1}, s{S_TMP+1}, {WS_FLAG}')
    a(f's_lshl_b32 s{S_TMP}, s{S_TMP}, 5')
    a(f's_add_u32 s{S_TMP}, s{S_TMP}, s{S_HEAD}')
    a(f's_lshl_b32 s{S_TMP}, s{S_TMP}, 11')
    t1, t2 = ACC, ACC + 1
    a(f'v_max3_f32 v{t1}, v{S}, v{S+1}, v{S+2}')
    a(f'v_max3_f32 v{t2}, v{S+3}, v{S+4}, v{S+5}')
    a(f'v_max3_f32 v{t1}, v{t1}, v{S+6}, v{S+7}')
    a(f'v_max3_f32 v{t2}, v{t2}, v{S+8}, v{S+9}')
    a(f'v_max3_f32 v{t1}, v{t1}, v{S+10}, v{S+11}')
    a(f'v_max3_f32 v{t2}, v{t2}, v{S+12}, v{S+13}')
    a(f'v_max3_f32 v{t1}, v{t1}, v{S+14}, v{S+15}')
    a(f'v_max_f32 v{t1}, v{t1}, v{t2}')
    a(f'v_mov_b32 v{t2}, v{t1}')
    a('s_nop 1')
    a(f'v_permlane32_swap_b32 v{t1}, v{t2}')
    a('s_nop 1')
    a(f'v_max_f32 v{t1}, v{t1}, v{t2}')
    a(f'v_mul_f32 v{t1}, s{S_TMP+4}, v{t1}')
    for i in range(16):
        a(f'v_fma_f32 v{S+i}, v{S+i}, s{S_TMP+4}, -v{t1}')
    for i in range(16):
        a(f'v_exp_f32 v{S+i}, v{S+i}')
    a(f'v_add_f32 v{t1}, v{S}, v{S+1}')
    a(f'v_add_f32 v{t2}, v{S+2}, v{S+3}')
    for i in range(4, 16, 2):
        a(f'v_add_f32 v{t1}, v{t1}, v{S+i}')
        a(f'v_add_f32 v{t2}, v{t2}, v{S+i+1}')
    a(f'v_add_f32 v{t1}, v{t1}, v{t2}')
    a(f'v_mov_b32 v{t2}, v{t1}')
    a('s_nop 1')
    a(f'v_permlane32_swap_b32 v{t1}, v{t2}')
    a('s_nop 1')
    a(f'v_add_f32 v{t1}, v{t1}, v{t2}')
    a(f'v_rcp_f32 v{t1}, v{t1}')
    a('s_nop 0')
    for i in range(16):
        a(f'v_mul_f32 v{S+i}, v{S+i}, v{t1}')
    for i in range(8):
        a(f'v_cvt_pk_bf16_f32 v{PF+i}, v{S+2*i}, v{S+2*i+1}')
    for G in range(2):
        a(f'buffer_store_dwordx4 {vr(PF+4*G,4)}, v{V_L16}, s[{SRD_WS}:{SRD_WS+3}], s{S_TMP} offen offset:{1024*G} sc0 sc1')
    for l in rt_setup(2, ACC + 2): a(l)

def tail_pre(a, c):
    a(f's_mul_i32 s10, s{S_T0}, 0x9e3779b1')
    a(f's_xor_b32 s10, s10, s{S_T0+1}')
    a(f'v_and_b32 v0, 1, v{V_LANE}')
    a('v_cmp_eq_u32 vcc, 0, v0')
    a('v_mov_b32 v0, s10')
    a(f'v_mov_b32 v1, s{S_T0}')
    a(f'v_cndmask_b32 v{V_RA}, v0, v1, vcc')
    a(f's_lshl_b32 s{S_TMP}, s{S_BR}, 2')
    a(f's_add_u32 s{S_TMP}, s{S_TMP}, s{S_MT}')
    a(f's_lshl_b32 s{S_TMP}, s{S_TMP}, 3')
    a(f's_add_u32 s{S_TMP}, s{S_TMP}, s{S_NT}')
    a(f's_mul_i32 s{S_TMP}, s{S_TMP}, {4*3*4*4096}')
    a(f's_add_u32 s{S_TMP}, s{S_TMP}, s{S_LW}')
    a(f's_add_u32 s{S_TMP}, s{S_TMP}, {WS_X}')
    for t in (1, 2, 3):
        d = 21 + t
        a(f's_add_u32 s{d}, s{S_HG}, {t}')
        a(f's_and_b32 s{d}, s{d}, 3')
        a(f's_mul_i32 s{d}, s{d}, {3*16384}')
        a(f's_add_u32 s{d}, s{d}, s{S_TMP}')
        a(f's_add_u32 s{d}, s{d}, {(t-1)*16384}')
    a(f's_mul_i32 s{S_TMP+1}, s{S_HG}, {3*16384}')
    a(f's_add_u32 s{S_TMP+1}, s{S_TMP+1}, s{S_TMP}')
    a(f's_add_u32 s{S_TMP+2}, s{S_TMP+1}, 16384')
    a(f's_add_u32 s{S_TMP+5}, s{S_TMP+1}, 32768')
    a(f's_lshl_b32 s10, s{S_B}, 17')
    a(f's_lshl_b32 s11, s{S_BR}, 11')
    a('s_add_u32 s10, s10, s11')
    a(f's_lshl_b32 s11, s{S_NT}, 8')
    a('s_add_u32 s10, s10, s11')
    a(f's_lshl_b32 s11, s{S_HG}, 6')
    a('s_add_u32 s10, s10, s11')
    a(f'v_and_b32 v3, 31, v{V_LANE}')
    a(f'v_lshrrev_b32 v1, 5, v{V_LANE}')
    a('v_lshlrev_b32 v3, 12, v3')
    a('v_lshl_add_u32 v3, v1, 5, v3')
    a(f'v_min_u32 v0, 5, v{V_LANE}')
    a(f'v_and_b32 v1, 1, v{V_LANE}')
    a('v_lshrrev_b32 v0, 1, v0')
    a('v_lshlrev_b32 v0, 14, v0')
    a('v_lshl_add_u32 v0, v1, 4, v0')
    a(f'v_add_u32 v{V_RA+1}, {2048 + 62*16 + 12}, v0')

def tail(a, c, stamp, pm):
    TGV = V_RA
    O = ACC
    SB = ACC + 16
    R = VWB
    for t in (1, 2, 3):
        for q in range(3):
            a(f'v_mov_b32 v{SB+12*(t-1)+4*q+3}, v{TGV}')
    def send(t):
        L = []
        b = SB + 12*(t-1)
        for i in range(8):
            L.append(f'v_accvgpr_read_b32 v{O+2*i}, a{AO+16*t+2*i}')
            L.append(f'v_accvgpr_read_b32 v{O+2*i+1}, a{AO+16*t+2*i+1}')
            L.append(f'v_cvt_pk_bf16_f32 v{b+4*(i//3)+i%3}, v{O+2*i}, v{O+2*i+1}')
            if i in (2, 5, 7):
                q = i // 3
                L.append(f'buffer_store_dwordx4 {vr(b+4*q,4)}, v{V_L16}, s[{SRD_WS}:{SRD_WS+3}], s{21+t} offen offset:{1024*q} {c.xst}')
        return L
    ms = pm[1] + pm[2] + pm[3] + pm[0]
    for m in ms[:4]: a(m)
    work = send(1)
    for m in ms[4:]:
        a(m)
        for l in work[:7]: a(l)
        work = work[7:]
    for l in work: a(l)
    for l in send(2) + send(3): a(l)
    stamp(8)
    for r in range(16):
        a(f'v_accvgpr_read_b32 v{O+r}, a{AO+r}')
    a(f's_mov_b32 s{S_TMP+3}, {c.spin}')
    a('s_branch XP1')
    a.label('XPOLL')
    a(f's_sleep {c.xsleep}')
    a.label('XP1')
    a(f'buffer_load_dword v0, v{V_RA+1}, s[{SRD_WS}:{SRD_WS+3}], s{S_TMP+1} offen {c.xld}')
    a(f's_sub_u32 s{S_TMP+3}, s{S_TMP+3}, 1')
    a('s_cbranch_scc1 XGO')
    a('s_waitcnt vmcnt(0)')
    a(f'v_cmp_ne_u32 vcc, v0, v{TGV}')
    a('s_cbranch_vccnz XPOLL')
    a.label('XGO')
    for k, sreg in enumerate((S_TMP+1, S_TMP+2, S_TMP+5)):
        for q in range(3):
            a(f'buffer_load_dwordx4 {vr(R+12*k+4*q,4)}, v{V_L16}, s[{SRD_WS}:{SRD_WS+3}], s{sreg} offen offset:{1024*q} {c.xld}')
    XT = V_RT
    a('s_waitcnt vmcnt(0)')
    tg = [R + 4*n + 3 for n in range(9)]
    for n in range(9):
        a(f'v_xor_b32 v{tg[n]}, v{tg[n]}, v{TGV}')
    a(f'v_or3_b32 v0, v{tg[0]}, v{tg[1]}, v{tg[2]}')
    a(f'v_or3_b32 v1, v{tg[3]}, v{tg[4]}, v{tg[5]}')
    a(f'v_or3_b32 v0, v0, v{tg[6]}, v{tg[7]}')
    a(f'v_or3_b32 v0, v0, v1, v{tg[8]}')
    a('v_cmp_ne_u32 vcc, 0, v0')
    a('s_cbranch_vccz XOK')
    a(f's_sub_u32 s{S_TMP+3}, s{S_TMP+3}, 1')
    a('s_cbranch_scc0 XGO')
    a.label('XOK')
    stamp(9)
    a(f's_mov_b32 s{S_TMP+4}, 0xffff0000')
    for k in range(3):
        for i in range(8):
            d = R + 12*k + 4*(i//3) + i%3
            a(f'v_lshlrev_b32 v{XT+(2*i)%4}, 16, v{d}')
            a(f'v_and_b32 v{XT+(2*i+1)%4}, s{S_TMP+4}, v{d}')
            a(f'v_add_f32 v{O+2*i}, v{O+2*i}, v{XT+(2*i)%4}')
            a(f'v_add_f32 v{O+2*i+1}, v{O+2*i+1}, v{XT+(2*i+1)%4}')
    for i in range(8):
        a(f'v_cvt_pk_bf16_f32 v{R+i}, v{O+2*i}, v{O+2*i+1}')
    a(f'buffer_store_dwordx4 {vr(R,4)}, v3, s[{SRD_OUT}:{SRD_OUT+3}], s10 offen')
    a(f'buffer_store_dwordx4 {vr(R+4,4)}, v3, s[{SRD_OUT}:{SRD_OUT+3}], s10 offen offset:16')

def build(c, out):
    hdr = open('header.txt').read().splitlines()
    t = '\n'.join(hdr) + '\n'
    t += '; @launch grid=(256,1,1) block=(512,1,1) lds=163840\n'
    t += '.amdgcn_target "amdgcn-amd-amdhsa--gfx950"\n.text\n'
    t += f'.globl {NAME}_kernel\n'
    out_l = []
    for l in gen(c).split('\n'):
        if c.nodma and ' lds' in l and 'sc1' not in l: continue
        if c.noread and ('ds_read_b128' in l or 'ds_read_b64_tr' in l): continue
        if c.nomfma and 'v_mfma' in l: continue
        if c.noprog and f'ds_write_b32 v{V_PA}, v{V_T3}' in l: l = f'    ds_read_b32 v{V_T3}, v{V_PA}'
        if c.progop == 'append' and f'ds_write_b32 v{V_PA}, v{V_T3}' in l: l = f'    ds_append v{V_T3} offset:64'
        if c.progop == 'inc' and f'ds_write_b32 v{V_PA}, v{V_T3}' in l: l = f'    ds_add_rtn_u32 v{V_T3}, v{V_PA}, v{V_T3}'
        if c.progop == 'addtid' and f'ds_write_b32 v{V_PA}, v{V_T3}' in l: l = f'    ds_write_addtid_b32 v{V_T3} offset:64'
        if c.noflag and 's_cbranch_vccnz SLOW' in l: continue
        out_l.append(l)
    t += '\n'.join(out_l)
    t += kd(f'{NAME}_kernel', 256, 102, ACCUM_OFF)
    open(out, 'w').write(t)

if __name__ == '__main__':
    c = Cfg()
    out = sys.argv[1]
    for kv in sys.argv[2:]:
        k, v = kv.split('=', 1)
        old = getattr(c, k)
        if v == 'None': v = None
        elif isinstance(old, bool): v = v in ('1', 'True')
        elif isinstance(old, int): v = int(v)
        setattr(c, k, v)
    build(c, out)
```

```python
import sys, math, struct
from asmlib import *

NAME = 'concat_heads__mha_block_cached__gqa_block_cached__near_ridge'
MF = 'v_mfma_f32_32x32x16_bf16'

class Cfg:
    stamps = False; cyc = False; trace = False
    fx = ''; fw = ''; fk = ''; fv = ''; fo = ''
    xst = 'sc1'; xld = 'sc1'
    spin = 1 << 16
    lspin = 1 << 20
    cprio = 1
    early = 16
    psleep = 8
    pfirst = 22
    budget = 320
    pfv = -1
    pfo = -1
    pfo2 = -1
    xsleep = 0
    leak = -1
    fdepth = 6
    rcv_at = 61
    fdepth2 = 3
    jobs = 'b'
    frate = 5
    tlbw = -1
    p2pos = '1234'
    same = False
    vthr = 8
    pprog = 18
    slowpath = True
    nodma = False; noread = False; nomfma = False
    padto = 0
    lsleep = 1
    ctrace = False
    nofree = False
    noprog = False
    noflag = False
    lpace = 0
    fewflags = False
    progop = ''
    ex1 = True

S_XCD, S_MT, S_BR, S_HG, S_J8, S_W, S_B, S_NT, S_HEAD, S_WID = 3, 4, 5, 6, 7, 8, 9, 15, 12, 14
SRD_X, SRD_K, SRD_V, SRD_WQ, SRD_WO, SRD_WS, SRD_OUT, SRD_DBG = 44, 48, 52, 56, 60, 64, 68, 72
S_SA, S_SW, S_IDX, S_LW = 24, 25, 26, 27
S_2HD = 28; S_PD = 29
S_TMP = 30
S_T0 = 16
S_SA2, S_SW2 = 18, 19
S_CNT = 20
S_NB = 21
S_TB = 22
S_TAB = 36
S_NOW = 38
V_FL = 0
V_LANE = 2; V_T3 = 3
V_RA = 4; V_RT = 8; V_L16 = 12; V_SP = 13; V_PA = 14; V_CB = 15
ACC = 16; VWB = 80
ACCUM_OFF = 144
AF = [0, 20]; AP = 40; AO = 48
AK = AO
L_DX, L_DWQ, L_DV, L_DWO = 16, 20, 24, 28
L_POLLA, L_POLL, L_TAG, L_THR, L_WA, L_WV, L_FA, L_TMP, L_THR2 = 32, 34, 36, 38, 39, 40, 41, 42, 43
L_PFV, L_PFO, L_JUNK = 44, 45, 46

WS_FLAG = 2 << 20
WS_X = 4 << 20
WS_BYTES = 16 << 20
AUX = 0x20000
CB = 163840 - 2048
CB_FULL = CB + 1024; CB_PRDY = CB + 1040; CB_TAG = CB + 1056
OFFR = [0, 2, 1, 3]
NG = 32

def p1_sched(mt):
    L = [(0, mt, True)]
    for r in range(3):
        for q in range(4):
            L.append((r + 1, mt, True) if q == mt else (r, q, False))
    L += [(3, q, False) for q in range(4) if q != mt]
    return L
P2POS = [1, 2, 3, 4]
def p2_sched(mt):
    fol0 = [(0, q, False) for q in range(4) if q != mt]
    p = P2POS[mt]
    L = [(0, mt, True)] + fol0[:p-1] + [(1, mt, True)] + fol0[p-1:]
    L += [(1, q, False) for q in sorted(range(4), key=lambda q: P2POS[q]) if q != mt]
    return L

def gen(c):
    a = Asm()
    def stamp(i):
        if c.leak == i: a('s_memrealtime s[80:81]')
        if c.stamps: a(f'{"s_memtime" if (c.cyc and i > 0) else "s_memrealtime"} s[{80+2*i}:{81+2*i}]')
    a.raw('.p2align 8')
    a.raw(f'.type {NAME}_kernel,@function')
    a.label(f'{NAME}_kernel')
    a('s_cmp_ge_u32 s2, 256')
    a('s_cbranch_scc1 K_END')
    stamp(0)
    a('s_load_dwordx16 s[16:31], s[0:1], 0')
    a('s_load_dwordx8 s[32:39], s[0:1], 64')
    a('s_load_dwordx2 s[40:41], s[0:1], 96')
    a('s_memrealtime s[42:43]')
    a(f's_and_b32 s{S_XCD}, s2, 7')
    a(f's_lshr_b32 s{S_MT}, s2, 3')
    a(f's_lshr_b32 s{S_BR}, s{S_XCD}, 2')
    a(f's_and_b32 s{S_HG}, s{S_XCD}, 3')
    a(f's_and_b32 s{S_J8}, s{S_MT}, 7')
    a(f's_lshr_b32 s{S_MT}, s{S_MT}, 3')
    a('v_lshrrev_b32 v1, 6, v0')
    a(f'v_and_b32 v{V_LANE}, 63, v0')
    a(f's_sub_u32 s{S_NT}, s{S_J8}, s{S_MT}')
    a(f'v_readfirstlane_b32 s{S_WID}, v1')
    a(f's_and_b32 s{S_NT}, s{S_NT}, 7')
    a(f's_lshl_b32 s{S_HEAD}, s{S_HG}, 3')
    a(f's_add_u32 s{S_HEAD}, s{S_HEAD}, s{S_J8}')
    a(f'v_lshlrev_b32 v{V_L16}, 4, v2')
    def srd_sel(d, pa, pb, nbytes):
        a(f's_cselect_b32 s{d}, s{pb}, s{pa}')
        a(f's_cselect_b32 s{d+1}, s{pb+1}, s{pa+1}')
        a(f's_mov_b32 s{d+2}, {hex(nbytes)}')
        a(f's_mov_b32 s{d+3}, 0x00020000')
    def srd(d, p, nbytes):
        a(f's_mov_b32 s{d}, s{p}')
        a(f's_mov_b32 s{d+1}, s{p+1}')
        a(f's_mov_b32 s{d+2}, {hex(nbytes)}')
        a(f's_mov_b32 s{d+3}, 0x00020000')
    a(f's_cmp_lt_u32 s{S_WID}, 4')
    a('s_cbranch_scc1 COMPUTE')

    a(f's_and_b32 s{S_W}, s{S_WID}, 3')
    a(f's_lshl_b32 s{S_B}, s{S_MT}, 2')
    a(f's_add_u32 s{S_B}, s{S_B}, s{S_W}')
    a('v_lshrrev_b32 v3, 3, v2')
    a('v_and_b32 v4, 7, v2')
    a('v_lshrrev_b32 v5, 4, v2')
    a(f's_lshl_b32 s10, s{S_B}, 16')
    for i in range(2):
        a(f'v_add_u32 v6, {4*i}, v5')
        a('v_xor_b32 v6, v6, v4')
        a(f'v_lshlrev_b32 v{8+i}, 4, v6')
    for i in range(4):
        a(f'v_add_u32 v7, {8*i}, v3')
        a(f'v_lshl_add_u32 v6, v7, 11, v{8+i%2}')
        a(f'v_add_u32 v6, s10, v6')
        a(f'v_subrev_u32 v{L_DX+i}, {1024*i}, v6')
    a('v_and_b32 v6, 15, v2')
    a('v_lshlrev_b32 v7, 2, v5')
    a('v_xor_b32 v6, v6, v7')
    a('v_lshlrev_b32 v10, 4, v6')
    a(f's_lshl_b32 s10, s{S_W}, 17')
    a(f's_lshl_b32 s13, s{S_HEAD}, 8')
    a('s_add_u32 s10, s10, s13')
    a('v_lshl_add_u32 v6, v5, 13, v10')
    a(f'v_add_u32 v{L_DWQ}, s10, v6')
    for i in range(1, 4):
        a(f'v_add_u32 v{L_DWQ+i}, {i*(4*8192-1024)}, v{L_DWQ}')
    a(f's_lshl_b32 s11, s{S_B}, 5')
    a(f's_lshl_b32 s13, s{S_HG}, 3')
    a('s_add_u32 s11, s11, s13')
    a('s_lshl_b32 s11, s11, 13')
    for i in range(4):
        a(f'v_add_u32 v7, {8*i}, v3')
        a(f'v_lshl_add_u32 v6, v7, 8, v{8+i%2}')
        a(f'v_add_u32 v6, s11, v6')
        a(f'v_subrev_u32 v{L_DV+i}, {1024*i}, v6')
    a('s_waitcnt lgkmcnt(0)')
    a(f's_cmp_eq_u32 s{S_BR}, 1')
    srd_sel(SRD_X, 16, 26, 1 << 20)
    srd_sel(SRD_WQ, 22, 32, 8 << 20)
    srd_sel(SRD_K, 18, 28, 4 << 20)
    srd_sel(SRD_V, 20, 30, 4 << 20)
    srd_sel(SRD_WO, 24, 34, 8 << 20)
    srd(SRD_WS, 40, WS_BYTES)
    srd(SRD_DBG, 38, 256)
    a(f's_lshl_b32 s{S_LW}, s{S_W}, 12')
    a(f's_lshl_b32 s{S_2HD}, s{S_J8}, 1')
    a(f's_mov_b32 s{S_PD}, 0')

    def late_setup():
        a(f's_lshl_b32 s10, s{S_W}, 15')
        a(f's_lshl_b32 s13, s{S_NT}, 8')
        a('s_add_u32 s10, s10, s13')
        a(f's_lshl_b32 s13, s{S_HG}, 21')
        a('s_add_u32 s10, s10, s13')
        a('v_lshl_add_u32 v6, v5, 11, v10')
        a(f'v_add_u32 v{L_DWO}, s10, v6')
        for i in range(1, 4):
            a(f'v_add_u32 v{L_DWO+i}, {i*(4*2048-1024)}, v{L_DWO}')
        a(f'v_and_b32 v6, 7, v2')
        a(f'v_lshlrev_b32 v{L_POLLA}, 3, v6')
        a(f's_lshl_b32 s{S_TMP}, s{S_BR}, 4')
        a(f's_add_u32 s{S_TMP}, s{S_TMP}, s{S_B}')
        a(f's_lshl_b32 s{S_TMP}, s{S_TMP}, 2')
        a(f's_add_u32 s{S_TMP}, s{S_TMP}, s{S_HG}')
        a(f's_lshl_b32 s{S_TMP+2}, s{S_TMP}, 7')
        a(f's_add_u32 s{S_TMP+2}, s{S_TMP+2}, {WS_FLAG}')
        a(f's_lshl_b32 s{S_TMP+4}, s{S_TMP}, 14')
        a(f's_mul_i32 s{S_TMP+5}, s{S_W}, 6144')
        a(f's_add_u32 s{S_TMP+5}, s{S_TMP+5}, {AUX}')
        a(f'v_lshlrev_b32 v{L_WA}, 2, v2')
        a(f's_lshl_b32 s10, s{S_B}, 5')
        a(f's_add_u32 s10, s10, s{S_HEAD}')
        a('s_lshl_b32 s10, s10, 13')
        a('v_lshlrev_b32 v6, 7, v2')
        a(f'v_add_u32 v{L_PFV}, s10, v6')
        a(f's_lshl_b32 s10, s{S_HG}, 21')
        a(f's_lshl_b32 s11, s{S_W}, 16')
        a('s_add_u32 s10, s10, s11')
        a(f's_lshl_b32 s11, s{S_NT}, 8')
        a('s_add_u32 s10, s10, s11')
        a('v_lshrrev_b32 v6, 1, v2')
        a('v_lshlrev_b32 v6, 11, v6')
        a('v_and_b32 v7, 1, v2')
        a('v_lshl_add_u32 v6, v7, 7, v6')
        a(f'v_add_u32 v{L_PFO}, s10, v6')

    a(f's_getpc_b64 s[{S_TAB}:{S_TAB+1}]')
    a.label('PCREF')
    a(f's_add_u32 s{S_TAB}, s{S_TAB}, SEQTAB-PCREF')
    a(f's_addc_u32 s{S_TAB+1}, s{S_TAB+1}, 0')
    a(f's_lshl_b32 s{S_TMP+3}, s{S_W}, 2')
    a(f's_add_u32 s{S_TMP+3}, s{S_TMP+3}, {CB_FULL}')
    a(f's_mov_b32 s{S_NB}, 0')
    for v in range(1, 4):
        a(f's_cmp_eq_u32 s{S_MT}, {v}')
        a(f's_cbranch_scc1 LOADER{v}')

    def loader(mt):
        tagn = f'{mt}'
        s1, s2 = p1_sched(mt), p2_sched(mt)
        nops = [0]; endpos = {}
        def tile(kind, slot):
            if kind in ('x', 'v', 'k'):
                base = slot*16384 if kind != 'k' else AUX
                v, s, f = {'x': (L_DX, SRD_X, c.fx), 'v': (L_DV, SRD_V, c.fv), 'k': (L_DV, SRD_K, c.fk)}[kind]
                so = S_SA
            else:
                base = 65536 + slot*16384
                v, s, f = (L_DWQ, SRD_WQ, c.fw) if kind == 'wq' else (L_DWO, SRD_WO, c.fo)
                so = S_SW
            a(f's_add_u32 m0, s{S_LW}, {base}')
            a('s_nop 0')
            for i in range(4):
                a(f'buffer_load_dwordx4 v{v+i}, s[{s}:{s+3}], s{so} offen offset:{1024*i} {f} lds')
                nops[0] += 1
        def wflag(off, val):
            a(f's_add_u32 m0, s{S_TMP+3}, {off}')
            a(f'v_mov_b32 v{L_WV}, {4*val}')
            a('s_mov_b64 exec, 1')
            a(f'global_load_lds_dword v{L_WV}, s[{S_TAB}:{S_TAB+1}]')
            a('s_mov_b64 exec, -1')
        def pload(u, count):
            r, i, own = s2[u]
            a(f's_add_u32 s10, s{S_NT}, {4*r+i}')
            a(f's_and_b32 s10, s10, 7')
            a(f's_lshl_b32 s10, s10, 11')
            a(f's_add_u32 m0, s{S_TMP+5}, {((u-1)%3)*2048}')
            a(f's_add_u32 s10, s10, s{S_TMP+4}')
            for G in range(2):
                a(f'buffer_load_dwordx4 v{V_L16}, s[{SRD_WS}:{SRD_WS+3}], s10 offen offset:{1024*G} sc1 lds')
                if count: nops[0] += 1
        def poll():
            a(f'buffer_load_dwordx2 v[{L_POLL}:{L_POLL+1}], v{L_POLLA}, s[{SRD_WS}:{SRD_WS+3}], s{S_TMP+2} offen sc1')
        def bar():
            a('s_barrier')
            a(f's_memtime s[{S_TB}:{S_TB+1}]')
            a(f's_add_u32 s{S_NB}, s{S_NB}, 1')
        def gate(n):
            nm = f'{tagn}_{n}'
            if n < 3: return
            a.label(f'GA{nm}')
            if n >= 4:
                a(f's_cmp_ge_u32 s{S_NB}, {n-3}')
                a(f's_cbranch_scc1 GB{nm}')
                bar()
                a.label(f'GB{nm}')
            if n >= 30: return
            a(f's_cmp_ge_u32 s{S_NB}, {n-2}')
            a(f's_cbranch_scc1 GO{nm}')
            a.label(f'GP{nm}')
            a(f's_getreg_b32 s10, hwreg(HW_REG_IB_STS)')
            a(f's_memtime s[{S_NOW}:{S_NOW+1}]')
            a('s_and_b32 s10, s10, 0xc0000f')
            a(f's_cmp_le_u32 s10, {c.vthr}')
            a(f's_cbranch_scc1 GO{nm}')
            a('s_waitcnt lgkmcnt(0)')
            a(f's_sub_u32 s10, s{S_NOW}, s{S_TB}')
            nb = n - 3
            bud = c.budget + (1100 if nb == 16 else 0) + (256 if (nb == 18 or (nb >= 22 and nb % 2 == 0)) else 0)
            a(f's_cmp_lt_u32 s10, {bud if n > 3 else 1 << 20}')
            a(f's_cbranch_scc1 GP{nm}')
            bar()
            a.label(f'GO{nm}')
        def tr(lane, reg):
            if c.trace:
                a('s_memrealtime s[76:77]')
                a('s_waitcnt lgkmcnt(0)')
                a(f'v_writelane_b32 v{reg}, s76, {lane}')
        PA = list(range(c.pfirst, 24))
        a(f's_memtime s[{S_TB}:{S_TB+1}]')
        for g in range(NG):
            slot = g % 4
            gate(g)
            tr(g, 50)
            if g in PA:
                if g > PA[0]:
                    a(f's_cmp_lg_u32 s{S_PD}, 0')
                    a(f's_cbranch_scc1 NP{tagn}_{g}')
                poll()
                if g > PA[0]: a.label(f'NP{tagn}_{g}')
            if g == 6:
                a(f'buffer_load_dwordx2 v[{L_TAG}:{L_TAG+1}], off, s[{SRD_DBG}:{SRD_DBG+3}], 0 sc1')
            start = nops[0]
            if g < 16:
                r, i, own = s1[g]
                a(f's_add_u32 s{S_IDX}, s{S_2HD}, {4*i+OFFR[r]}')
                a(f's_and_b32 s{S_IDX}, s{S_IDX}, 15')
                a(f's_lshl_b32 s{S_SA}, s{S_IDX}, 7')
                a(f's_lshl_b32 s{S_SW}, s{S_IDX}, 19')
                tile('x', slot); tile('wq', slot)
                if g == 0:
                    late_setup()
                    a('s_barrier')
                wflag(0, g + 1); nops[0] += 1
                if own and r in (1, 3):
                    a(f's_lshl_b32 s{S_SA}, s{S_J8}, 13')
                    if r == 3: a(f's_add_u32 s{S_SA}, s{S_SA}, 128')
                    tile('k', 0)
            else:
                u, half = divmod(g - 16, 2)
                r, i, own = s2[u]
                a(f's_add_u32 s{S_IDX}, s{S_NT}, {4*r+i}')
                a(f's_and_b32 s{S_IDX}, s{S_IDX}, 7')
                a(f's_lshl_b32 s{S_SA}, s{S_IDX}, 13')
                a(f's_lshl_b32 s{S_SW}, s{S_IDX}, 18')
                if half:
                    a(f's_add_u32 s{S_SA}, s{S_SA}, 128')
                    a(f's_add_u32 s{S_SW}, s{S_SW}, {64*2048}')
                if g in (25, 27, 29, 31): pload((g - 25) // 2 + 4, True)
                if half and own and r == 1: tile('wo', slot); tile('v', slot)
                else: tile('v', slot); tile('wo', slot)
                wflag(0, g + 1); nops[0] += 1
            if g == c.tlbw:
                a('s_mov_b64 exec, 1')
                a(f'buffer_load_dword v{L_JUNK}, v{L_PFV}, s[{SRD_V}:{SRD_V+3}], 0 offen'); nops[0] += 1
                a(f'buffer_load_dword v{L_JUNK+1}, v{L_PFO}, s[{SRD_WO}:{SRD_WO+3}], 0 offen'); nops[0] += 1
                a(f'buffer_load_dword v{L_JUNK+2}, off, s[{SRD_WS}:{SRD_WS+3}], s{S_TMP+4}'); nops[0] += 1
                a(f'buffer_load_dword v{L_JUNK+3}, off, s[{SRD_WS}:{SRD_WS+3}], s{S_TMP+2} offset:64'); nops[0] += 1
                a('s_mov_b64 exec, -1')
            if c.pfv >= 0 and g == c.pfv + mt:
                a(f'buffer_load_dword v{L_JUNK}, v{L_PFV}, s[{SRD_V}:{SRD_V+3}], 0 offen'); nops[0] += 1
            if c.pfo >= 0 and g == c.pfo + mt:
                a(f's_lshl_b32 s10, s{S_J8}, 18')
                a(f'buffer_load_dword v{L_JUNK+1}, v{L_PFO}, s[{SRD_WO}:{SRD_WO+3}], s10 offen'); nops[0] += 1
            if c.pfo2 >= 0 and g == c.pfo2 + mt:
                a(f's_add_u32 s10, s{S_J8}, 4')
                a('s_and_b32 s10, s10, 7')
                a(f's_lshl_b32 s10, s10, 18')
                a(f'buffer_load_dword v{L_JUNK+2}, v{L_PFO}, s[{SRD_WO}:{SRD_WO+3}], s10 offen'); nops[0] += 1
            n_this = nops[0] - start
            tr(32 + g, 50)
            if g == 6:
                a(f's_waitcnt vmcnt({n_this})')
                a(f's_mov_b32 s{S_CNT}, {c.spin}')
                a.label(f'TG{tagn}')
                a(f'v_cmp_eq_u64 vcc, 0, v[{L_TAG}:{L_TAG+1}]')
                a(f's_cbranch_vccz TGOK{tagn}')
                a(f's_sub_u32 s{S_CNT}, s{S_CNT}, 1')
                a(f's_cbranch_scc1 TGOK{tagn}')
                a('s_sleep 1')
                a(f'buffer_load_dwordx2 v[{L_TAG}:{L_TAG+1}], off, s[{SRD_DBG}:{SRD_DBG+3}], 0 sc1')
                a('s_waitcnt vmcnt(0)')
                a(f's_branch TG{tagn}')
                a.label(f'TGOK{tagn}')
                a(f's_mov_b32 m0, {CB_TAG}')
                a('s_mov_b64 exec, 3')
                a(f'buffer_load_dword v{L_WA}, s[{SRD_DBG}:{SRD_DBG+3}], 0 offen sc1 lds')
                a('s_mov_b64 exec, -1')
            if g in PA:
                last = g == PA[-1]
                a(f's_cmp_lg_u32 s{S_PD}, 0')
                a(f's_cbranch_scc1 PD{tagn}_{g}')
                a(f's_waitcnt vmcnt({n_this})')
                if last:
                    a(f's_mov_b32 s{S_CNT}, {c.spin}')
                    a.label(f'PC{tagn}')
                a(f'v_cmp_ne_u64 vcc, v[{L_POLL}:{L_POLL+1}], v[{L_TAG}:{L_TAG+1}]')
                if not last:
                    a(f's_cbranch_vccnz PD{tagn}_{g}')
                else:
                    a(f's_cbranch_vccz PG{tagn}')
                    a(f's_sub_u32 s{S_CNT}, s{S_CNT}, 1')
                    a(f's_cbranch_scc1 PG{tagn}')
                    a(f's_cmp_ge_u32 s{S_NB}, 21')
                    a(f's_cbranch_scc1 PB{tagn}')
                    bar()
                    a.label(f'PB{tagn}')
                    poll()
                    a('s_waitcnt vmcnt(0)')
                    a(f's_branch PC{tagn}')
                    a.label(f'PG{tagn}')
                for u in (1, 2, 3): pload(u, False)
                wflag(CB_PRDY - CB_FULL, 1)
                a(f's_mov_b32 s{S_PD}, 1')
                tr(60, 51)
                a.label(f'PD{tagn}_{g}')
        a('s_waitcnt vmcnt(0)')
        if c.trace:
            a(f'v_writelane_b32 v51, s42, 63')
            a('s_mov_b32 s76, s40')
            a('s_mov_b32 s77, s41')
            a('s_mov_b32 s78, 0x10000000')
            a('s_mov_b32 s79, 0x00020000')
            a('s_lshl_b32 s75, s2, 2')
            a(f's_add_u32 s75, s75, s{S_W}')
            a('s_lshl_b32 s75, s75, 9')
            a(f's_add_u32 s75, s75, {(130<<20)}')
            a('v_lshlrev_b32 v3, 2, v2')
            a('buffer_store_dword v50, v3, s[76:79], s75 offen')
            a('buffer_store_dword v51, v3, s[76:79], s75 offen offset:256')
        a('s_endpgm')
    for v in range(4):
        if v: a.label(f'LOADER{v}')
        loader(v)

    a.label('COMPUTE')
    if c.cprio: a(f's_setprio {c.cprio}')
    a(f's_mov_b32 s{S_W}, s{S_WID}')
    a(f's_lshl_b32 s{S_B}, s{S_MT}, 2')
    a(f's_add_u32 s{S_B}, s{S_B}, s{S_W}')
    T = ACC
    a(f's_lshl_b32 s13, s{S_W}, 8')
    a(f's_add_u32 s13, s13, {CB}')
    a(f'v_lshlrev_b32 v{T}, 2, v2')
    a(f'v_add_u32 v{V_PA}, s13, v{T}')
    a(f'v_mov_b32 v{T+1}, 0')
    a(f'ds_write_b32 v{V_PA}, v{T+1}')
    a(f'v_add_u32 v{T}, {CB_FULL}, v{T}')
    a(f'ds_write_b32 v{T}, v{T+1}')
    a(f'v_and_b32 v{V_CB}, 3, v2')
    a(f'v_lshlrev_b32 v{V_CB}, 2, v{V_CB}')
    a(f'v_add_u32 v{V_CB}, {CB_FULL}, v{V_CB}')
    a('s_waitcnt lgkmcnt(0)')
    a('s_barrier')
    a('v_and_b32 v3, 31, v2')
    a('v_lshrrev_b32 v1, 5, v2')
    a(f's_lshl_b32 s{S_LW}, s{S_W}, 12')
    a(f'v_bfe_u32 v{T}, v3, 1, 3')
    a(f'v_xor_b32 v{T}, v{T}, v1')
    for s in range(4):
        a(f'v_xor_b32 v{T+1}, {2*s}, v{T}')
        a(f'v_lshlrev_b32 v{T+1}, 4, v{T+1}')
        a(f'v_lshl_add_u32 v{T+1}, v3, 7, v{T+1}')
        a(f'v_add_u32 v{V_RA+s}, s{S_LW}, v{T+1}')
    def rt_setup(phase, T):
        L = []
        L.append(f'v_bfe_u32 v{T}, v2, 2, 2')
        L.append(f'v_bfe_u32 v{T+1}, v2, 4, 1')
        L.append(f'v_bfe_u32 v{T+2}, v2, 0, 1')
        L.append(f'v_bfe_u32 v{T+3}, v2, 1, 1')
        L.append(f'v_lshrrev_b32 v{T+4}, 5, v2')
        L.append(f'v_lshl_add_u32 v{T+4}, v{T+4}, 3, v{T}')
        L.append(f'v_lshlrev_b32 v{T+4}, 8, v{T+4}')
        L.append(f'v_add_u32 v{T+4}, 0x10000, v{T+4}')
        hi, lo = (T+1, T+2) if phase == 1 else (T+2, T+1)
        L.append(f'v_lshl_add_u32 v{T+4}, v{hi}, 5, v{T+4}')
        L.append(f'v_lshl_add_u32 v{T+4}, v{lo}, 4, v{T+4}')
        L.append(f'v_lshl_add_u32 v{T+4}, v{T+3}, 3, v{T+4}')
        for t in range(4):
            if phase == 1:
                L.append(f'v_xor_b32 v{T+5}, {t}, v{T}')
            else:
                L.append(f's_add_u32 s10, s{S_HG}, {t}')
                L.append('s_and_b32 s10, s10, 3')
                L.append(f'v_xor_b32 v{T+5}, s10, v{T}')
            L.append(f'v_lshl_add_u32 v{V_RT+t}, v{T+5}, 6, v{T+4}')
        return L
    for l in rt_setup(1, T): a(l)
    srd(SRD_WS, 40, WS_BYTES)
    srd(SRD_OUT, 36, 2 << 20)
    srd(SRD_DBG, 38, 256)
    a(f's_mul_i32 s10, s{S_W}, 6144')
    a(f's_add_u32 s10, s10, {AUX}')
    a(f'v_add_u32 v{V_SP}, s10, v{V_L16}')
    a(f's_or_b32 s13, s2, s{S_W}')
    a('s_cmp_lg_u32 s13, 0')
    a('s_cbranch_scc1 NOTAG')
    a(f'v_mov_b32 v{T}, s42')
    a(f'v_mov_b32 v{T+1}, s43')
    a(f'buffer_store_dwordx2 v[{T}:{T+1}], off, s[{SRD_DBG}:{SRD_DBG+3}], 0 sc0 sc1')
    a.label('NOTAG')
    stamp(1)

    def reads(j, s, f):
        slot = j % 4
        L = [f'ds_read_b128 {ar(AF[f]+16,4)}, v{V_RA+s} offset:{slot*16384}']
        for t in range(4):
            for u in range(2):
                L.append(f'ds_read_b64_tr_b16 {ar(AF[f]+4*t+2*u,2)}, v{V_RT+t} offset:{slot*16384+s*4096+u*1024}')
        return L
    def mfma(j, s, f, t):
        first = (j == 0 and s == 0) or (j >= 16 and j % 2 == 0 and s == 0)
        cc = '0' if first else vr(ACC+16*t, 16)
        wt, act = ar(AF[f]+4*t, 4), ar(AF[f]+16, 4)
        if j < 16: return f'{MF} {vr(ACC+16*t,16)}, {wt}, {act}, {cc}'
        return f'{MF} {vr(ACC+16*t,16)}, {act}, {wt}, {cc}'
    def cvts(u, t):
        d = VWB + 32 * (u % 2) + 8 * t
        return [f'v_cvt_pk_bf16_f32 v{d+i}, v{ACC+16*t+2*i}, v{ACC+16*t+2*i+1}' for i in range(8)]
    PF = VWB + 48
    def pstage(u, pbase=None):
        L = []
        for G in range(2):
            for t in (1, 2, 3, 0):
                o = ar(AO+16*t, 16)
                cc = '0' if (u == 0 and G == 0) else o
                p = vr(PF+4*G, 4) if u == 0 else (ar(AP+4*G, 4) if pbase is None else ar(pbase+4*G, 4))
                L.append(f'{MF} {o}, {vr(VWB+32*(u%2)+8*t+4*G,4)}, {p}, {cc}')
        return L
    def preads(u, dst=AP):
        return [f'ds_read_b128 {ar(dst+4*G,4)}, v{V_SP} offset:{((u-1)%3)*2048+1024*G}' for G in range(2)]
    def flagread(g):
        return f'ds_read_b32 v{V_FL}, v{V_CB}'
    def flagtest(g):
        a(f'v_cmp_ge_u32 vcc, {g}, v{V_FL}')
    def spin(name, rd, test):
        a(f's_mov_b32 s{S_CNT}, {c.lspin}')
        a.label(name)
        a(rd)
        a(f's_sub_u32 s{S_CNT}, s{S_CNT}, 1')
        a('s_cbranch_scc1 K_END')
        a('s_waitcnt lgkmcnt(0)')
        test()
        a(f's_cbranch_vccnz {name}')

    def step(j, s, f, lds_ops, carry, old_extra, skip_first=False, dobar=True):
        head_end = j >= 16 and j % 2 == 1 and s == 3
        u = (j - 16) // 2
        gaps = [[], [], [], []]
        per = 3 if len(lds_ops) <= 9 else 4
        for i, r in enumerate(lds_ops):
            gaps[min(3, i // per)].append(r)
        carry = list(carry)
        cv = []
        if head_end:
            for t in range(4): cv += cvts(u, t)
        ncv = 4 if u >= 2 else 8
        newn = 0
        for t in range(4):
            remain_old = (6, 4, 2, 0)[t] + (old_extra if t < 3 else 0)
            if not (t == 0 and skip_first):
                a(f's_waitcnt lgkmcnt({remain_old + newn})')
            a(mfma(j, s, f, t))
            for r in gaps[t]:
                for l in r: a(l)
                if r[-1].startswith('ds_'): newn += 1
            if carry:
                for l in carry.pop(0): a(l)
            if head_end and t >= 2:
                for l in cv[:ncv]: a(l)
                cv = cv[ncv:]
        if s == 3 and dobar: a('s_barrier')
        if j == 18 and s == 1:
            for m in pstage(0): a(m)
        nc = []
        if head_end:
            if u >= 2:
                for i, m in enumerate(pstage(u - 1)):
                    a(m)
                    for l in cv[:4]: a(l)
                    cv = cv[4:]
                assert not cv
            else:
                nc = [cv[:8], cv[8:]]
        return nc

    slow = []
    if c.progop: a(f's_lshl_b32 m0, s{S_W}, 8')
    if c.ctrace: a('s_mov_b32 s95, 0')
    spin('W0', flagread(0), lambda: flagtest(0))
    stamp(2)
    for l in reads(0, 0, 0): a(l)
    f = 0
    carry = []
    prev_extra = 0
    NM = 28
    for j in range(NM):
        if j == 16:
            softmax(a, c, stamp, rt_setup, PF)
            spin('W16', flagread(16), lambda: flagtest(16))
            stamp(5)
            for l in reads(16, 0, f): a(l)
            prev_extra = 0
        u = (j - 16) // 2
        if c.ctrace:
            if j > 0: a(f'v_writelane_b32 v1, s{96+2*((j-1)%2)}, {j-1}')
            a(f's_memtime s[{96+2*(j%2)}:{97+2*(j%2)}]')
        for s in range(4):
            if s < 3:
                ops = [[r] for r in reads(j, s+1, f ^ 1)]
                extra = []
                if j in (5, 13) and s < 2:
                    hf = 0 if j == 5 else 1
                    for ss in (2*s, 2*s+1):
                        extra.append([f'v_add_u32 v{V_T3}, {AUX}, v{V_RA+ss}', f'ds_read_b128 {ar(AK+16*hf+4*ss,4)}, v{V_T3}'])
                if j >= 21 and j % 2 == 1 and s == 1:
                    if j == 21:
                        spin('WP', f'ds_read_b32 v{V_FL}, v{V_CB} offset:{CB_PRDY-CB_FULL}', lambda: a(f'v_cmp_eq_u32 vcc, 0, v{V_FL}'))
                    extra += [[r] for r in preads(u - 1)]
                if s == 2:
                    if j + 1 < NG and j != 15:
                        ops = [[flagread(j + 1)]] + ops
                    if j == 16:
                        extra.append(['s_waitcnt vmcnt(0)', f'v_mov_b32 v{ACC_TAGT}, s{S_T0}', f'v_mov_b32 v{ACC_TAGT+1}, s{S_T0+1}',
                                      f'buffer_store_dwordx2 v[{ACC_TAGT}:{ACC_TAGT+1}], off, s[{SRD_WS}:{SRD_WS+3}], s{S_TMP+1} sc0 sc1', 's_nop 0'])
                n_lds_extra = sum(1 for e in extra if e[-1].startswith('ds_'))
                ops2 = ops + extra
                carry = step(j, s, f, ops2, carry, prev_extra)
                prev_extra = n_lds_extra
            else:
                if j + 1 < NG and j != 15:
                    a(f's_waitcnt lgkmcnt({6 + prev_extra})')
                    flagtest(j + 1)
                    nxt = reads(j+1, 0, f ^ 1) if j + 1 < NM else final_prefetch()
                    if c.slowpath:
                        a(f's_cbranch_vccnz SLOW{j}')
                        c2 = step(j, s, f, [[r] for r in nxt], carry, prev_extra, True)
                        a.label(f'JOIN{j}')
                        slow.append((j, f, list(carry), nxt, prev_extra))
                        carry = c2
                    else:
                        a(f's_cbranch_vccz RDY{j}')
                        spin(f'W{j+1}', flagread(j+1), lambda: flagtest(j+1))
                        a.label(f'RDY{j}')
                        carry = step(j, s, f, [[r] for r in nxt], carry, prev_extra, True)
                    if j + 1 == 8: stamp(3)
                    if j + 1 == 24: stamp(6)
                    prev_extra = 0
                else:
                    ops = []
                    if j == NG - 1: ops = [[r] for r in preads(7, AF[f ^ 1])]
                    carry = step(j, s, f, ops, carry, prev_extra)
            f ^= 1
    final(a, c, stamp, spin, flagread, flagtest, pstage, preads)
    if c.leak >= 0:
        a.label('LEAKL')
        a('s_memrealtime s[76:77]')
        a('s_waitcnt lgkmcnt(0)')
        a('s_sub_u32 s76, s76, s80')
        a('s_cmp_lt_u32 s76, 3000')
        a('s_cbranch_scc1 LEAKL')
    if c.padto:
        a.label('PADL')
        a('s_memrealtime s[76:77]')
        a('s_waitcnt lgkmcnt(0)')
        a(f's_sub_u32 s76, s76, s{S_T0}')
        a(f's_cmp_lt_u32 s76, {c.padto}')
        a('s_cbranch_scc1 PADL')
    if c.stamps:
        n = 11
        a('s_waitcnt vmcnt(0) lgkmcnt(0)')
        stamp(n - 1)
        a('s_waitcnt lgkmcnt(0)')
        a(f's_cmp_lg_u32 s{S_WID}, 0')
        a('s_cbranch_scc1 K_END')
        a('s_mov_b32 s76, s40')
        a('s_mov_b32 s77, s41')
        a('s_mov_b32 s78, 0x10000000')
        a('s_mov_b32 s79, 0x00020000')
        a('s_lshl_b32 s75, s2, 7')
        a(f's_add_u32 s75, s75, {128<<20}')
        a('v_mov_b32 v3, 0')
        for i in range(n):
            a(f'v_mov_b32 v4, s{80+2*i}')
            a(f'v_mov_b32 v5, s{81+2*i}')
            a(f'buffer_store_dwordx2 v[4:5], v3, s[76:79], s75 offen offset:{8*i}')
            a('s_nop 1')
    a.label('K_END')
    a('s_endpgm')
    for (j, f, cr, nxt, pe) in slow:
        a.label(f'SLOW{j}')
        if c.ctrace: a(f's_bitset1_b32 s95, {j}')
        step(j, 3, f, [], cr, pe, True, dobar=False)
        spin(f'W{j+1}', flagread(j+1), lambda: flagtest(j+1))
        for l in nxt: a(l)
        a('s_barrier')
        a(f's_branch JOIN{j}')
    a.raw('.p2align 8')
    a.raw('.type SEQTAB,@object')
    a.label('SEQTAB')
    for i in range(64): a(f'.long {i}')
    a.raw('.size SEQTAB, 256')
    return a.text()

ACC_TAGT = VWB + 32

def step_nowait(a, step, j, s, f, ops, carry):
    n0 = len(a.lines)
    r = step(j, s, f, ops, carry, 0)
    assert a.lines[n0].strip() == 's_waitcnt lgkmcnt(0)'
    del a.lines[n0]
    return r

def softmax(a, c, stamp, rt_setup, PF):
    QF = VWB; S = VWB + 32
    stamp(4)
    a(f'v_mov_b32 v{V_T3}, {CB_TAG}')
    a(f'ds_read_b64 v[{VWB+56}:{VWB+57}], v{V_T3}')
    a('s_nop 9')
    cv = [f'v_cvt_pk_bf16_f32 v{QF+i}, v{ACC+2*i}, v{ACC+2*i+1}' for i in range(32)]
    for l in cv[:8]: a(l)
    cv = cv[8:]
    for s in range(8):
        a(f'{MF} {vr(S,16)}, {ar(AK+4*s,4)}, {vr(QF+4*s,4)}, ' + ('0' if s == 0 else vr(S,16)))
        for l in cv[:4]: a(l)
        cv = cv[4:]
    cc = (128 ** -0.5) * math.log2(math.e)
    cbits = struct.unpack('<I', struct.pack('<f', cc))[0]
    a('s_waitcnt lgkmcnt(0)')
    a(f'v_readfirstlane_b32 s{S_T0}, v{VWB+56}')
    a(f'v_readfirstlane_b32 s{S_T0+1}, v{VWB+57}')
    a(f's_mov_b32 s{S_TMP+4}, {hex(cbits)}')
    a(f's_lshl_b32 s{S_TMP}, s{S_BR}, 4')
    a(f's_add_u32 s{S_TMP}, s{S_TMP}, s{S_B}')
    a(f's_lshl_b32 s{S_TMP+1}, s{S_TMP}, 2')
    a(f's_add_u32 s{S_TMP+1}, s{S_TMP+1}, s{S_HG}')
    a(f's_lshl_b32 s{S_TMP+1}, s{S_TMP+1}, 4')
    a(f's_add_u32 s{S_TMP+1}, s{S_TMP+1}, s{S_J8}')
    a(f's_lshl_b32 s{S_TMP+1}, s{S_TMP+1}, 3')
    a(f's_add_u32 s{S_TMP+1}, s{S_TMP+1}, {WS_FLAG}')
    a(f's_lshl_b32 s{S_TMP}, s{S_TMP}, 5')
    a(f's_add_u32 s{S_TMP}, s{S_TMP}, s{S_HEAD}')
    a(f's_lshl_b32 s{S_TMP}, s{S_TMP}, 11')
    t1, t2 = ACC, ACC + 1
    a(f'v_max3_f32 v{t1}, v{S}, v{S+1}, v{S+2}')
    a(f'v_max3_f32 v{t2}, v{S+3}, v{S+4}, v{S+5}')
    a(f'v_max3_f32 v{t1}, v{t1}, v{S+6}, v{S+7}')
    a(f'v_max3_f32 v{t2}, v{t2}, v{S+8}, v{S+9}')
    a(f'v_max3_f32 v{t1}, v{t1}, v{S+10}, v{S+11}')
    a(f'v_max3_f32 v{t2}, v{t2}, v{S+12}, v{S+13}')
    a(f'v_max3_f32 v{t1}, v{t1}, v{S+14}, v{S+15}')
    a(f'v_max_f32 v{t1}, v{t1}, v{t2}')
    a(f'v_mov_b32 v{t2}, v{t1}')
    a('s_nop 1')
    a(f'v_permlane32_swap_b32 v{t1}, v{t2}')
    a('s_nop 1')
    a(f'v_max_f32 v{t1}, v{t1}, v{t2}')
    a(f'v_mul_f32 v{t1}, s{S_TMP+4}, v{t1}')
    for i in range(16):
        a(f'v_fma_f32 v{S+i}, v{S+i}, s{S_TMP+4}, -v{t1}')
    for i in range(16):
        a(f'v_exp_f32 v{S+i}, v{S+i}')
    a(f'v_add_f32 v{t1}, v{S}, v{S+1}')
    a(f'v_add_f32 v{t2}, v{S+2}, v{S+3}')
    for i in range(4, 16, 2):
        a(f'v_add_f32 v{t1}, v{t1}, v{S+i}')
        a(f'v_add_f32 v{t2}, v{t2}, v{S+i+1}')
    a(f'v_add_f32 v{t1}, v{t1}, v{t2}')
    a(f'v_mov_b32 v{t2}, v{t1}')
    a('s_nop 1')
    a(f'v_permlane32_swap_b32 v{t1}, v{t2}')
    a('s_nop 1')
    a(f'v_add_f32 v{t1}, v{t1}, v{t2}')
    a(f'v_rcp_f32 v{t1}, v{t1}')
    a('s_nop 0')
    for i in range(16):
        a(f'v_mul_f32 v{S+i}, v{S+i}, v{t1}')
    for i in range(8):
        a(f'v_cvt_pk_bf16_f32 v{PF+i}, v{S+2*i}, v{S+2*i+1}')
    for G in range(2):
        a(f'buffer_store_dwordx4 {vr(PF+4*G,4)}, v{V_L16}, s[{SRD_WS}:{SRD_WS+3}], s{S_TMP} offen offset:{1024*G} sc0 sc1')
    for l in rt_setup(2, ACC + 2): a(l)
    tail_salu(a)

S_SEND = 21
S_RCV = 25
S_OUTO = 29
S_TG2 = 18
def tail_salu(a):
    B = 19
    a(f's_mul_i32 s{S_TG2}, s{S_T0}, 0x9e3779b1')
    a(f's_xor_b32 s{S_TG2}, s{S_TG2}, s{S_T0+1}')
    a(f's_lshl_b32 s{B}, s{S_BR}, 2')
    a(f's_add_u32 s{B}, s{B}, s{S_MT}')
    a(f's_lshl_b32 s{B}, s{B}, 3')
    a(f's_add_u32 s{B}, s{B}, s{S_NT}')
    a(f's_mul_i32 s{B}, s{B}, {4*3*4*4096}')
    a(f's_add_u32 s{B}, s{B}, s{S_LW}')
    a(f's_add_u32 s{B}, s{B}, {WS_X}')
    for t in (1, 2, 3):
        d = S_SEND + t
        a(f's_add_u32 s{d}, s{S_HG}, {t}')
        a(f's_and_b32 s{d}, s{d}, 3')
        a(f's_mul_i32 s{d}, s{d}, {3*16384}')
        a(f's_add_u32 s{d}, s{d}, s{B}')
        a(f's_add_u32 s{d}, s{d}, {(t-1)*16384}')
    a(f's_mul_i32 s{S_RCV}, s{S_HG}, {3*16384}')
    a(f's_add_u32 s{S_RCV}, s{S_RCV}, s{B}')
    a(f's_add_u32 s{S_RCV+1}, s{S_RCV}, 16384')
    a(f's_add_u32 s28, s{S_RCV}, 32768')
    a(f's_lshl_b32 s{S_OUTO}, s{S_B}, 17')
    a(f's_lshl_b32 s11, s{S_BR}, 11')
    a(f's_add_u32 s{S_OUTO}, s{S_OUTO}, s11')
    a(f's_lshl_b32 s11, s{S_NT}, 8')
    a(f's_add_u32 s{S_OUTO}, s{S_OUTO}, s11')
    a(f's_lshl_b32 s11, s{S_HG}, 6')
    a(f's_add_u32 s{S_OUTO}, s{S_OUTO}, s11')

JOBS = [(1, 6), (1, 7), (2, 6), (2, 7), (3, 6), (3, 7), (0, 6), (0, 7)]
WR0 = 8; WRN = 8
def slot_order():
    L = [(0, ks) for ks in range(4)]
    for k in range(7):
        for i in range(4):
            L.append((k, 4 + i)); L.append((k + 1, i))
    L += [(7, ks) for ks in range(4, 8)]
    return L
def wt_reads(n):
    k, ks = slot_order()[n]
    t, u = JOBS[k]
    j = 16 + 2*u + ks // 4; s = ks % 4
    d = WR0 + 4 * (n % WRN)
    return [f'ds_read_b64_tr_b16 {ar(d+2*x,2)}, v{V_RT+t} offset:{(j%4)*16384+s*4096+x*1024}' for x in range(2)]
def v_read(m):
    u = 6 + m // 8; ks = m % 8
    j = 16 + 2*u + ks // 4; s = ks % 4
    return f'ds_read_b128 {vr(ACC+4*m,4)}, v{V_RA+s} offset:{(j%4)*16384}'
def final_prefetch():
    L = [f'ds_read_b128 {ar(4*G,4)}, v{V_SP} offset:{((5-1)%3)*2048+1024*G}' for G in range(2)]
    for n in range(3): L += wt_reads(n)
    return L

def final(a, c, stamp, spin, flagread, flagtest, pstage, preads):
    stamp(7)
    issued = []
    done_upto = [0]
    def lds(instr, tag):
        a(instr); issued.append(tag)
    def need(tags):
        assert all(t in issued for t in tags), tags
        idx = max(i for i, t in enumerate(issued) if t in tags) + 1
        if idx > done_upto[0]:
            n = min(14, len(issued) - idx)
            a(f's_waitcnt lgkmcnt({n})')
            done_upto[0] = len(issued) - n
    issued += ['P5', 'P5'] + [f'W{n}' for n in range(3) for _ in range(2)]
    ACCB = [VWB, VWB + 16, VWB + 32]
    SB = VWB + 48
    TMP = VWB + 60
    TGV = V_PA
    PFR = {6: AP, 7: 0}
    SO = slot_order()
    q = []
    def qa(instrs, tag, full, n):
        for i in instrs: q.append((i, tag, full, n))
    seen = set(); first = {}
    for k, (t, u) in enumerate(JOBS): first.setdefault(u, k)
    for n, (k, ks) in enumerate(SO):
        t, u = JOBS[k]
        full = 16 + 2*u + ks // 4
        m = 8*(u-6) + ks
        if m not in seen:
            seen.add(m); qa([v_read(m)], f'V{m}', full, n)
        if n >= 3: qa(wt_reads(n), f'W{n}', full, n)
        if (k, ks) == (first[6], 6): qa(preads(6, AP), 'P6', 29, n)
        if (k, ks) == (first[7], 6): qa(preads(7, 0), 'P7', 31, n)
    have_full = [28]
    fl_issued = [28]
    mf_issued = [0]
    p5_done = [False]
    def pump(k):
        for _ in range(k):
            if not q: return
            up = max(x[2] for x in q[:5])
            if up > fl_issued[0] and fl_issued[0] == have_full[0] and q[0][3] - mf_issued[0] <= c.fdepth2 + 2:
                fl_issued[0] = have_full[0] + 1
                lds(flagread(fl_issued[0]), f'F{fl_issued[0]}')
                if q[0][2] > have_full[0]: return
                continue
            ins, tag, full, n = q[0]
            if tag[0] == 'W' and n - WRN >= mf_issued[0]: return
            if n - mf_issued[0] > (c.fdepth if full <= have_full[0] else c.fdepth2): return
            if tag == 'P7' and not p5_done[0]: return
            if full > have_full[0]:
                g = have_full[0] + 1
                assert full == g and fl_issued[0] == g, (full, g, fl_issued[0])
                need([f'F{g}'])
                flagtest(g)
                a(f's_cbranch_vccz FOK{g}')
                spin(f'WF{g}', flagread(g), lambda: flagtest(g))
                a.label(f'FOK{g}')
                have_full[0] = g
            q.pop(0); lds(ins, tag)
    a(f'v_and_b32 v3, 1, v{V_LANE}')
    a('v_cmp_eq_u32 vcc, 0, v3')
    a(f'v_mov_b32 v3, s{S_TG2}')
    a(f'v_mov_b32 v1, s{S_T0}')
    a(f'v_cndmask_b32 v{TGV}, v3, v1, vcc')
    valu = []
    total = [0]
    def addv(instrs, delay, front=False):
        L = [(i, total[0] + delay) for i in instrs]
        if front: valu[:0] = L
        else: valu.extend(L)
    def fill(k):
        for _ in range(k):
            if valu and valu[0][1] <= total[0]:
                a(valu.pop(0)[0])
    def send(t):
        L = []
        for i in range(8):
            x, y = TMP + (2*i) % 4, TMP + (2*i+1) % 4
            L.append(f'v_accvgpr_read_b32 v{x}, a{AO+16*t+2*i}')
            L.append(f'v_accvgpr_read_b32 v{y}, a{AO+16*t+2*i+1}')
            L.append(f'v_cvt_pk_bf16_f32 v{SB+4*(i//3)+i%3}, v{x}, v{y}')
            if i in (2, 5, 7):
                L.append(f'buffer_store_dwordx4 {vr(SB+4*(i//3),4)}, v{V_L16}, s[{SRD_WS}:{SRD_WS+3}], s{S_SEND+t} offen offset:{1024*(i//3)} {c.xst}')
        return L
    def cvj(k):
        b = ACCB[k % 3]
        return [f'v_cvt_pk_bf16_f32 v{b+i}, v{b+2*i}, v{b+2*i+1}' for i in range(8)]
    def pmf(k):
        t, u = JOBS[k]
        o = ar(AO+16*t, 16)
        return [f'{MF} {o}, {vr(ACCB[k%3]+4*G,4)}, {ar(PFR[u]+4*G,4)}, {o}' for G in range(2)]
    R = [ACC, ACC + 12, ACC + 24]
    def rreg(k, qx):
        if k == 2 and qx == 2: return SB
        return R[k] + 4*qx
    RCV = [S_RCV, S_RCV + 1, 28]
    def rloads(ks=(0, 1, 2)):
        return [f'buffer_load_dwordx4 {vr(rreg(k,qx),4)}, v{V_L16}, s[{SRD_WS}:{SRD_WS+3}], s{RCV[k]} offen offset:{1024*qx} {c.xld}' for k in ks for qx in range(3)]
    def emit_m(m, pk=3):
        a(m); total[0] += 1; pump(pk); fill(c.frate)
    need(['P5'])
    p5 = pstage(5, 0)
    for m in p5[:4]: emit_m(m)
    p5 = p5[4:]
    events = []
    for n, (k, ks) in enumerate(SO):
        t, u = JOBS[k]
        m = 8*(u-6) + ks
        need([f'W{n}', f'V{m}'])
        acc = vr(ACCB[k%3], 16)
        mf_issued[0] += 1
        if ks == 7 and k < 7:
            events += [(n + 2, 'cv', k), (n + 4, 'p0', k), (n + 5, 'p1', k)]
        a(f'{MF} {acc}, {vr(ACC+4*m,4)}, {ar(WR0+4*(n%WRN),4)}, ' + ('0' if ks == 0 else acc))
        total[0] += 1
        pump(3)
        for e in [e for e in events if e[0] == n and e[1] == 'cv']:
            addv(cvj(e[2]), 0, front=True)
        fill(c.frate)
        if p5:
            emit_m(p5.pop(0))
            if not p5:
                p5_done[0] = True
                addv([f'v_mov_b32 v{SB+4*x+3}, v{TGV}' for x in range(3)], 0)
        for e in [e for e in events if e[0] == n and e[1] != 'cv']:
            kk = e[2]
            assert not any(x[0] in cvj(kk) for x in valu)
            need([f'P{JOBS[kk][1]}'])
            G = int(e[1][1])
            emit_m(pmf(kk)[G], 2)
            if G == 1 and JOBS[kk][1] == 7:
                addv(send(JOBS[kk][0]), 2)
        if n == c.rcv_at:
            addv(rloads((0, 1)), 0)
    assert not q
    a(f'v_and_b32 v3, 31, v{V_LANE}')
    a(f'v_lshrrev_b32 v1, 5, v{V_LANE}')
    a('v_lshlrev_b32 v3, 12, v3')
    a('v_lshl_add_u32 v3, v1, 5, v3')
    while valu: a(valu.pop(0)[0])
    a(f's_mov_b32 s{S_TMP+3}, {c.spin}')
    a(f's_mov_b32 s{S_TMP+4}, 0xffff0000')
    a('s_nop 7')
    for l in cvj(7): a(l)
    for l in rloads((2,)): a(l)
    for mm in pmf(7): a(mm)
    stamp(8)
    O = ACCB[2]
    XT = V_RT
    def check(k, first_wait):
        a(f's_waitcnt vmcnt({first_wait})')
        a(f's_branch XC{k}')
        a.label(f'XR{k}')
        a(f's_sub_u32 s{S_TMP+3}, s{S_TMP+3}, 1')
        a('s_cbranch_scc1 K_END')
        if c.xsleep: a(f's_sleep {c.xsleep}')
        for l in rloads((k,)): a(l)
        a('s_waitcnt vmcnt(0)')
        a.label(f'XC{k}')
        tg = [rreg(k, qx) + 3 for qx in range(3)]
        for i, r in enumerate(tg):
            a(f'v_xor_b32 v{XT+i}, v{r}, v{TGV}')
        a(f'v_or3_b32 v0, v{XT}, v{XT+1}, v{XT+2}')
        a('v_cmp_ne_u32 vcc, 0, v0')
        a(f's_cbranch_vccnz XR{k}')
        a.label(f'XD{k}')
    def acc(k, first):
        for i in range(8):
            d = rreg(k, i // 3) + i % 3
            if first:
                a(f'v_lshlrev_b32 v{O+2*i}, 16, v{d}')
                a(f'v_and_b32 v{O+2*i+1}, s{S_TMP+4}, v{d}')
            else:
                a(f'v_lshlrev_b32 v{XT+(2*i)%4}, 16, v{d}')
                a(f'v_and_b32 v{XT+(2*i+1)%4}, s{S_TMP+4}, v{d}')
                a(f'v_add_f32 v{O+2*i}, v{O+2*i}, v{XT+(2*i)%4}')
                a(f'v_add_f32 v{O+2*i+1}, v{O+2*i+1}, v{XT+(2*i+1)%4}')
    check(0, 6); acc(0, True)
    check(1, 3); acc(1, False)
    for r in range(16):
        a(f'v_accvgpr_read_b32 v{XT+r%4}, a{AO+r}')
        a(f'v_add_f32 v{O+r}, v{O+r}, v{XT+r%4}')
    check(2, 0)
    stamp(9)
    acc(2, False)
    F = ACCB[0]
    for i in range(8):
        a(f'v_cvt_pk_bf16_f32 v{F+i}, v{O+2*i}, v{O+2*i+1}')
    a(f'buffer_store_dwordx4 {vr(F,4)}, v3, s[{SRD_OUT}:{SRD_OUT+3}], s{S_OUTO} offen')
    a(f'buffer_store_dwordx4 {vr(F+4,4)}, v3, s[{SRD_OUT}:{SRD_OUT+3}], s{S_OUTO} offen offset:16')

def build(c, out):
    if c.jobs == 'b': JOBS[:] = [(1, 6), (2, 6), (1, 7), (2, 7), (3, 6), (3, 7), (0, 6), (0, 7)]
    if c.jobs == 'c': JOBS[:] = [(1, 6), (2, 6), (3, 6), (1, 7), (2, 7), (3, 7), (0, 6), (0, 7)]
    P2POS[:] = [int(x) for x in c.p2pos]
    hdr = open('header.txt').read().splitlines()
    t = '\n'.join(hdr) + '\n'
    t += '; @launch grid=(256,1,1) block=(512,1,1) lds=163840\n'
    t += '.amdgcn_target "amdgcn-amd-amdhsa--gfx950"\n.text\n'
    t += f'.globl {NAME}_kernel\n'
    out_l = []
    for l in gen(c).split('\n'):
        if c.nodma and ' lds' in l and 'sc1' not in l: continue
        if c.noread and ('ds_read_b128' in l or 'ds_read_b64_tr' in l): continue
        if c.nomfma and 'v_mfma' in l: continue
        if c.same and f's_and_b32 s{S_IDX}, s{S_IDX},' in l: l = f'    s_and_b32 s{S_IDX}, s{S_IDX}, 1'
        if c.noprog and f'ds_write_b32 v{V_PA}, v{V_T3}' in l: l = f'    ds_read_b32 v{V_T3}, v{V_PA}'
        if c.progop == 'append' and f'ds_write_b32 v{V_PA}, v{V_T3}' in l: l = f'    ds_append v{V_T3} offset:64'
        if c.progop == 'inc' and f'ds_write_b32 v{V_PA}, v{V_T3}' in l: l = f'    ds_add_rtn_u32 v{V_T3}, v{V_PA}, v{V_T3}'
        if c.progop == 'addtid' and f'ds_write_b32 v{V_PA}, v{V_T3}' in l: l = f'    ds_write_addtid_b32 v{V_T3} offset:64'
        if c.noflag and 's_cbranch_vccnz SLOW' in l: continue
        out_l.append(l)
    t += '\n'.join(out_l)
    t += kd(f'{NAME}_kernel', 256, 102, ACCUM_OFF)
    open(out, 'w').write(t)

if __name__ == '__main__':
    c = Cfg()
    out = sys.argv[1]
    for kv in sys.argv[2:]:
        k, v = kv.split('=', 1)
        old = getattr(c, k)
        if v == 'None': v = None
        elif isinstance(old, bool): v = v in ('1', 'True')
        elif isinstance(old, int): v = int(v)
        setattr(c, k, v)
    build(c, out)
```

```python
import sys, math, struct
from asmlib import *

NAME = 'concat_heads__mha_block_cached__gqa_block_cached__near_ridge'
MF = 'v_mfma_f32_32x32x16_bf16'

class Cfg:
    stamps = False; cyc = False; trace = False
    fx = ''; fw = ''; fk = ''; fv = ''; fo = ''
    xst = 'sc1'; xld = 'sc1'
    spin = 1 << 16
    lspin = 1 << 20
    cprio = 1
    early = 16
    psleep = 8
    pfirst = 22
    budget = 320
    pfv = -1
    pfo = -1
    pfo2 = -1
    xsleep = 0
    leak = -1
    fdepth = 6
    rcv_at = 61
    fdepth2 = 3
    jobs = 'b'
    frate = 5
    tlbw = -1
    p2pos = '1234'
    p1pos = '1234'
    same = False
    vthr = 8
    pprog = 18
    slowpath = True
    nodma = False; noread = False; nomfma = False
    padto = 0
    lsleep = 1
    ctrace = False
    nofree = False
    noprog = False
    noflag = False
    lpace = 0
    fewflags = False
    progop = ''
    ex1 = True

S_XCD, S_MT, S_BR, S_HG, S_J8, S_W, S_B, S_NT, S_HEAD, S_WID = 3, 4, 5, 6, 7, 8, 9, 15, 12, 14
SRD_X, SRD_K, SRD_V, SRD_WQ, SRD_WO, SRD_WS, SRD_OUT, SRD_DBG = 44, 48, 52, 56, 60, 64, 68, 72
S_SA, S_SW, S_IDX, S_LW = 24, 25, 26, 27
S_2HD = 28; S_PD = 29
S_TMP = 30
S_T0 = 16
S_SA2, S_SW2 = 18, 19
S_CNT = 20
S_NB = 21
S_TB = 22
S_TAB = 36
S_NOW = 38
V_FL = 0
V_LANE = 2; V_T3 = 3
V_RA = 4; V_RT = 8; V_L16 = 12; V_SP = 13; V_PA = 14; V_CB = 15
ACC = 16; VWB = 80
ACCUM_OFF = 144
AF = [0, 20]; AP = 40; AO = 48
AK = AO
L_DX, L_DWQ, L_DV, L_DWO = 16, 20, 24, 28
L_POLLA, L_POLL, L_TAG, L_THR, L_WA, L_WV, L_FA, L_TMP, L_THR2 = 32, 34, 36, 38, 39, 40, 41, 42, 43
L_PFV, L_PFO, L_JUNK = 44, 45, 46

WS_FLAG = 2 << 20
WS_X = 4 << 20
WS_BYTES = 16 << 20
AUX = 0x20000
CB = 163840 - 2048
CB_FULL = CB + 1024; CB_PRDY = CB + 1040; CB_TAG = CB + 1056
OFFR = [0, 2, 1, 3]
NG = 32

P1POS = [1, 2, 3, 4]
def p1_sched(mt):
    own = {0: 0}
    for r in (1, 2, 3): own[P1POS[mt] + 4*(r-1)] = r
    def ftime(r, q): return 0 if r == 0 else P1POS[q] + 4*(r-1)
    fol = sorted([(ftime(r, q), r, q) for r in range(4) for q in range(4) if q != mt])
    L = []
    for tau in range(16):
        if tau in own: L.append((own[tau], mt, True))
        else:
            ft, r, q = fol.pop(0)
            assert ft < tau, (mt, tau, ft)
            assert r < 2 or P1POS[mt] + 4 < tau, (mt, tau, r)
            L.append((r, q, False))
    return L
P2POS = [1, 2, 3, 4]
def p2_sched(mt):
    fol0 = [(0, q, False) for q in range(4) if q != mt]
    p = P2POS[mt]
    L = [(0, mt, True)] + fol0[:p-1] + [(1, mt, True)] + fol0[p-1:]
    L += [(1, q, False) for q in sorted(range(4), key=lambda q: P2POS[q]) if q != mt]
    return L

def gen(c):
    a = Asm()
    def stamp(i):
        if c.leak == i: a('s_memrealtime s[80:81]')
        if c.stamps: a(f'{"s_memtime" if (c.cyc and i > 0) else "s_memrealtime"} s[{80+2*i}:{81+2*i}]')
    a.raw('.p2align 8')
    a.raw(f'.type {NAME}_kernel,@function')
    a.label(f'{NAME}_kernel')
    a('s_cmp_ge_u32 s2, 256')
    a('s_cbranch_scc1 K_END')
    stamp(0)
    a('s_load_dwordx16 s[16:31], s[0:1], 0')
    a('s_load_dwordx8 s[32:39], s[0:1], 64')
    a('s_load_dwordx2 s[40:41], s[0:1], 96')
    a('s_memrealtime s[42:43]')
    a(f's_and_b32 s{S_XCD}, s2, 7')
    a(f's_lshr_b32 s{S_MT}, s2, 3')
    a(f's_lshr_b32 s{S_BR}, s{S_XCD}, 2')
    a(f's_and_b32 s{S_HG}, s{S_XCD}, 3')
    a(f's_and_b32 s{S_J8}, s{S_MT}, 7')
    a(f's_lshr_b32 s{S_MT}, s{S_MT}, 3')
    a('v_lshrrev_b32 v1, 6, v0')
    a(f'v_and_b32 v{V_LANE}, 63, v0')
    a(f's_sub_u32 s{S_NT}, s{S_J8}, s{S_MT}')
    a(f'v_readfirstlane_b32 s{S_WID}, v1')
    a(f's_and_b32 s{S_NT}, s{S_NT}, 7')
    a(f's_lshl_b32 s{S_HEAD}, s{S_HG}, 3')
    a(f's_add_u32 s{S_HEAD}, s{S_HEAD}, s{S_J8}')
    a(f'v_lshlrev_b32 v{V_L16}, 4, v2')
    def srd_sel(d, pa, pb, nbytes):
        a(f's_cselect_b32 s{d}, s{pb}, s{pa}')
        a(f's_cselect_b32 s{d+1}, s{pb+1}, s{pa+1}')
        a(f's_mov_b32 s{d+2}, {hex(nbytes)}')
        a(f's_mov_b32 s{d+3}, 0x00020000')
    def srd(d, p, nbytes):
        a(f's_mov_b32 s{d}, s{p}')
        a(f's_mov_b32 s{d+1}, s{p+1}')
        a(f's_mov_b32 s{d+2}, {hex(nbytes)}')
        a(f's_mov_b32 s{d+3}, 0x00020000')
    a(f's_cmp_lt_u32 s{S_WID}, 4')
    a('s_cbranch_scc1 COMPUTE')

    a(f's_and_b32 s{S_W}, s{S_WID}, 3')
    a(f's_lshl_b32 s{S_B}, s{S_MT}, 2')
    a(f's_add_u32 s{S_B}, s{S_B}, s{S_W}')
    a('v_lshrrev_b32 v3, 3, v2')
    a('v_and_b32 v4, 7, v2')
    a('v_lshrrev_b32 v5, 4, v2')
    a(f's_lshl_b32 s10, s{S_B}, 16')
    for i in range(2):
        a(f'v_add_u32 v6, {4*i}, v5')
        a('v_xor_b32 v6, v6, v4')
        a(f'v_lshlrev_b32 v{8+i}, 4, v6')
    for i in range(4):
        a(f'v_add_u32 v7, {8*i}, v3')
        a(f'v_lshl_add_u32 v6, v7, 11, v{8+i%2}')
        a(f'v_add_u32 v6, s10, v6')
        a(f'v_subrev_u32 v{L_DX+i}, {1024*i}, v6')
    a('v_and_b32 v6, 15, v2')
    a('v_lshlrev_b32 v7, 2, v5')
    a('v_xor_b32 v6, v6, v7')
    a('v_lshlrev_b32 v10, 4, v6')
    a(f's_lshl_b32 s10, s{S_W}, 17')
    a(f's_lshl_b32 s13, s{S_HEAD}, 8')
    a('s_add_u32 s10, s10, s13')
    a('v_lshl_add_u32 v6, v5, 13, v10')
    a(f'v_add_u32 v{L_DWQ}, s10, v6')
    for i in range(1, 4):
        a(f'v_add_u32 v{L_DWQ+i}, {i*(4*8192-1024)}, v{L_DWQ}')
    a(f's_lshl_b32 s11, s{S_B}, 5')
    a(f's_lshl_b32 s13, s{S_HG}, 3')
    a('s_add_u32 s11, s11, s13')
    a('s_lshl_b32 s11, s11, 13')
    for i in range(4):
        a(f'v_add_u32 v7, {8*i}, v3')
        a(f'v_lshl_add_u32 v6, v7, 8, v{8+i%2}')
        a(f'v_add_u32 v6, s11, v6')
        a(f'v_subrev_u32 v{L_DV+i}, {1024*i}, v6')
    a('s_waitcnt lgkmcnt(0)')
    a(f's_cmp_eq_u32 s{S_BR}, 1')
    srd_sel(SRD_X, 16, 26, 1 << 20)
    srd_sel(SRD_WQ, 22, 32, 8 << 20)
    srd_sel(SRD_K, 18, 28, 4 << 20)
    srd_sel(SRD_V, 20, 30, 4 << 20)
    srd_sel(SRD_WO, 24, 34, 8 << 20)
    srd(SRD_WS, 40, WS_BYTES)
    srd(SRD_DBG, 38, 256)
    a(f's_lshl_b32 s{S_LW}, s{S_W}, 12')
    a(f's_lshl_b32 s{S_2HD}, s{S_J8}, 1')
    a(f's_mov_b32 s{S_PD}, 0')

    def late_setup():
        a(f's_lshl_b32 s10, s{S_W}, 15')
        a(f's_lshl_b32 s13, s{S_NT}, 8')
        a('s_add_u32 s10, s10, s13')
        a(f's_lshl_b32 s13, s{S_HG}, 21')
        a('s_add_u32 s10, s10, s13')
        a('v_lshl_add_u32 v6, v5, 11, v10')
        a(f'v_add_u32 v{L_DWO}, s10, v6')
        for i in range(1, 4):
            a(f'v_add_u32 v{L_DWO+i}, {i*(4*2048-1024)}, v{L_DWO}')
        a(f'v_and_b32 v6, 7, v2')
        a(f'v_lshlrev_b32 v{L_POLLA}, 3, v6')
        a(f's_lshl_b32 s{S_TMP}, s{S_BR}, 4')
        a(f's_add_u32 s{S_TMP}, s{S_TMP}, s{S_B}')
        a(f's_lshl_b32 s{S_TMP}, s{S_TMP}, 2')
        a(f's_add_u32 s{S_TMP}, s{S_TMP}, s{S_HG}')
        a(f's_lshl_b32 s{S_TMP+2}, s{S_TMP}, 7')
        a(f's_add_u32 s{S_TMP+2}, s{S_TMP+2}, {WS_FLAG}')
        a(f's_lshl_b32 s{S_TMP+4}, s{S_TMP}, 14')
        a(f's_mul_i32 s{S_TMP+5}, s{S_W}, 6144')
        a(f's_add_u32 s{S_TMP+5}, s{S_TMP+5}, {AUX}')
        a(f'v_lshlrev_b32 v{L_WA}, 2, v2')
        a(f's_lshl_b32 s10, s{S_B}, 5')
        a(f's_add_u32 s10, s10, s{S_HEAD}')
        a('s_lshl_b32 s10, s10, 13')
        a('v_lshlrev_b32 v6, 7, v2')
        a(f'v_add_u32 v{L_PFV}, s10, v6')
        a(f's_lshl_b32 s10, s{S_HG}, 21')
        a(f's_lshl_b32 s11, s{S_W}, 16')
        a('s_add_u32 s10, s10, s11')
        a(f's_lshl_b32 s11, s{S_NT}, 8')
        a('s_add_u32 s10, s10, s11')
        a('v_lshrrev_b32 v6, 1, v2')
        a('v_lshlrev_b32 v6, 11, v6')
        a('v_and_b32 v7, 1, v2')
        a('v_lshl_add_u32 v6, v7, 7, v6')
        a(f'v_add_u32 v{L_PFO}, s10, v6')

    a(f's_getpc_b64 s[{S_TAB}:{S_TAB+1}]')
    a.label('PCREF')
    a(f's_add_u32 s{S_TAB}, s{S_TAB}, SEQTAB-PCREF')
    a(f's_addc_u32 s{S_TAB+1}, s{S_TAB+1}, 0')
    a(f's_lshl_b32 s{S_TMP+3}, s{S_W}, 2')
    a(f's_add_u32 s{S_TMP+3}, s{S_TMP+3}, {CB_FULL}')
    a(f's_mov_b32 s{S_NB}, 0')
    for v in range(1, 4):
        a(f's_cmp_eq_u32 s{S_MT}, {v}')
        a(f's_cbranch_scc1 LOADER{v}')

    def loader(mt):
        tagn = f'{mt}'
        s1, s2 = p1_sched(mt), p2_sched(mt)
        nops = [0]; endpos = {}
        def tile(kind, slot):
            if kind in ('x', 'v', 'k'):
                base = slot*16384 if kind != 'k' else AUX
                v, s, f = {'x': (L_DX, SRD_X, c.fx), 'v': (L_DV, SRD_V, c.fv), 'k': (L_DV, SRD_K, c.fk)}[kind]
                so = S_SA
            else:
                base = 65536 + slot*16384
                v, s, f = (L_DWQ, SRD_WQ, c.fw) if kind == 'wq' else (L_DWO, SRD_WO, c.fo)
                so = S_SW
            a(f's_add_u32 m0, s{S_LW}, {base}')
            a('s_nop 0')
            for i in range(4):
                a(f'buffer_load_dwordx4 v{v+i}, s[{s}:{s+3}], s{so} offen offset:{1024*i} {f} lds')
                nops[0] += 1
        def wflag(off, val):
            a(f's_add_u32 m0, s{S_TMP+3}, {off}')
            a(f'v_mov_b32 v{L_WV}, {4*val}')
            a('s_mov_b64 exec, 1')
            a(f'global_load_lds_dword v{L_WV}, s[{S_TAB}:{S_TAB+1}]')
            a('s_mov_b64 exec, -1')
        def pload(u, count):
            r, i, own = s2[u]
            a(f's_add_u32 s10, s{S_NT}, {4*r+i}')
            a(f's_and_b32 s10, s10, 7')
            a(f's_lshl_b32 s10, s10, 11')
            a(f's_add_u32 m0, s{S_TMP+5}, {((u-1)%3)*2048}')
            a(f's_add_u32 s10, s10, s{S_TMP+4}')
            for G in range(2):
                a(f'buffer_load_dwordx4 v{V_L16}, s[{SRD_WS}:{SRD_WS+3}], s10 offen offset:{1024*G} sc1 lds')
                if count: nops[0] += 1
        def poll():
            a(f'buffer_load_dwordx2 v[{L_POLL}:{L_POLL+1}], v{L_POLLA}, s[{SRD_WS}:{SRD_WS+3}], s{S_TMP+2} offen sc1')
        def bar():
            a('s_barrier')
            a(f's_memtime s[{S_TB}:{S_TB+1}]')
            a(f's_add_u32 s{S_NB}, s{S_NB}, 1')
        def gate(n):
            nm = f'{tagn}_{n}'
            if n < 3: return
            a.label(f'GA{nm}')
            if n >= 4:
                a(f's_cmp_ge_u32 s{S_NB}, {n-3}')
                a(f's_cbranch_scc1 GB{nm}')
                bar()
                a.label(f'GB{nm}')
            if n >= 30: return
            a(f's_cmp_ge_u32 s{S_NB}, {n-2}')
            a(f's_cbranch_scc1 GO{nm}')
            a.label(f'GP{nm}')
            a(f's_getreg_b32 s10, hwreg(HW_REG_IB_STS)')
            a(f's_memtime s[{S_NOW}:{S_NOW+1}]')
            a('s_and_b32 s10, s10, 0xc0000f')
            a(f's_cmp_le_u32 s10, {c.vthr}')
            a(f's_cbranch_scc1 GO{nm}')
            a('s_waitcnt lgkmcnt(0)')
            a(f's_sub_u32 s10, s{S_NOW}, s{S_TB}')
            nb = n - 3
            bud = c.budget + (1100 if nb == 16 else 0) + (256 if (nb == 18 or (nb >= 22 and nb % 2 == 0)) else 0)
            a(f's_cmp_lt_u32 s10, {bud if n > 3 else 1 << 20}')
            a(f's_cbranch_scc1 GP{nm}')
            bar()
            a.label(f'GO{nm}')
        def tr(lane, reg):
            if c.trace:
                a('s_memrealtime s[76:77]')
                a('s_waitcnt lgkmcnt(0)')
                a(f'v_writelane_b32 v{reg}, s76, {lane}')
        PA = list(range(c.pfirst, 24))
        a(f's_memtime s[{S_TB}:{S_TB+1}]')
        for g in range(NG):
            slot = g % 4
            gate(g)
            tr(g, 50)
            if g in PA:
                if g > PA[0]:
                    a(f's_cmp_lg_u32 s{S_PD}, 0')
                    a(f's_cbranch_scc1 NP{tagn}_{g}')
                poll()
                if g > PA[0]: a.label(f'NP{tagn}_{g}')
            if g == 6:
                a(f'buffer_load_dwordx2 v[{L_TAG}:{L_TAG+1}], off, s[{SRD_DBG}:{SRD_DBG+3}], 0 sc1')
            start = nops[0]
            if g < 16:
                r, i, own = s1[g]
                a(f's_add_u32 s{S_IDX}, s{S_2HD}, {4*i+OFFR[r]}')
                a(f's_and_b32 s{S_IDX}, s{S_IDX}, 15')
                a(f's_lshl_b32 s{S_SA}, s{S_IDX}, 7')
                a(f's_lshl_b32 s{S_SW}, s{S_IDX}, 19')
                tile('x', slot); tile('wq', slot)
                if g == 0:
                    late_setup()
                    a('s_barrier')
                wflag(0, g + 1); nops[0] += 1
                if own and r in (1, 3):
                    a(f's_lshl_b32 s{S_SA}, s{S_J8}, 13')
                    if r == 3: a(f's_add_u32 s{S_SA}, s{S_SA}, 128')
                    tile('k', 0)
            else:
                u, half = divmod(g - 16, 2)
                r, i, own = s2[u]
                a(f's_add_u32 s{S_IDX}, s{S_NT}, {4*r+i}')
                a(f's_and_b32 s{S_IDX}, s{S_IDX}, 7')
                a(f's_lshl_b32 s{S_SA}, s{S_IDX}, 13')
                a(f's_lshl_b32 s{S_SW}, s{S_IDX}, 18')
                if half:
                    a(f's_add_u32 s{S_SA}, s{S_SA}, 128')
                    a(f's_add_u32 s{S_SW}, s{S_SW}, {64*2048}')
                if g in (25, 27, 29, 31): pload((g - 25) // 2 + 4, True)
                if half and own and r == 1: tile('wo', slot); tile('v', slot)
                else: tile('v', slot); tile('wo', slot)
                wflag(0, g + 1); nops[0] += 1
            if g == c.tlbw:
                a('s_mov_b64 exec, 1')
                a(f'buffer_load_dword v{L_JUNK}, v{L_PFV}, s[{SRD_V}:{SRD_V+3}], 0 offen'); nops[0] += 1
                a(f'buffer_load_dword v{L_JUNK+1}, v{L_PFO}, s[{SRD_WO}:{SRD_WO+3}], 0 offen'); nops[0] += 1
                a(f'buffer_load_dword v{L_JUNK+2}, off, s[{SRD_WS}:{SRD_WS+3}], s{S_TMP+4}'); nops[0] += 1
                a(f'buffer_load_dword v{L_JUNK+3}, off, s[{SRD_WS}:{SRD_WS+3}], s{S_TMP+2} offset:64'); nops[0] += 1
                a('s_mov_b64 exec, -1')
            if c.pfv >= 0 and g == c.pfv + mt:
                a(f'buffer_load_dword v{L_JUNK}, v{L_PFV}, s[{SRD_V}:{SRD_V+3}], 0 offen'); nops[0] += 1
            if c.pfo >= 0 and g == c.pfo + mt:
                a(f's_lshl_b32 s10, s{S_J8}, 18')
                a(f'buffer_load_dword v{L_JUNK+1}, v{L_PFO}, s[{SRD_WO}:{SRD_WO+3}], s10 offen'); nops[0] += 1
            if c.pfo2 >= 0 and g == c.pfo2 + mt:
                a(f's_add_u32 s10, s{S_J8}, 4')
                a('s_and_b32 s10, s10, 7')
                a(f's_lshl_b32 s10, s10, 18')
                a(f'buffer_load_dword v{L_JUNK+2}, v{L_PFO}, s[{SRD_WO}:{SRD_WO+3}], s10 offen'); nops[0] += 1
            n_this = nops[0] - start
            tr(32 + g, 50)
            if g == 6:
                a(f's_waitcnt vmcnt({n_this})')
                a(f's_mov_b32 s{S_CNT}, {c.spin}')
                a.label(f'TG{tagn}')
                a(f'v_cmp_eq_u64 vcc, 0, v[{L_TAG}:{L_TAG+1}]')
                a(f's_cbranch_vccz TGOK{tagn}')
                a(f's_sub_u32 s{S_CNT}, s{S_CNT}, 1')
                a(f's_cbranch_scc1 TGOK{tagn}')
                a('s_sleep 1')
                a(f'buffer_load_dwordx2 v[{L_TAG}:{L_TAG+1}], off, s[{SRD_DBG}:{SRD_DBG+3}], 0 sc1')
                a('s_waitcnt vmcnt(0)')
                a(f's_branch TG{tagn}')
                a.label(f'TGOK{tagn}')
                a(f's_mov_b32 m0, {CB_TAG}')
                a('s_mov_b64 exec, 3')
                a(f'buffer_load_dword v{L_WA}, s[{SRD_DBG}:{SRD_DBG+3}], 0 offen sc1 lds')
                a('s_mov_b64 exec, -1')
            if g in PA:
                last = g == PA[-1]
                a(f's_cmp_lg_u32 s{S_PD}, 0')
                a(f's_cbranch_scc1 PD{tagn}_{g}')
                a(f's_waitcnt vmcnt({n_this})')
                if last:
                    a(f's_mov_b32 s{S_CNT}, {c.spin}')
                    a.label(f'PC{tagn}')
                a(f'v_cmp_ne_u64 vcc, v[{L_POLL}:{L_POLL+1}], v[{L_TAG}:{L_TAG+1}]')
                if not last:
                    a(f's_cbranch_vccnz PD{tagn}_{g}')
                else:
                    a(f's_cbranch_vccz PG{tagn}')
                    a(f's_sub_u32 s{S_CNT}, s{S_CNT}, 1')
                    a(f's_cbranch_scc1 PG{tagn}')
                    a(f's_cmp_ge_u32 s{S_NB}, 21')
                    a(f's_cbranch_scc1 PB{tagn}')
                    bar()
                    a.label(f'PB{tagn}')
                    poll()
                    a('s_waitcnt vmcnt(0)')
                    a(f's_branch PC{tagn}')
                    a.label(f'PG{tagn}')
                for u in (1, 2, 3): pload(u, False)
                wflag(CB_PRDY - CB_FULL, 1)
                a(f's_mov_b32 s{S_PD}, 1')
                tr(60, 51)
                a.label(f'PD{tagn}_{g}')
        a('s_waitcnt vmcnt(0)')
        if c.trace:
            a(f'v_writelane_b32 v51, s42, 63')
            a('s_mov_b32 s76, s40')
            a('s_mov_b32 s77, s41')
            a('s_mov_b32 s78, 0x10000000')
            a('s_mov_b32 s79, 0x00020000')
            a('s_lshl_b32 s75, s2, 2')
            a(f's_add_u32 s75, s75, s{S_W}')
            a('s_lshl_b32 s75, s75, 9')
            a(f's_add_u32 s75, s75, {(130<<20)}')
            a('v_lshlrev_b32 v3, 2, v2')
            a('buffer_store_dword v50, v3, s[76:79], s75 offen')
            a('buffer_store_dword v51, v3, s[76:79], s75 offen offset:256')
        a('s_endpgm')
    for v in range(4):
        if v: a.label(f'LOADER{v}')
        loader(v)

    a.label('COMPUTE')
    if c.cprio: a(f's_setprio {c.cprio}')
    a(f's_mov_b32 s{S_W}, s{S_WID}')
    a(f's_lshl_b32 s{S_B}, s{S_MT}, 2')
    a(f's_add_u32 s{S_B}, s{S_B}, s{S_W}')
    T = ACC
    a(f's_lshl_b32 s13, s{S_W}, 8')
    a(f's_add_u32 s13, s13, {CB}')
    a(f'v_lshlrev_b32 v{T}, 2, v2')
    a(f'v_add_u32 v{V_PA}, s13, v{T}')
    a(f'v_mov_b32 v{T+1}, 0')
    a(f'ds_write_b32 v{V_PA}, v{T+1}')
    a(f'v_add_u32 v{T}, {CB_FULL}, v{T}')
    a(f'ds_write_b32 v{T}, v{T+1}')
    a(f'v_and_b32 v{V_CB}, 3, v2')
    a(f'v_lshlrev_b32 v{V_CB}, 2, v{V_CB}')
    a(f'v_add_u32 v{V_CB}, {CB_FULL}, v{V_CB}')
    a('s_waitcnt lgkmcnt(0)')
    a('s_barrier')
    a('v_and_b32 v3, 31, v2')
    a('v_lshrrev_b32 v1, 5, v2')
    a(f's_lshl_b32 s{S_LW}, s{S_W}, 12')
    a(f'v_bfe_u32 v{T}, v3, 1, 3')
    a(f'v_xor_b32 v{T}, v{T}, v1')
    for s in range(4):
        a(f'v_xor_b32 v{T+1}, {2*s}, v{T}')
        a(f'v_lshlrev_b32 v{T+1}, 4, v{T+1}')
        a(f'v_lshl_add_u32 v{T+1}, v3, 7, v{T+1}')
        a(f'v_add_u32 v{V_RA+s}, s{S_LW}, v{T+1}')
    def rt_setup(phase, T):
        L = []
        L.append(f'v_bfe_u32 v{T}, v2, 2, 2')
        L.append(f'v_bfe_u32 v{T+1}, v2, 4, 1')
        L.append(f'v_bfe_u32 v{T+2}, v2, 0, 1')
        L.append(f'v_bfe_u32 v{T+3}, v2, 1, 1')
        L.append(f'v_lshrrev_b32 v{T+4}, 5, v2')
        L.append(f'v_lshl_add_u32 v{T+4}, v{T+4}, 3, v{T}')
        L.append(f'v_lshlrev_b32 v{T+4}, 8, v{T+4}')
        L.append(f'v_add_u32 v{T+4}, 0x10000, v{T+4}')
        hi, lo = (T+1, T+2) if phase == 1 else (T+2, T+1)
        L.append(f'v_lshl_add_u32 v{T+4}, v{hi}, 5, v{T+4}')
        L.append(f'v_lshl_add_u32 v{T+4}, v{lo}, 4, v{T+4}')
        L.append(f'v_lshl_add_u32 v{T+4}, v{T+3}, 3, v{T+4}')
        for t in range(4):
            if phase == 1:
                L.append(f'v_xor_b32 v{T+5}, {t}, v{T}')
            else:
                L.append(f's_add_u32 s10, s{S_HG}, {t}')
                L.append('s_and_b32 s10, s10, 3')
                L.append(f'v_xor_b32 v{T+5}, s10, v{T}')
            L.append(f'v_lshl_add_u32 v{V_RT+t}, v{T+5}, 6, v{T+4}')
        return L
    for l in rt_setup(1, T): a(l)
    srd(SRD_WS, 40, WS_BYTES)
    srd(SRD_OUT, 36, 2 << 20)
    srd(SRD_DBG, 38, 256)
    a(f's_mul_i32 s10, s{S_W}, 6144')
    a(f's_add_u32 s10, s10, {AUX}')
    a(f'v_add_u32 v{V_SP}, s10, v{V_L16}')
    a(f's_or_b32 s13, s2, s{S_W}')
    a('s_cmp_lg_u32 s13, 0')
    a('s_cbranch_scc1 NOTAG')
    a(f'v_mov_b32 v{T}, s42')
    a(f'v_mov_b32 v{T+1}, s43')
    a(f'buffer_store_dwordx2 v[{T}:{T+1}], off, s[{SRD_DBG}:{SRD_DBG+3}], 0 sc0 sc1')
    a.label('NOTAG')
    stamp(1)

    def reads(j, s, f):
        slot = j % 4
        L = [f'ds_read_b128 {ar(AF[f]+16,4)}, v{V_RA+s} offset:{slot*16384}']
        for t in range(4):
            for u in range(2):
                L.append(f'ds_read_b64_tr_b16 {ar(AF[f]+4*t+2*u,2)}, v{V_RT+t} offset:{slot*16384+s*4096+u*1024}')
        return L
    def mfma(j, s, f, t):
        first = (j == 0 and s == 0) or (j >= 16 and j % 2 == 0 and s == 0)
        cc = '0' if first else vr(ACC+16*t, 16)
        wt, act = ar(AF[f]+4*t, 4), ar(AF[f]+16, 4)
        if j < 16: return f'{MF} {vr(ACC+16*t,16)}, {wt}, {act}, {cc}'
        return f'{MF} {vr(ACC+16*t,16)}, {act}, {wt}, {cc}'
    def cvts(u, t):
        d = VWB + 32 * (u % 2) + 8 * t
        return [f'v_cvt_pk_bf16_f32 v{d+i}, v{ACC+16*t+2*i}, v{ACC+16*t+2*i+1}' for i in range(8)]
    PF = VWB + 48
    def pstage(u, pbase=None):
        L = []
        for G in range(2):
            for t in (1, 2, 3, 0):
                o = ar(AO+16*t, 16)
                cc = '0' if (u == 0 and G == 0) else o
                p = vr(PF+4*G, 4) if u == 0 else (ar(AP+4*G, 4) if pbase is None else ar(pbase+4*G, 4))
                L.append(f'{MF} {o}, {vr(VWB+32*(u%2)+8*t+4*G,4)}, {p}, {cc}')
        return L
    def preads(u, dst=AP):
        return [f'ds_read_b128 {ar(dst+4*G,4)}, v{V_SP} offset:{((u-1)%3)*2048+1024*G}' for G in range(2)]
    def flagread(g):
        return f'ds_read_b32 v{V_FL}, v{V_CB}'
    def flagtest(g):
        a(f'v_cmp_ge_u32 vcc, {g}, v{V_FL}')
    def spin(name, rd, test):
        a(f's_mov_b32 s{S_CNT}, {c.lspin}')
        a.label(name)
        a(rd)
        a(f's_sub_u32 s{S_CNT}, s{S_CNT}, 1')
        a('s_cbranch_scc1 K_END')
        a('s_waitcnt lgkmcnt(0)')
        test()
        a(f's_cbranch_vccnz {name}')

    def step(j, s, f, lds_ops, carry, old_extra, skip_first=False, dobar=True):
        head_end = j >= 16 and j % 2 == 1 and s == 3
        u = (j - 16) // 2
        gaps = [[], [], [], []]
        per = 3 if len(lds_ops) <= 9 else 4
        for i, r in enumerate(lds_ops):
            gaps[min(3, i // per)].append(r)
        carry = list(carry)
        cv = []
        if head_end:
            for t in range(4): cv += cvts(u, t)
        ncv = 4 if u >= 2 else 8
        newn = 0
        for t in range(4):
            remain_old = (6, 4, 2, 0)[t] + (old_extra if t < 3 else 0)
            if not (t == 0 and skip_first):
                a(f's_waitcnt lgkmcnt({remain_old + newn})')
            a(mfma(j, s, f, t))
            for r in gaps[t]:
                for l in r: a(l)
                if r[-1].startswith('ds_'): newn += 1
            if carry:
                for l in carry.pop(0): a(l)
            if head_end and t >= 2:
                for l in cv[:ncv]: a(l)
                cv = cv[ncv:]
        if s == 3 and dobar: a('s_barrier')
        if j == 18 and s == 1:
            for m in pstage(0): a(m)
        nc = []
        if head_end:
            if u >= 2:
                for i, m in enumerate(pstage(u - 1)):
                    a(m)
                    for l in cv[:4]: a(l)
                    cv = cv[4:]
                assert not cv
            else:
                nc = [cv[:8], cv[8:]]
        return nc

    slow = []
    if c.progop: a(f's_lshl_b32 m0, s{S_W}, 8')
    if c.ctrace: a('s_mov_b32 s95, 0')
    spin('W0', flagread(0), lambda: flagtest(0))
    stamp(2)
    for l in reads(0, 0, 0): a(l)
    f = 0
    carry = []
    prev_extra = 0
    NM = 28
    for j in range(NM):
        if j == 16:
            softmax(a, c, stamp, rt_setup, PF)
            spin('W16', flagread(16), lambda: flagtest(16))
            stamp(5)
            for l in reads(16, 0, f): a(l)
            prev_extra = 0
        u = (j - 16) // 2
        if c.ctrace:
            if j > 0: a(f'v_writelane_b32 v1, s{96+2*((j-1)%2)}, {j-1}')
            a(f's_memtime s[{96+2*(j%2)}:{97+2*(j%2)}]')
        for s in range(4):
            if s < 3:
                ops = [[r] for r in reads(j, s+1, f ^ 1)]
                extra = []
                if j in (5, 13) and s < 2:
                    hf = 0 if j == 5 else 1
                    for ss in (2*s, 2*s+1):
                        extra.append([f'v_add_u32 v{V_T3}, {AUX}, v{V_RA+ss}', f'ds_read_b128 {ar(AK+16*hf+4*ss,4)}, v{V_T3}'])
                if j >= 21 and j % 2 == 1 and s == 1:
                    if j == 21:
                        spin('WP', f'ds_read_b32 v{V_FL}, v{V_CB} offset:{CB_PRDY-CB_FULL}', lambda: a(f'v_cmp_eq_u32 vcc, 0, v{V_FL}'))
                    extra += [[r] for r in preads(u - 1)]
                if s == 2:
                    if j + 1 < NG and j != 15:
                        ops = [[flagread(j + 1)]] + ops
                    if j == 16:
                        extra.append(['s_waitcnt vmcnt(0)', f'v_mov_b32 v{ACC_TAGT}, s{S_T0}', f'v_mov_b32 v{ACC_TAGT+1}, s{S_T0+1}',
                                      f'buffer_store_dwordx2 v[{ACC_TAGT}:{ACC_TAGT+1}], off, s[{SRD_WS}:{SRD_WS+3}], s{S_TMP+1} sc0 sc1', 's_nop 0'])
                n_lds_extra = sum(1 for e in extra if e[-1].startswith('ds_'))
                ops2 = ops + extra
                carry = step(j, s, f, ops2, carry, prev_extra)
                prev_extra = n_lds_extra
            else:
                if j + 1 < NG and j != 15:
                    a(f's_waitcnt lgkmcnt({6 + prev_extra})')
                    flagtest(j + 1)
                    nxt = reads(j+1, 0, f ^ 1) if j + 1 < NM else final_prefetch()
                    if c.slowpath:
                        a(f's_cbranch_vccnz SLOW{j}')
                        c2 = step(j, s, f, [[r] for r in nxt], carry, prev_extra, True)
                        a.label(f'JOIN{j}')
                        slow.append((j, f, list(carry), nxt, prev_extra))
                        carry = c2
                    else:
                        a(f's_cbranch_vccz RDY{j}')
                        spin(f'W{j+1}', flagread(j+1), lambda: flagtest(j+1))
                        a.label(f'RDY{j}')
                        carry = step(j, s, f, [[r] for r in nxt], carry, prev_extra, True)
                    if j + 1 == 8: stamp(3)
                    if j + 1 == 24: stamp(6)
                    prev_extra = 0
                else:
                    ops = []
                    if j == NG - 1: ops = [[r] for r in preads(7, AF[f ^ 1])]
                    carry = step(j, s, f, ops, carry, prev_extra)
            f ^= 1
    final(a, c, stamp, spin, flagread, flagtest, pstage, preads)
    if c.leak >= 0:
        a.label('LEAKL')
        a('s_memrealtime s[76:77]')
        a('s_waitcnt lgkmcnt(0)')
        a('s_sub_u32 s76, s76, s80')
        a('s_cmp_lt_u32 s76, 3000')
        a('s_cbranch_scc1 LEAKL')
    if c.padto:
        a.label('PADL')
        a('s_memrealtime s[76:77]')
        a('s_waitcnt lgkmcnt(0)')
        a(f's_sub_u32 s76, s76, s{S_T0}')
        a(f's_cmp_lt_u32 s76, {c.padto}')
        a('s_cbranch_scc1 PADL')
    if c.stamps:
        n = 11
        a('s_waitcnt vmcnt(0) lgkmcnt(0)')
        stamp(n - 1)
        a('s_waitcnt lgkmcnt(0)')
        a(f's_cmp_lg_u32 s{S_WID}, 0')
        a('s_cbranch_scc1 K_END')
        a('s_mov_b32 s76, s40')
        a('s_mov_b32 s77, s41')
        a('s_mov_b32 s78, 0x10000000')
        a('s_mov_b32 s79, 0x00020000')
        a('s_lshl_b32 s75, s2, 7')
        a(f's_add_u32 s75, s75, {128<<20}')
        a('v_mov_b32 v3, 0')
        for i in range(n):
            a(f'v_mov_b32 v4, s{80+2*i}')
            a(f'v_mov_b32 v5, s{81+2*i}')
            a(f'buffer_store_dwordx2 v[4:5], v3, s[76:79], s75 offen offset:{8*i}')
            a('s_nop 1')
    a.label('K_END')
    a('s_endpgm')
    for (j, f, cr, nxt, pe) in slow:
        a.label(f'SLOW{j}')
        if c.ctrace: a(f's_bitset1_b32 s95, {j}')
        step(j, 3, f, [], cr, pe, True, dobar=False)
        spin(f'W{j+1}', flagread(j+1), lambda: flagtest(j+1))
        for l in nxt: a(l)
        a('s_barrier')
        a(f's_branch JOIN{j}')
    a.raw('.p2align 8')
    a.raw('.type SEQTAB,@object')
    a.label('SEQTAB')
    for i in range(64): a(f'.long {i}')
    a.raw('.size SEQTAB, 256')
    return a.text()

ACC_TAGT = VWB + 32

def step_nowait(a, step, j, s, f, ops, carry):
    n0 = len(a.lines)
    r = step(j, s, f, ops, carry, 0)
    assert a.lines[n0].strip() == 's_waitcnt lgkmcnt(0)'
    del a.lines[n0]
    return r

def softmax(a, c, stamp, rt_setup, PF):
    QF = VWB; S = VWB + 32
    stamp(4)
    a(f'v_mov_b32 v{V_T3}, {CB_TAG}')
    a(f'ds_read_b64 v[{VWB+56}:{VWB+57}], v{V_T3}')
    a('s_nop 9')
    cv = [f'v_cvt_pk_bf16_f32 v{QF+i}, v{ACC+2*i}, v{ACC+2*i+1}' for i in range(32)]
    for l in cv[:8]: a(l)
    cv = cv[8:]
    for s in range(8):
        a(f'{MF} {vr(S,16)}, {ar(AK+4*s,4)}, {vr(QF+4*s,4)}, ' + ('0' if s == 0 else vr(S,16)))
        for l in cv[:4]: a(l)
        cv = cv[4:]
    cc = (128 ** -0.5) * math.log2(math.e)
    cbits = struct.unpack('<I', struct.pack('<f', cc))[0]
    a('s_waitcnt lgkmcnt(0)')
    a(f'v_readfirstlane_b32 s{S_T0}, v{VWB+56}')
    a(f'v_readfirstlane_b32 s{S_T0+1}, v{VWB+57}')
    a(f's_mov_b32 s{S_TMP+4}, {hex(cbits)}')
    a(f's_lshl_b32 s{S_TMP}, s{S_BR}, 4')
    a(f's_add_u32 s{S_TMP}, s{S_TMP}, s{S_B}')
    a(f's_lshl_b32 s{S_TMP+1}, s{S_TMP}, 2')
    a(f's_add_u32 s{S_TMP+1}, s{S_TMP+1}, s{S_HG}')
    a(f's_lshl_b32 s{S_TMP+1}, s{S_TMP+1}, 4')
    a(f's_add_u32 s{S_TMP+1}, s{S_TMP+1}, s{S_J8}')
    a(f's_lshl_b32 s{S_TMP+1}, s{S_TMP+1}, 3')
    a(f's_add_u32 s{S_TMP+1}, s{S_TMP+1}, {WS_FLAG}')
    a(f's_lshl_b32 s{S_TMP}, s{S_TMP}, 5')
    a(f's_add_u32 s{S_TMP}, s{S_TMP}, s{S_HEAD}')
    a(f's_lshl_b32 s{S_TMP}, s{S_TMP}, 11')
    t1, t2 = ACC, ACC + 1
    a(f'v_max3_f32 v{t1}, v{S}, v{S+1}, v{S+2}')
    a(f'v_max3_f32 v{t2}, v{S+3}, v{S+4}, v{S+5}')
    a(f'v_max3_f32 v{t1}, v{t1}, v{S+6}, v{S+7}')
    a(f'v_max3_f32 v{t2}, v{t2}, v{S+8}, v{S+9}')
    a(f'v_max3_f32 v{t1}, v{t1}, v{S+10}, v{S+11}')
    a(f'v_max3_f32 v{t2}, v{t2}, v{S+12}, v{S+13}')
    a(f'v_max3_f32 v{t1}, v{t1}, v{S+14}, v{S+15}')
    a(f'v_max_f32 v{t1}, v{t1}, v{t2}')
    a(f'v_mov_b32 v{t2}, v{t1}')
    a('s_nop 1')
    a(f'v_permlane32_swap_b32 v{t1}, v{t2}')
    a('s_nop 1')
    a(f'v_max_f32 v{t1}, v{t1}, v{t2}')
    a(f'v_mul_f32 v{t1}, s{S_TMP+4}, v{t1}')
    for i in range(16):
        a(f'v_fma_f32 v{S+i}, v{S+i}, s{S_TMP+4}, -v{t1}')
    for i in range(16):
        a(f'v_exp_f32 v{S+i}, v{S+i}')
    a(f'v_add_f32 v{t1}, v{S}, v{S+1}')
    a(f'v_add_f32 v{t2}, v{S+2}, v{S+3}')
    for i in range(4, 16, 2):
        a(f'v_add_f32 v{t1}, v{t1}, v{S+i}')
        a(f'v_add_f32 v{t2}, v{t2}, v{S+i+1}')
    a(f'v_add_f32 v{t1}, v{t1}, v{t2}')
    a(f'v_mov_b32 v{t2}, v{t1}')
    a('s_nop 1')
    a(f'v_permlane32_swap_b32 v{t1}, v{t2}')
    a('s_nop 1')
    a(f'v_add_f32 v{t1}, v{t1}, v{t2}')
    a(f'v_rcp_f32 v{t1}, v{t1}')
    a('s_nop 0')
    for i in range(16):
        a(f'v_mul_f32 v{S+i}, v{S+i}, v{t1}')
    for i in range(8):
        a(f'v_cvt_pk_bf16_f32 v{PF+i}, v{S+2*i}, v{S+2*i+1}')
    for G in range(2):
        a(f'buffer_store_dwordx4 {vr(PF+4*G,4)}, v{V_L16}, s[{SRD_WS}:{SRD_WS+3}], s{S_TMP} offen offset:{1024*G} sc0 sc1')
    for l in rt_setup(2, ACC + 2): a(l)
    tail_salu(a)

S_SEND = 21
S_RCV = 25
S_OUTO = 29
S_TG2 = 18
def tail_salu(a):
    B = 19
    a(f's_mul_i32 s{S_TG2}, s{S_T0}, 0x9e3779b1')
    a(f's_xor_b32 s{S_TG2}, s{S_TG2}, s{S_T0+1}')
    a(f's_lshl_b32 s{B}, s{S_BR}, 2')
    a(f's_add_u32 s{B}, s{B}, s{S_MT}')
    a(f's_lshl_b32 s{B}, s{B}, 3')
    a(f's_add_u32 s{B}, s{B}, s{S_NT}')
    a(f's_mul_i32 s{B}, s{B}, {4*3*4*4096}')
    a(f's_add_u32 s{B}, s{B}, s{S_LW}')
    a(f's_add_u32 s{B}, s{B}, {WS_X}')
    for t in (1, 2, 3):
        d = S_SEND + t
        a(f's_add_u32 s{d}, s{S_HG}, {t}')
        a(f's_and_b32 s{d}, s{d}, 3')
        a(f's_mul_i32 s{d}, s{d}, {3*16384}')
        a(f's_add_u32 s{d}, s{d}, s{B}')
        a(f's_add_u32 s{d}, s{d}, {(t-1)*16384}')
    a(f's_mul_i32 s{S_RCV}, s{S_HG}, {3*16384}')
    a(f's_add_u32 s{S_RCV}, s{S_RCV}, s{B}')
    a(f's_add_u32 s{S_RCV+1}, s{S_RCV}, 16384')
    a(f's_add_u32 s28, s{S_RCV}, 32768')
    a(f's_lshl_b32 s{S_OUTO}, s{S_B}, 17')
    a(f's_lshl_b32 s11, s{S_BR}, 11')
    a(f's_add_u32 s{S_OUTO}, s{S_OUTO}, s11')
    a(f's_lshl_b32 s11, s{S_NT}, 8')
    a(f's_add_u32 s{S_OUTO}, s{S_OUTO}, s11')
    a(f's_lshl_b32 s11, s{S_HG}, 6')
    a(f's_add_u32 s{S_OUTO}, s{S_OUTO}, s11')

JOBS = [(1, 6), (1, 7), (2, 6), (2, 7), (3, 6), (3, 7), (0, 6), (0, 7)]
WR0 = 8; WRN = 8
def slot_order():
    L = [(0, ks) for ks in range(4)]
    for k in range(7):
        for i in range(4):
            L.append((k, 4 + i)); L.append((k + 1, i))
    L += [(7, ks) for ks in range(4, 8)]
    return L
def wt_reads(n):
    k, ks = slot_order()[n]
    t, u = JOBS[k]
    j = 16 + 2*u + ks // 4; s = ks % 4
    d = WR0 + 4 * (n % WRN)
    return [f'ds_read_b64_tr_b16 {ar(d+2*x,2)}, v{V_RT+t} offset:{(j%4)*16384+s*4096+x*1024}' for x in range(2)]
def v_read(m):
    u = 6 + m // 8; ks = m % 8
    j = 16 + 2*u + ks // 4; s = ks % 4
    return f'ds_read_b128 {vr(ACC+4*m,4)}, v{V_RA+s} offset:{(j%4)*16384}'
def final_prefetch():
    L = [f'ds_read_b128 {ar(4*G,4)}, v{V_SP} offset:{((5-1)%3)*2048+1024*G}' for G in range(2)]
    for n in range(3): L += wt_reads(n)
    return L

def final(a, c, stamp, spin, flagread, flagtest, pstage, preads):
    stamp(7)
    issued = []
    done_upto = [0]
    def lds(instr, tag):
        a(instr); issued.append(tag)
    def need(tags):
        assert all(t in issued for t in tags), tags
        idx = max(i for i, t in enumerate(issued) if t in tags) + 1
        if idx > done_upto[0]:
            n = min(14, len(issued) - idx)
            a(f's_waitcnt lgkmcnt({n})')
            done_upto[0] = len(issued) - n
    issued += ['P5', 'P5'] + [f'W{n}' for n in range(3) for _ in range(2)]
    ACCB = [VWB, VWB + 16, VWB + 32]
    SB = VWB + 48
    TMP = VWB + 60
    TGV = V_PA
    PFR = {6: AP, 7: 0}
    SO = slot_order()
    q = []
    def qa(instrs, tag, full, n):
        for i in instrs: q.append((i, tag, full, n))
    seen = set(); first = {}
    for k, (t, u) in enumerate(JOBS): first.setdefault(u, k)
    for n, (k, ks) in enumerate(SO):
        t, u = JOBS[k]
        full = 16 + 2*u + ks // 4
        m = 8*(u-6) + ks
        if m not in seen:
            seen.add(m); qa([v_read(m)], f'V{m}', full, n)
        if n >= 3: qa(wt_reads(n), f'W{n}', full, n)
        if (k, ks) == (first[6], 6): qa(preads(6, AP), 'P6', 29, n)
        if (k, ks) == (first[7], 6): qa(preads(7, 0), 'P7', 31, n)
    have_full = [28]
    fl_issued = [28]
    mf_issued = [0]
    p5_done = [False]
    def pump(k):
        for _ in range(k):
            if not q: return
            up = max(x[2] for x in q[:5])
            if up > fl_issued[0] and fl_issued[0] == have_full[0] and q[0][3] - mf_issued[0] <= c.fdepth2 + 2:
                fl_issued[0] = have_full[0] + 1
                lds(flagread(fl_issued[0]), f'F{fl_issued[0]}')
                if q[0][2] > have_full[0]: return
                continue
            ins, tag, full, n = q[0]
            if tag[0] == 'W' and n - WRN >= mf_issued[0]: return
            if n - mf_issued[0] > (c.fdepth if full <= have_full[0] else c.fdepth2): return
            if tag == 'P7' and not p5_done[0]: return
            if full > have_full[0]:
                g = have_full[0] + 1
                assert full == g and fl_issued[0] == g, (full, g, fl_issued[0])
                need([f'F{g}'])
                flagtest(g)
                a(f's_cbranch_vccz FOK{g}')
                spin(f'WF{g}', flagread(g), lambda: flagtest(g))
                a.label(f'FOK{g}')
                have_full[0] = g
            q.pop(0); lds(ins, tag)
    a(f'v_and_b32 v3, 1, v{V_LANE}')
    a('v_cmp_eq_u32 vcc, 0, v3')
    a(f'v_mov_b32 v3, s{S_TG2}')
    a(f'v_mov_b32 v1, s{S_T0}')
    a(f'v_cndmask_b32 v{TGV}, v3, v1, vcc')
    valu = []
    total = [0]
    def addv(instrs, delay, front=False):
        L = [(i, total[0] + delay) for i in instrs]
        if front: valu[:0] = L
        else: valu.extend(L)
    def fill(k):
        for _ in range(k):
            if valu and valu[0][1] <= total[0]:
                a(valu.pop(0)[0])
    def send(t):
        L = []
        for i in range(8):
            x, y = TMP + (2*i) % 4, TMP + (2*i+1) % 4
            L.append(f'v_accvgpr_read_b32 v{x}, a{AO+16*t+2*i}')
            L.append(f'v_accvgpr_read_b32 v{y}, a{AO+16*t+2*i+1}')
            L.append(f'v_cvt_pk_bf16_f32 v{SB+4*(i//3)+i%3}, v{x}, v{y}')
            if i in (2, 5, 7):
                L.append(f'buffer_store_dwordx4 {vr(SB+4*(i//3),4)}, v{V_L16}, s[{SRD_WS}:{SRD_WS+3}], s{S_SEND+t} offen offset:{1024*(i//3)} {c.xst}')
        return L
    def cvj(k):
        b = ACCB[k % 3]
        return [f'v_cvt_pk_bf16_f32 v{b+i}, v{b+2*i}, v{b+2*i+1}' for i in range(8)]
    def pmf(k):
        t, u = JOBS[k]
        o = ar(AO+16*t, 16)
        return [f'{MF} {o}, {vr(ACCB[k%3]+4*G,4)}, {ar(PFR[u]+4*G,4)}, {o}' for G in range(2)]
    R = [ACC, ACC + 12, ACC + 24]
    def rreg(k, qx):
        if k == 2 and qx == 2: return SB
        return R[k] + 4*qx
    RCV = [S_RCV, S_RCV + 1, 28]
    def rloads(ks=(0, 1, 2)):
        return [f'buffer_load_dwordx4 {vr(rreg(k,qx),4)}, v{V_L16}, s[{SRD_WS}:{SRD_WS+3}], s{RCV[k]} offen offset:{1024*qx} {c.xld}' for k in ks for qx in range(3)]
    def emit_m(m, pk=3):
        a(m); total[0] += 1; pump(pk); fill(c.frate)
    need(['P5'])
    p5 = pstage(5, 0)
    for m in p5[:4]: emit_m(m)
    p5 = p5[4:]
    events = []
    for n, (k, ks) in enumerate(SO):
        t, u = JOBS[k]
        m = 8*(u-6) + ks
        need([f'W{n}', f'V{m}'])
        acc = vr(ACCB[k%3], 16)
        mf_issued[0] += 1
        if ks == 7 and k < 7:
            events += [(n + 2, 'cv', k), (n + 4, 'p0', k), (n + 5, 'p1', k)]
        a(f'{MF} {acc}, {vr(ACC+4*m,4)}, {ar(WR0+4*(n%WRN),4)}, ' + ('0' if ks == 0 else acc))
        total[0] += 1
        pump(3)
        for e in [e for e in events if e[0] == n and e[1] == 'cv']:
            addv(cvj(e[2]), 0, front=True)
        fill(c.frate)
        if p5:
            emit_m(p5.pop(0))
            if not p5:
                p5_done[0] = True
                addv([f'v_mov_b32 v{SB+4*x+3}, v{TGV}' for x in range(3)], 0)
        for e in [e for e in events if e[0] == n and e[1] != 'cv']:
            kk = e[2]
            assert not any(x[0] in cvj(kk) for x in valu)
            need([f'P{JOBS[kk][1]}'])
            G = int(e[1][1])
            emit_m(pmf(kk)[G], 2)
            if G == 1 and JOBS[kk][1] == 7:
                addv(send(JOBS[kk][0]), 2)
        if n == c.rcv_at:
            addv(rloads((0, 1)), 0)
    assert not q
    a(f'v_and_b32 v3, 31, v{V_LANE}')
    a(f'v_lshrrev_b32 v1, 5, v{V_LANE}')
    a('v_lshlrev_b32 v3, 12, v3')
    a('v_lshl_add_u32 v3, v1, 5, v3')
    while valu: a(valu.pop(0)[0])
    a(f's_mov_b32 s{S_TMP+3}, {c.spin}')
    a(f's_mov_b32 s{S_TMP+4}, 0xffff0000')
    a('s_nop 7')
    for l in cvj(7): a(l)
    for l in rloads((2,)): a(l)
    for mm in pmf(7): a(mm)
    stamp(8)
    O = ACCB[2]
    XT = V_RT
    def check(k, first_wait):
        a(f's_waitcnt vmcnt({first_wait})')
        a(f's_branch XC{k}')
        a.label(f'XR{k}')
        a(f's_sub_u32 s{S_TMP+3}, s{S_TMP+3}, 1')
        a('s_cbranch_scc1 K_END')
        if c.xsleep: a(f's_sleep {c.xsleep}')
        for l in rloads((k,)): a(l)
        a('s_waitcnt vmcnt(0)')
        a.label(f'XC{k}')
        tg = [rreg(k, qx) + 3 for qx in range(3)]
        for i, r in enumerate(tg):
            a(f'v_xor_b32 v{XT+i}, v{r}, v{TGV}')
        a(f'v_or3_b32 v0, v{XT}, v{XT+1}, v{XT+2}')
        a('v_cmp_ne_u32 vcc, 0, v0')
        a(f's_cbranch_vccnz XR{k}')
        a.label(f'XD{k}')
    def acc(k, first):
        for i in range(8):
            d = rreg(k, i // 3) + i % 3
            if first:
                a(f'v_lshlrev_b32 v{O+2*i}, 16, v{d}')
                a(f'v_and_b32 v{O+2*i+1}, s{S_TMP+4}, v{d}')
            else:
                a(f'v_lshlrev_b32 v{XT+(2*i)%4}, 16, v{d}')
                a(f'v_and_b32 v{XT+(2*i+1)%4}, s{S_TMP+4}, v{d}')
                a(f'v_add_f32 v{O+2*i}, v{O+2*i}, v{XT+(2*i)%4}')
                a(f'v_add_f32 v{O+2*i+1}, v{O+2*i+1}, v{XT+(2*i+1)%4}')
    check(0, 6); acc(0, True)
    check(1, 3); acc(1, False)
    for r in range(16):
        a(f'v_accvgpr_read_b32 v{XT+r%4}, a{AO+r}')
        a(f'v_add_f32 v{O+r}, v{O+r}, v{XT+r%4}')
    check(2, 0)
    stamp(9)
    acc(2, False)
    F = ACCB[0]
    for i in range(8):
        a(f'v_cvt_pk_bf16_f32 v{F+i}, v{O+2*i}, v{O+2*i+1}')
    a(f'buffer_store_dwordx4 {vr(F,4)}, v3, s[{SRD_OUT}:{SRD_OUT+3}], s{S_OUTO} offen')
    a(f'buffer_store_dwordx4 {vr(F+4,4)}, v3, s[{SRD_OUT}:{SRD_OUT+3}], s{S_OUTO} offen offset:16')

def build(c, out):
    if c.jobs == 'b': JOBS[:] = [(1, 6), (2, 6), (1, 7), (2, 7), (3, 6), (3, 7), (0, 6), (0, 7)]
    if c.jobs == 'c': JOBS[:] = [(1, 6), (2, 6), (3, 6), (1, 7), (2, 7), (3, 7), (0, 6), (0, 7)]
    P2POS[:] = [int(x) for x in c.p2pos]
    P1POS[:] = [int(x) for x in c.p1pos]
    hdr = open('header.txt').read().splitlines()
    t = '\n'.join(hdr) + '\n'
    t += '; @launch grid=(256,1,1) block=(512,1,1) lds=163840\n'
    t += '.amdgcn_target "amdgcn-amd-amdhsa--gfx950"\n.text\n'
    t += f'.globl {NAME}_kernel\n'
    out_l = []
    for l in gen(c).split('\n'):
        if c.nodma and ' lds' in l and 'sc1' not in l: continue
        if c.noread and ('ds_read_b128' in l or 'ds_read_b64_tr' in l): continue
        if c.nomfma and 'v_mfma' in l: continue
        if c.same and f's_and_b32 s{S_IDX}, s{S_IDX},' in l: l = f'    s_and_b32 s{S_IDX}, s{S_IDX}, 1'
        if c.noprog and f'ds_write_b32 v{V_PA}, v{V_T3}' in l: l = f'    ds_read_b32 v{V_T3}, v{V_PA}'
        if c.progop == 'append' and f'ds_write_b32 v{V_PA}, v{V_T3}' in l: l = f'    ds_append v{V_T3} offset:64'
        if c.progop == 'inc' and f'ds_write_b32 v{V_PA}, v{V_T3}' in l: l = f'    ds_add_rtn_u32 v{V_T3}, v{V_PA}, v{V_T3}'
        if c.progop == 'addtid' and f'ds_write_b32 v{V_PA}, v{V_T3}' in l: l = f'    ds_write_addtid_b32 v{V_T3} offset:64'
        if c.noflag and 's_cbranch_vccnz SLOW' in l: continue
        out_l.append(l)
    t += '\n'.join(out_l)
    t += kd(f'{NAME}_kernel', 256, 102, ACCUM_OFF)
    open(out, 'w').write(t)

if __name__ == '__main__':
    c = Cfg()
    out = sys.argv[1]
    for kv in sys.argv[2:]:
        k, v = kv.split('=', 1)
        old = getattr(c, k)
        if v == 'None': v = None
        elif isinstance(old, bool): v = v in ('1', 'True')
        elif isinstance(old, int): v = int(v)
        setattr(c, k, v)
    build(c, out)
```

```python
import sys, math, struct
from asmlib import *

NAME = 'concat_heads__mha_block_cached__gqa_block_cached__near_ridge'
MF = 'v_mfma_f32_16x16x32_bf16'

class Cfg:
    stamps = False; cyc = False; trace = False
    fx = ''; fw = ''; fk = ''; fv = ''; fo = ''
    xst = 'sc1'; xld = 'sc1'
    spin = 1 << 16
    lspin = 1 << 20
    cprio = 1
    early = 16
    psleep = 8
    pfirst = 22
    budget = 320
    pfv = -1
    pfo = -1
    pfo2 = -1
    xsleep = 0
    leak = -1
    fdepth = 10
    rcv_at = 61
    fdepth2 = 3
    jobs = 'b'
    frate = 3
    tlbw = -1
    tlbws = True
    p2pos = '4444'
    p1pos = '2222'
    vslots = 2
    vwith = 0
    urgent = 7
    minage = 5
    flead = 5
    pubat = 22
    rcv_k4 = 2
    depth = 12
    same = False
    vthr = 8
    pprog = 18
    slowpath = True
    nodma = False; noread = False; nomfma = False
    padto = 0
    lsleep = 1
    ctrace = False
    nofree = False
    noprog = False
    noflag = False
    lpace = 0
    fewflags = False
    progop = ''
    ex1 = True

S_XCD, S_MT, S_BR, S_HG, S_J8, S_W, S_B, S_NT, S_HEAD, S_WID = 3, 4, 5, 6, 7, 8, 9, 15, 12, 14
SRD_X, SRD_K, SRD_V, SRD_WQ, SRD_WO, SRD_WS, SRD_OUT, SRD_DBG = 44, 48, 52, 56, 60, 64, 68, 72
S_SA, S_SW, S_IDX, S_LW = 24, 25, 26, 27
S_2HD = 28; S_PD = 29
S_TMP = 30
S_T0 = 16
S_LW2 = 18
S_CNT = 20
S_NB = 21
S_TB = 22
S_TAB = 36
S_NOW = 38
V_FL = 0; V_T3 = 1
V_LANE = 2; V_CB = 3
V_RA = 4; V_RT = 6; V_L16 = 10; V_SP = 11
ACC = 12; VWB = 76
ACCUM_OFF = 140
AW = 0; AA = 32; AP = 44; AO = 52
AK = AO
L_DX, L_DWQ, L_DV, L_DWO = 16, 20, 24, 28
L_POLLA, L_POLL, L_TAG, L_THR, L_WA, L_WV, L_FA, L_TMP, L_THR2 = 32, 34, 36, 38, 39, 40, 41, 42, 43
L_PFV, L_PFO, L_JUNK = 44, 45, 46

WS_FLAG = 2 << 20
WS_X = 4 << 20
WS_BYTES = 16 << 20
WT0 = 65536; WSLOT = 16512; WBLK = 4128
WOFF = [0, 1024, 2080, 3104]
AUX = WT0 + 4*WSLOT
CB = 163840 - 2048
CB_FULL = CB + 1024; CB_PRDY = CB + 1040; CB_TAG = CB + 1056
OFFR = [0, 2, 1, 3]
NG = 32

P1POS = [1, 2, 3, 4]
def p1_sched(mt):
    own = {0: 0}
    for r in (1, 2, 3): own[P1POS[mt] + 4*(r-1)] = r
    def ftime(r, q): return 0 if r == 0 else P1POS[q] + 4*(r-1)
    fol = sorted([(ftime(r, q), r, q) for r in range(4) for q in range(4) if q != mt])
    L = []
    for tau in range(16):
        if tau in own: L.append((own[tau], mt, True))
        else:
            ft, r, q = fol.pop(0)
            assert ft < tau, (mt, tau, ft)
            assert r < 2 or P1POS[mt] + 4 < tau, (mt, tau, r)
            L.append((r, q, False))
    return L
P2POS = [1, 2, 3, 4]
def p2_sched(mt):
    fol0 = [(0, q, False) for q in range(4) if q != mt]
    p = P2POS[mt]
    L = [(0, mt, True)] + fol0[:p-1] + [(1, mt, True)] + fol0[p-1:]
    L += [(1, q, False) for q in sorted(range(4), key=lambda q: P2POS[q]) if q != mt]
    return L

def gen(c):
    a = Asm()
    def stamp(i):
        if c.leak == i: a('s_memrealtime s[80:81]')
        if c.stamps: a(f'{"s_memtime" if (c.cyc and i > 0) else "s_memrealtime"} s[{80+2*i}:{81+2*i}]')
    a.raw('.p2align 8')
    a.raw(f'.type {NAME}_kernel,@function')
    a.label(f'{NAME}_kernel')
    a('s_cmp_ge_u32 s2, 256')
    a('s_cbranch_scc1 K_END')
    stamp(0)
    a('s_load_dwordx16 s[16:31], s[0:1], 0')
    a('s_load_dwordx8 s[32:39], s[0:1], 64')
    a('s_load_dwordx2 s[40:41], s[0:1], 96')
    a('s_memrealtime s[42:43]')
    a(f's_and_b32 s{S_XCD}, s2, 7')
    a(f's_lshr_b32 s{S_MT}, s2, 3')
    a(f's_lshr_b32 s{S_BR}, s{S_XCD}, 2')
    a(f's_and_b32 s{S_HG}, s{S_XCD}, 3')
    a(f's_and_b32 s{S_J8}, s{S_MT}, 7')
    a(f's_lshr_b32 s{S_MT}, s{S_MT}, 3')
    a('v_lshrrev_b32 v1, 6, v0')
    a(f'v_and_b32 v{V_LANE}, 63, v0')
    a(f's_sub_u32 s{S_NT}, s{S_J8}, s{S_MT}')
    a(f'v_readfirstlane_b32 s{S_WID}, v1')
    a(f's_and_b32 s{S_NT}, s{S_NT}, 7')
    a(f's_lshl_b32 s{S_HEAD}, s{S_HG}, 3')
    a(f's_add_u32 s{S_HEAD}, s{S_HEAD}, s{S_J8}')
    a(f'v_lshlrev_b32 v{V_L16}, 4, v2')
    def srd_sel(d, pa, pb, nbytes):
        a(f's_cselect_b32 s{d}, s{pb}, s{pa}')
        a(f's_cselect_b32 s{d+1}, s{pb+1}, s{pa+1}')
        a(f's_mov_b32 s{d+2}, {hex(nbytes)}')
        a(f's_mov_b32 s{d+3}, 0x00020000')
    def srd(d, p, nbytes):
        a(f's_mov_b32 s{d}, s{p}')
        a(f's_mov_b32 s{d+1}, s{p+1}')
        a(f's_mov_b32 s{d+2}, {hex(nbytes)}')
        a(f's_mov_b32 s{d+3}, 0x00020000')
    a(f's_cmp_lt_u32 s{S_WID}, 4')
    a('s_cbranch_scc1 COMPUTE')

    a(f's_and_b32 s{S_W}, s{S_WID}, 3')
    a(f's_lshl_b32 s{S_B}, s{S_MT}, 2')
    a(f's_add_u32 s{S_B}, s{S_B}, s{S_W}')
    a('v_lshrrev_b32 v3, 3, v2')
    a('v_and_b32 v4, 7, v2')
    a('v_lshrrev_b32 v5, 4, v2')
    a(f's_lshl_b32 s10, s{S_B}, 16')
    for i in range(2):
        a(f'v_add_u32 v6, {4*i}, v5')
        a('v_xor_b32 v6, v6, v4')
        a(f'v_lshlrev_b32 v{8+i}, 4, v6')
    for i in range(4):
        a(f'v_add_u32 v7, {8*i}, v3')
        a(f'v_lshl_add_u32 v6, v7, 11, v{8+i%2}')
        a(f'v_add_u32 v6, s10, v6')
        a(f'v_subrev_u32 v{L_DX+i}, {1024*i}, v6')
    a('v_and_b32 v6, 15, v2')
    a('v_lshlrev_b32 v7, 2, v5')
    a('v_xor_b32 v6, v6, v7')
    a('v_lshlrev_b32 v12, 4, v6')
    a(f's_lshl_b32 s10, s{S_W}, 17')
    a(f's_lshl_b32 s13, s{S_HEAD}, 8')
    a('s_add_u32 s10, s10, s13')
    a('v_lshl_add_u32 v6, v5, 13, v12')
    a(f'v_add_u32 v{L_DWQ}, s10, v6')
    for i in range(1, 4):
        a(f'v_add_u32 v{L_DWQ+i}, {i*4*8192-WOFF[i]}, v{L_DWQ}')
    a(f's_lshl_b32 s11, s{S_B}, 5')
    a(f's_lshl_b32 s13, s{S_HG}, 3')
    a('s_add_u32 s11, s11, s13')
    a('s_lshl_b32 s11, s11, 13')
    for i in range(4):
        a(f'v_add_u32 v7, {8*i}, v3')
        a(f'v_lshl_add_u32 v6, v7, 8, v{8+i%2}')
        a(f'v_add_u32 v6, s11, v6')
        a(f'v_subrev_u32 v{L_DV+i}, {1024*i}, v6')
    a('s_waitcnt lgkmcnt(0)')
    a(f's_cmp_eq_u32 s{S_BR}, 1')
    srd_sel(SRD_X, 16, 26, 1 << 20)
    srd_sel(SRD_WQ, 22, 32, 8 << 20)
    srd_sel(SRD_K, 18, 28, 4 << 20)
    srd_sel(SRD_V, 20, 30, 4 << 20)
    srd_sel(SRD_WO, 24, 34, 8 << 20)
    srd(SRD_WS, 40, WS_BYTES)
    srd(SRD_DBG, 38, 256)
    a(f's_lshl_b32 s{S_LW}, s{S_W}, 12')
    a(f's_mul_i32 s{S_LW2}, s{S_W}, {WBLK}')
    a(f's_lshl_b32 s{S_2HD}, s{S_J8}, 1')
    a(f's_mov_b32 s{S_PD}, 0')

    def late_setup():
        a(f's_lshl_b32 s10, s{S_W}, 15')
        a(f's_lshl_b32 s13, s{S_NT}, 8')
        a('s_add_u32 s10, s10, s13')
        a(f's_lshl_b32 s13, s{S_HG}, 21')
        a('s_add_u32 s10, s10, s13')
        a('v_lshl_add_u32 v6, v5, 11, v12')
        a(f'v_add_u32 v{L_DWO}, s10, v6')
        for i in range(1, 4):
            a(f'v_add_u32 v{L_DWO+i}, {i*4*2048-WOFF[i]}, v{L_DWO}')
        a(f'v_and_b32 v6, 7, v2')
        a(f'v_lshlrev_b32 v{L_POLLA}, 3, v6')
        a(f's_lshl_b32 s{S_TMP}, s{S_BR}, 4')
        a(f's_add_u32 s{S_TMP}, s{S_TMP}, s{S_B}')
        a(f's_lshl_b32 s{S_TMP}, s{S_TMP}, 2')
        a(f's_add_u32 s{S_TMP}, s{S_TMP}, s{S_HG}')
        a(f's_lshl_b32 s{S_TMP+2}, s{S_TMP}, 7')
        a(f's_add_u32 s{S_TMP+2}, s{S_TMP+2}, {WS_FLAG}')
        a(f's_lshl_b32 s{S_TMP+4}, s{S_TMP}, 14')
        a(f's_mul_i32 s{S_TMP+5}, s{S_W}, 6144')
        a(f's_add_u32 s{S_TMP+5}, s{S_TMP+5}, {AUX}')
        a(f'v_lshlrev_b32 v{L_WA}, 2, v2')
        a(f's_lshl_b32 s10, s{S_B}, 5')
        a(f's_add_u32 s10, s10, s{S_HEAD}')
        a('s_lshl_b32 s10, s10, 13')
        a('v_lshlrev_b32 v6, 7, v2')
        a(f'v_add_u32 v{L_PFV}, s10, v6')
        a(f's_lshl_b32 s10, s{S_HG}, 21')
        a(f's_lshl_b32 s11, s{S_W}, 16')
        a('s_add_u32 s10, s10, s11')
        a(f's_lshl_b32 s11, s{S_NT}, 8')
        a('s_add_u32 s10, s10, s11')
        a('v_lshrrev_b32 v6, 1, v2')
        a('v_lshlrev_b32 v6, 11, v6')
        a('v_and_b32 v7, 1, v2')
        a('v_lshl_add_u32 v6, v7, 7, v6')
        a(f'v_add_u32 v{L_PFO}, s10, v6')

    a(f's_getpc_b64 s[{S_TAB}:{S_TAB+1}]')
    a.label('PCREF')
    a(f's_add_u32 s{S_TAB}, s{S_TAB}, SEQTAB-PCREF')
    a(f's_addc_u32 s{S_TAB+1}, s{S_TAB+1}, 0')
    a(f's_lshl_b32 s{S_TMP+3}, s{S_W}, 2')
    a(f's_add_u32 s{S_TMP+3}, s{S_TMP+3}, {CB_FULL}')
    a(f's_mov_b32 s{S_NB}, 0')
    for v in range(1, 4):
        a(f's_cmp_eq_u32 s{S_MT}, {v}')
        a(f's_cbranch_scc1 LOADER{v}')

    def loader(mt):
        tagn = f'{mt}'
        s1, s2 = p1_sched(mt), p2_sched(mt)
        nops = [0]; endpos = {}
        def tile(kind, slot):
            if kind in ('x', 'v', 'k'):
                base = slot*16384 if kind != 'k' else AUX
                v, s, f = {'x': (L_DX, SRD_X, c.fx), 'v': (L_DV, SRD_V, c.fv), 'k': (L_DV, SRD_K, c.fk)}[kind]
                so = S_SA
            else:
                base = WT0 + slot*WSLOT
                v, s, f = (L_DWQ, SRD_WQ, c.fw) if kind == 'wq' else (L_DWO, SRD_WO, c.fo)
                so = S_SW
            wt = kind in ('wq', 'wo')
            a(f's_add_u32 m0, s{S_LW2 if wt else S_LW}, {base}')
            a('s_nop 0')
            for i in range(4):
                a(f'buffer_load_dwordx4 v{v+i}, s[{s}:{s+3}], s{so} offen offset:{WOFF[i] if wt else 1024*i} {f} lds')
                nops[0] += 1
        def wflag(off, val):
            a(f's_add_u32 m0, s{S_TMP+3}, {off}')
            a(f'v_mov_b32 v{L_WV}, {4*val}')
            a('s_mov_b64 exec, 1')
            a(f'global_load_lds_dword v{L_WV}, s[{S_TAB}:{S_TAB+1}]')
            a('s_mov_b64 exec, -1')
        def pload(u, count):
            r, i, own = s2[u]
            a(f's_add_u32 s10, s{S_NT}, {4*r+i}')
            a(f's_and_b32 s10, s10, 7')
            a(f's_lshl_b32 s10, s10, 11')
            a(f's_add_u32 m0, s{S_TMP+5}, {((u-1)%3)*2048}')
            a(f's_add_u32 s10, s10, s{S_TMP+4}')
            for G in range(2):
                a(f'buffer_load_dwordx4 v{V_L16}, s[{SRD_WS}:{SRD_WS+3}], s10 offen offset:{1024*G} sc1 lds')
                if count: nops[0] += 1
        def poll():
            a(f'buffer_load_dwordx2 v[{L_POLL}:{L_POLL+1}], v{L_POLLA}, s[{SRD_WS}:{SRD_WS+3}], s{S_TMP+2} offen sc1')
        def bar():
            a('s_barrier')
            a(f's_memtime s[{S_TB}:{S_TB+1}]')
            a(f's_add_u32 s{S_NB}, s{S_NB}, 1')
        def gate(n):
            nm = f'{tagn}_{n}'
            if n < 3: return
            a.label(f'GA{nm}')
            if n >= 4:
                a(f's_cmp_ge_u32 s{S_NB}, {n-3}')
                a(f's_cbranch_scc1 GB{nm}')
                bar()
                a.label(f'GB{nm}')
            if n >= 30: return
            a(f's_cmp_ge_u32 s{S_NB}, {n-2}')
            a(f's_cbranch_scc1 GO{nm}')
            a.label(f'GP{nm}')
            a(f's_getreg_b32 s10, hwreg(HW_REG_IB_STS)')
            a(f's_memtime s[{S_NOW}:{S_NOW+1}]')
            a('s_and_b32 s10, s10, 0xc0000f')
            a(f's_cmp_le_u32 s10, {c.vthr}')
            a(f's_cbranch_scc1 GO{nm}')
            a('s_waitcnt lgkmcnt(0)')
            a(f's_sub_u32 s10, s{S_NOW}, s{S_TB}')
            nb = n - 3
            bud = c.budget + (1100 if nb == 16 else 0) + (256 if (nb == 18 or (nb >= 22 and nb % 2 == 0)) else 0)
            a(f's_cmp_lt_u32 s10, {bud if n > 3 else 1 << 20}')
            a(f's_cbranch_scc1 GP{nm}')
            bar()
            a.label(f'GO{nm}')
        def tr(lane, reg):
            if c.trace:
                a('s_memrealtime s[76:77]')
                a('s_waitcnt lgkmcnt(0)')
                a(f'v_writelane_b32 v{reg}, s76, {lane}')
        PA = list(range(c.pfirst, 24))
        a(f's_memtime s[{S_TB}:{S_TB+1}]')
        for g in range(NG):
            slot = g % 4
            gate(g)
            tr(g, 50)
            if g in PA:
                if g > PA[0]:
                    a(f's_cmp_lg_u32 s{S_PD}, 0')
                    a(f's_cbranch_scc1 NP{tagn}_{g}')
                poll()
                if g > PA[0]: a.label(f'NP{tagn}_{g}')
            if g == 6:
                a(f'buffer_load_dwordx2 v[{L_TAG}:{L_TAG+1}], off, s[{SRD_DBG}:{SRD_DBG+3}], 0 sc1')
            start = nops[0]
            if g < 16:
                r, i, own = s1[g]
                a(f's_add_u32 s{S_IDX}, s{S_2HD}, {4*i+OFFR[r]}')
                a(f's_and_b32 s{S_IDX}, s{S_IDX}, 15')
                a(f's_lshl_b32 s{S_SA}, s{S_IDX}, 7')
                a(f's_lshl_b32 s{S_SW}, s{S_IDX}, 19')
                tile('x', slot); tile('wq', slot)
                if g == 0:
                    late_setup()
                    a('s_barrier')
                wflag(0, g + 1); nops[0] += 1
                if own and r in (1, 3):
                    a(f's_lshl_b32 s{S_SA}, s{S_J8}, 13')
                    if r == 3: a(f's_add_u32 s{S_SA}, s{S_SA}, 128')
                    tile('k', 0)
            else:
                u, half = divmod(g - 16, 2)
                r, i, own = s2[u]
                a(f's_add_u32 s{S_IDX}, s{S_NT}, {4*r+i}')
                a(f's_and_b32 s{S_IDX}, s{S_IDX}, 7')
                a(f's_lshl_b32 s{S_SA}, s{S_IDX}, 13')
                a(f's_lshl_b32 s{S_SW}, s{S_IDX}, 18')
                if half:
                    a(f's_add_u32 s{S_SA}, s{S_SA}, 128')
                    a(f's_add_u32 s{S_SW}, s{S_SW}, {64*2048}')
                if g in (25, 27, 29, 31): pload((g - 25) // 2 + 4, True)
                if half and own and r == 1: tile('wo', slot); tile('v', slot)
                else: tile('v', slot); tile('wo', slot)
                wflag(0, g + 1); nops[0] += 1
            if g == c.tlbw:
                a('s_mov_b64 exec, 1')
                a(f'buffer_load_dword v{L_JUNK}, v{L_PFV}, s[{SRD_V}:{SRD_V+3}], 0 offen'); nops[0] += 1
                a(f'buffer_load_dword v{L_JUNK+1}, v{L_PFO}, s[{SRD_WO}:{SRD_WO+3}], 0 offen'); nops[0] += 1
                a(f'buffer_load_dword v{L_JUNK+2}, v{L_PFV}, s[{SRD_K}:{SRD_K+3}], 0 offen'); nops[0] += 1
                if c.tlbws:
                    a(f's_lshl_b32 s10, s{S_J8}, 11')
                    a(f's_add_u32 s10, s10, s{S_TMP+4}')
                    a(f'buffer_load_dword v{L_JUNK+3}, off, s[{SRD_WS}:{SRD_WS+3}], s10 sc1'); nops[0] += 1
                    a(f's_mov_b32 s10, {WS_FLAG + (1<<20)}')
                    a(f'buffer_load_dword v{L_JUNK+4}, off, s[{SRD_WS}:{SRD_WS+3}], s10 sc1'); nops[0] += 1
                    a(f's_lshl_b32 s10, s{S_BR}, 2')
                    a(f's_add_u32 s10, s10, s{S_MT}')
                    a(f's_lshl_b32 s10, s10, 3')
                    a(f's_add_u32 s10, s10, s{S_NT}')
                    a(f's_mul_i32 s10, s10, {4*3*4*4096}')
                    a(f's_mul_i32 s11, s{S_W}, {3*16384}')
                    a('s_add_u32 s10, s10, s11')
                    a(f's_add_u32 s10, s10, {WS_X + 3072}')
                    a(f'buffer_load_dword v{L_JUNK+5}, off, s[{SRD_WS}:{SRD_WS+3}], s10 sc1'); nops[0] += 1
                a('s_mov_b64 exec, -1')
            if c.pfv >= 0 and g == c.pfv + mt:
                a(f'buffer_load_dword v{L_JUNK}, v{L_PFV}, s[{SRD_V}:{SRD_V+3}], 0 offen'); nops[0] += 1
            if c.pfo >= 0 and g == c.pfo + mt:
                a(f's_lshl_b32 s10, s{S_J8}, 18')
                a(f'buffer_load_dword v{L_JUNK+1}, v{L_PFO}, s[{SRD_WO}:{SRD_WO+3}], s10 offen'); nops[0] += 1
            if c.pfo2 >= 0 and g == c.pfo2 + mt:
                a(f's_add_u32 s10, s{S_J8}, 4')
                a('s_and_b32 s10, s10, 7')
                a(f's_lshl_b32 s10, s10, 18')
                a(f'buffer_load_dword v{L_JUNK+2}, v{L_PFO}, s[{SRD_WO}:{SRD_WO+3}], s10 offen'); nops[0] += 1
            n_this = nops[0] - start
            tr(32 + g, 50)
            if g == 6:
                a(f's_waitcnt vmcnt({n_this})')
                a(f's_mov_b32 s{S_CNT}, {c.spin}')
                a.label(f'TG{tagn}')
                a(f'v_cmp_eq_u64 vcc, 0, v[{L_TAG}:{L_TAG+1}]')
                a(f's_cbranch_vccz TGOK{tagn}')
                a(f's_sub_u32 s{S_CNT}, s{S_CNT}, 1')
                a(f's_cbranch_scc1 TGOK{tagn}')
                a('s_sleep 1')
                a(f'buffer_load_dwordx2 v[{L_TAG}:{L_TAG+1}], off, s[{SRD_DBG}:{SRD_DBG+3}], 0 sc1')
                a('s_waitcnt vmcnt(0)')
                a(f's_branch TG{tagn}')
                a.label(f'TGOK{tagn}')
                a(f's_mov_b32 m0, {CB_TAG}')
                a('s_mov_b64 exec, 3')
                a(f'buffer_load_dword v{L_WA}, s[{SRD_DBG}:{SRD_DBG+3}], 0 offen sc1 lds')
                a('s_mov_b64 exec, -1')
            if g in PA:
                last = g == PA[-1]
                a(f's_cmp_lg_u32 s{S_PD}, 0')
                a(f's_cbranch_scc1 PD{tagn}_{g}')
                a(f's_waitcnt vmcnt({n_this})')
                if last:
                    a(f's_mov_b32 s{S_CNT}, {c.spin}')
                    a.label(f'PC{tagn}')
                a(f'v_cmp_ne_u64 vcc, v[{L_POLL}:{L_POLL+1}], v[{L_TAG}:{L_TAG+1}]')
                if not last:
                    a(f's_cbranch_vccnz PD{tagn}_{g}')
                else:
                    a(f's_cbranch_vccz PG{tagn}')
                    a(f's_sub_u32 s{S_CNT}, s{S_CNT}, 1')
                    a(f's_cbranch_scc1 PG{tagn}')
                    a(f's_cmp_ge_u32 s{S_NB}, 21')
                    a(f's_cbranch_scc1 PB{tagn}')
                    bar()
                    a.label(f'PB{tagn}')
                    poll()
                    a('s_waitcnt vmcnt(0)')
                    a(f's_branch PC{tagn}')
                    a.label(f'PG{tagn}')
                for u in (1, 2, 3): pload(u, False)
                wflag(CB_PRDY - CB_FULL, 1)
                a(f's_mov_b32 s{S_PD}, 1')
                tr(60, 51)
                a.label(f'PD{tagn}_{g}')
        a('s_waitcnt vmcnt(0)')
        if c.trace:
            a(f'v_writelane_b32 v51, s42, 63')
            a('s_mov_b32 s76, s40')
            a('s_mov_b32 s77, s41')
            a('s_mov_b32 s78, 0x10000000')
            a('s_mov_b32 s79, 0x00020000')
            a('s_lshl_b32 s75, s2, 2')
            a(f's_add_u32 s75, s75, s{S_W}')
            a('s_lshl_b32 s75, s75, 9')
            a(f's_add_u32 s75, s75, {(130<<20)}')
            a('v_lshlrev_b32 v3, 2, v2')
            a('buffer_store_dword v50, v3, s[76:79], s75 offen')
            a('buffer_store_dword v51, v3, s[76:79], s75 offen offset:256')
        a('s_endpgm')
    for v in range(4):
        if v: a.label(f'LOADER{v}')
        loader(v)

    a.label('COMPUTE')
    if c.cprio: a(f's_setprio {c.cprio}')
    a(f's_mov_b32 s{S_W}, s{S_WID}')
    a(f's_lshl_b32 s{S_B}, s{S_MT}, 2')
    a(f's_add_u32 s{S_B}, s{S_B}, s{S_W}')
    T = ACC
    a(f'v_lshlrev_b32 v{T}, 2, v2')
    a(f'v_mov_b32 v{T+1}, 0')
    a(f'v_add_u32 v{T}, {CB_FULL}, v{T}')
    a(f'ds_write_b32 v{T}, v{T+1}')
    a(f'v_and_b32 v{V_CB}, 3, v2')
    a(f'v_lshlrev_b32 v{V_CB}, 2, v{V_CB}')
    a(f'v_add_u32 v{V_CB}, {CB_FULL}, v{V_CB}')
    a('s_waitcnt lgkmcnt(0)')
    a('s_barrier')
    a(f's_lshl_b32 s{S_LW}, s{S_W}, 12')
    a(f'v_and_b32 v{T}, 15, v2')
    a(f'v_lshrrev_b32 v{T+1}, 4, v2')
    a(f'v_lshrrev_b32 v{T+2}, 1, v{T}')
    a(f'v_lshlrev_b32 v{T+3}, 7, v{T}')
    a(f'v_add_u32 v{T+3}, s{S_LW}, v{T+3}')
    a(f'v_xor_b32 v{T+4}, v{T+2}, v{T+1}')
    a(f'v_lshl_add_u32 v{V_RA}, v{T+4}, 4, v{T+3}')
    a(f'v_xor_b32 v{V_RA+1}, 64, v{V_RA}')
    a(f'v_lshrrev_b32 v{T+4}, 1, v{T+1}')
    a(f'v_xor_b32 v{T+4}, v{T+4}, v{T+2}')
    a(f'v_lshl_add_u32 v{T+4}, v{T+4}, 4, v{T+3}')
    a(f'v_and_b32 v{T+5}, 1, v{T+1}')
    a(f'v_lshl_add_u32 v{T+4}, v{T+5}, 3, v{T+4}')
    a(f'v_add_u32 v{V_SP}, {AUX}, v{T+4}')
    def rt_setup(phase, T):
        L = []
        L.append(f'v_bfe_u32 v{T}, v2, 2, 2')
        L.append(f'v_bfe_u32 v{T+1}, v2, 4, 1')
        L.append(f'v_lshrrev_b32 v{T+2}, 5, v2')
        L.append(f'v_and_b32 v{T+3}, 3, v2')
        L.append(f'v_mul_u32_u24 v{T+1}, 2080, v{T+1}')
        L.append(f'v_mul_u32_u24 v{T+2}, {WBLK}, v{T+2}')
        L.append(f'v_add3_u32 v{T+4}, v{T+1}, v{T+2}, 0')
        L.append(f'v_lshl_add_u32 v{T+4}, v{T}, 8, v{T+4}')
        L.append(f'v_lshl_add_u32 v{T+4}, v{T+3}, 3, v{T+4}')
        L.append(f'v_add_u32 v{T+4}, {WT0}, v{T+4}')
        for t in range(4):
            if phase == 1:
                L.append(f'v_xor_b32 v{T+5}, {t}, v{T}')
            else:
                L.append(f's_add_u32 s10, s{S_HG}, {t}')
                L.append('s_and_b32 s10, s10, 3')
                L.append(f'v_xor_b32 v{T+5}, s10, v{T}')
            L.append(f'v_lshl_add_u32 v{V_RT+t}, v{T+5}, 6, v{T+4}')
        return L
    for l in rt_setup(1, T): a(l)
    srd(SRD_WS, 40, WS_BYTES)
    srd(SRD_OUT, 36, 2 << 20)
    srd(SRD_DBG, 38, 256)
    a(f's_or_b32 s13, s2, s{S_W}')
    a('s_cmp_lg_u32 s13, 0')
    a('s_cbranch_scc1 NOTAG')
    a(f'v_mov_b32 v{T}, s42')
    a(f'v_mov_b32 v{T+1}, s43')
    a(f'buffer_store_dwordx2 v[{T}:{T+1}], off, s[{SRD_DBG}:{SRD_DBG+3}], 0 sc0 sc1')
    a.label('NOTAG')
    stamp(1)
    phase1(a, c, stamp)
    softmax(a, c, stamp, rt_setup)
    phase2(a, c, stamp)
    if c.leak >= 0:
        a.label('LEAKL')
        a('s_memrealtime s[76:77]')
        a('s_waitcnt lgkmcnt(0)')
        a('s_sub_u32 s76, s76, s80')
        a('s_cmp_lt_u32 s76, 3000')
        a('s_cbranch_scc1 LEAKL')
    if c.padto:
        a.label('PADL')
        a('s_memrealtime s[76:77]')
        a('s_waitcnt lgkmcnt(0)')
        a(f's_sub_u32 s76, s76, s{S_T0}')
        a(f's_cmp_lt_u32 s76, {c.padto}')
        a('s_cbranch_scc1 PADL')
    if c.stamps:
        n = 11
        a('s_waitcnt vmcnt(0) lgkmcnt(0)')
        stamp(n - 1)
        a('s_waitcnt lgkmcnt(0)')
        a(f's_cmp_lg_u32 s{S_WID}, 0')
        a('s_cbranch_scc1 K_END')
        a('s_mov_b32 s76, s40')
        a('s_mov_b32 s77, s41')
        a('s_mov_b32 s78, 0x10000000')
        a('s_mov_b32 s79, 0x00020000')
        a('s_lshl_b32 s75, s2, 7')
        a(f's_add_u32 s75, s75, {128<<20}')
        a('v_mov_b32 v3, 0')
        for i in range(n):
            a(f'v_mov_b32 v4, s{80+2*i}')
            a(f'v_mov_b32 v5, s{81+2*i}')
            a(f'buffer_store_dwordx2 v[4:5], v3, s[76:79], s75 offen offset:{8*i}')
            a('s_nop 1')
    a.label('K_END')
    a('s_endpgm')
    for g in OOL:
        a.label(f'SP{g[0]}{g[1]}')
        spin(a, c, f'W{g[0]}{g[1]}', flagread(g[0]), flagtest(*g))
        a(f's_branch OK{g[0]}{g[1]}')
    a.raw('.p2align 8')
    a.raw('.type SEQTAB,@object')
    a.label('SEQTAB')
    for i in range(64): a(f'.long {i}')
    a.raw('.size SEQTAB, 256')
    return a.text()

PF = VWB + 48
ACC_TAGT = VWB + 32

def spin(a, c, name, rd, test):
    a(f's_mov_b32 s{S_CNT}, {c.lspin}')
    a.label(name)
    a(rd)
    a(f's_sub_u32 s{S_CNT}, s{S_CNT}, 1')
    a('s_cbranch_scc1 K_END')
    a('s_waitcnt lgkmcnt(0)')
    a(test)
    a(f's_cbranch_vccnz {name}')
def flagread(kind):
    return f'ds_read_b32 v{V_FL}, v{V_CB}' + ('' if kind == 'F' else f' offset:{CB_PRDY-CB_FULL}')
def flagtest(kind, g):
    return f'v_cmp_ge_u32 vcc, {g}, v{V_FL}' if kind == 'F' else f'v_cmp_eq_u32 vcc, 0, v{V_FL}'

OOL = []
class Sched:
    def __init__(s, a, c):
        s.a, s.c = a, c
        s.M = []; s.L = []; s.V = []
        s.lastuse = {}
        s.wn = 0; s.an = 0
    def m(s, ins, needs=(), uses=(), vneed=(), post=None):
        for r in uses: s.lastuse[r] = len(s.M)
        s.M.append(dict(ins=ins, needs=list(needs), vneed=list(vneed), post=post))
        return len(s.M) - 1
    def load(s, instrs, tag, reg, first, gate=None, rel=None, vreq=None, depth=None):
        after = -1
        for r in (reg if isinstance(reg, (list, tuple)) else [reg]):
            after = max(after, s.lastuse.get(r, -1))
        d = s.c.depth if depth is None else depth
        for it in instrs:
            s.L.append(dict(it=it, tag=tag, after=max(after + 1, first - d), first=first, gate=gate, rel=rel, vreq=vreq))
    def valu(s, instrs, after, group=None):
        for i in instrs: s.V.append(dict(ins=i, after=after, group=group))
    def run(s, have, first_bar, last_bar, stamps={}):
        a, c = s.a, s.c
        s.L.sort(key=lambda e: e['first'])
        s.V.sort(key=lambda e: e['after'])
        Q = []; seen = set(have)
        for e in s.L:
            g = e['gate']
            if g is not None and g not in seen:
                seen.add(g)
                pos = len(Q)
                tgt = e['after'] - c.flead
                while pos > 0 and Q[pos-1]['after'] > tgt and Q[pos-1].get('chk') is None and Q[pos-1]['tag'][0] != '?': pos -= 1
                Q.insert(pos, dict(it=[flagread(g[0])], tag=f'?{g}', after=tgt, first=0, gate=None, rel=None, vreq=None))
                e['chk'] = g
            Q.append(e)
        issued = []; done = [0]; itime = []
        relcount = {}
        for e in Q:
            if e['rel'] is not None: relcount[e['rel']] = relcount.get(e['rel'], 0) + 1
        relpos = {}
        nextbar = [first_bar]
        nm = [0]
        V = s.V
        def need(tags):
            if not tags: return
            for t in tags:
                if any(e['tag'] == t for e in Q):
                    while any(e['tag'] == t for e in Q):
                        assert pump(1, True), ('stuck', t, Q[0])
            idx = max(i for i, t in enumerate(issued) if t in tags) + 1
            if idx > done[0]:
                while idx < len(issued) and nm[0] - itime[idx] >= c.minage: idx += 1
                n = min(14, len(issued) - idx)
                a(f's_waitcnt lgkmcnt({n})')
                done[0] = len(issued) - n
        def pump(k, force=False):
            n = 0
            while n < k and Q:
                e = Q[0]
                if e['after'] > nm[0]:
                    if not (force and e['after'] - nm[0] <= 0): break
                if e['vreq'] is not None and any(v['group'] == e['vreq'] for v in V): break
                if e.get('chk') is not None:
                    g = e['chk']
                    need([f'?{g}'])
                    a(flagtest(*g))
                    a(f's_cbranch_vccnz SP{g[0]}{g[1]}')
                    a.label(f'OK{g[0]}{g[1]}')
                    OOL.append(g)
                    e['chk'] = None
                    n += 1
                Q.pop(0)
                for l in e['it']: a(l)
                issued.append(e['tag']); itime.append(nm[0])
                if e['rel'] is not None:
                    relcount[e['rel']] -= 1; relpos[e['rel']] = len(issued)
                n += len(e['it'])
            return n
        def fill(k):
            n = 0
            while n < k and V and V[0]['after'] <= nm[0]:
                a(V.pop(0)['ins']); n += 1
            return n
        pump(99)
        for i, m in enumerate(s.M):
            flushed = False
            for g in m['vneed']:
                while any(v['group'] == g for v in V):
                    assert V[0]['after'] <= nm[0], ('valu not ready', i, g, V[0])
                    a(V.pop(0)['ins']); flushed = True
            last_valu = [l for l in a.lines[-2:] if l.strip().startswith('v_cvt')]
            if m['vneed'] and last_valu: a('s_nop 1')
            need(m['needs'])
            a(m['ins']); nm[0] += 1
            if i in stamps: stamps[i]()
            b = nextbar[0]
            if b <= last_bar and relcount.get(b, 0) == 0 and relpos.get(b, 0) <= done[0]:
                a('s_barrier'); nextbar[0] += 1
            urgent = Q and Q[0]['first'] - nm[0] <= c.urgent
            n = pump(2 if urgent else 1)
            fill((m['post'] or c.vslots) - (c.vslots - c.vwith) * min(n, 1))
        assert not Q, Q[0]
        assert nextbar[0] > last_bar, nextbar
        return V

def wt_items(j, kk, t, e, d):
    return [[f'ds_read_b64_tr_b16 {ar(d+2*u,2)}, v{V_RT+t} offset:{(j%4)*WSLOT+kk*2*WBLK+u*1024+e*32}'] for u in range(2)]
def act_item(j, kk, ai, dst):
    return [[f'ds_read_b128 {dst}, v{V_RA+kk} offset:{(j%4)*16384+ai*2048}']]
def p_items(u, d):
    return [[f'ds_read_b128 {ar(d+4*G,4)}, v{V_SP} offset:{((u-1)%3)*2048+1024*G}'] for G in range(2)]

def gemm_stage(S, j, gate):
    lastw = {}
    for kk in range(2):
        aslot = [AA + 4*((S.an + x) % 3) for x in range(2)]; S.an += 2
        for h in range(2):
            base = len(S.M)
            if h == 0:
                for ai in range(2):
                    S.load(act_item(j, kk, ai, ar(aslot[ai], 4)), f'A{j}_{kk}_{ai}', aslot[ai], base + 4*ai - 0.5, gate, j)
            fr = []
            for w4 in range(4):
                t, e = 2*h + w4 // 2, w4 % 2
                d = AW + 4*(S.wn % 8); S.wn += 1
                S.load(wt_items(j, kk, t, e, d), f'W{j}_{kk}_{t}_{e}', d, base + w4, gate, j)
                fr.append((t, e, d))
            for ai in range(2):
                for (t, e, d) in fr:
                    r = ACC + 16*t + 8*e + 4*ai
                    first = kk == 0 and (j == 0 or (j >= 16 and j % 2 == 0))
                    ops = f'{ar(d,4)}, {ar(aslot[ai],4)}' if j < 16 else f'{ar(aslot[ai],4)}, {ar(d,4)}'
                    vn = [f'cv{(j-16)//2-1}_{t}_{e}'] if (first and j >= 18) else []
                    lastw[(t, e, ai)] = S.m(f'{MF} {vr(r,4)}, {ops}, ' + ('0' if first else vr(r, 4)),
                                            needs=[f'W{j}_{kk}_{t}_{e}', f'A{j}_{kk}_{ai}'], uses=[d, aslot[ai]], vneed=vn)
    return lastw

def phase1(a, c, stamp):
    spin(a, c, 'WF0', flagread('F'), flagtest('F', 0))
    stamp(2)
    S = Sched(a, c)
    st = {}
    for j in range(16):
        if j in (5, 13):
            hf = 0 if j == 5 else 1
            base = len(S.M)
            n = 0
            for Tp in range(2):
                for e in range(2):
                    it = []
                    for ki in range(2):
                        x = [f'v_xor_b32 v{V_T3}, {(4*Tp+2*e)<<4}, v{V_SP}'] if ki == 0 else []
                        it.append(x + [f'ds_read_b64 {ar(AK+8*(2*hf+Tp)+4*ki+2*e,2)}, v{V_T3} offset:{2048*ki}'])
                    S.load(it, f'K{hf}_{Tp}_{e}', 'none', base + 12.7 + 4*n, ('F', j), j, depth=8)
                    n += 1
        if j == 8: st[len(S.M)] = lambda: stamp(3)
        gemm_stage(S, j, ('F', j))
    V = S.run({('F', 0)}, 0, 15, st)
    assert not V

def red2(a, op, x0, x1, t0, t1):
    for sw in ('v_permlane32_swap_b32', 'v_permlane16_swap_b32'):
        a(f'v_mov_b32 v{t0}, v{x0}')
        a(f'v_mov_b32 v{t1}, v{x1}')
        a('s_nop 0')
        a(f'{sw} v{x0}, v{t0}')
        a(f'{sw} v{x1}, v{t1}')
        a('s_nop 0')
        a(f'{op} v{x0}, v{x0}, v{t0}')
        a(f'{op} v{x1}, v{x1}, v{t1}')

def softmax(a, c, stamp, rt_setup):
    QF = VWB; S = VWB + 32
    stamp(4)
    a(f'v_mov_b32 v{V_T3}, {CB_TAG}')
    a(f'ds_read_b64 v[{VWB+56}:{VWB+57}], v{V_T3}')
    def qcv(t):
        L = []
        for ai in range(2):
            for e in range(2):
                for x in range(2):
                    r = ACC + 16*t + 8*e + 4*ai + 2*x
                    L.append(f'v_cvt_pk_bf16_f32 v{QF+8*t+4*ai+2*e+x}, v{r}, v{r+1}')
        return L
    for l in qcv(0) + qcv(1): a(l)
    for t in range(4):
        rest = qcv(t + 2) if t < 2 else []
        for mi in range(2):
            for ki in range(2):
                d = vr(S + 8*mi + 4*ki, 4)
                a(f'{MF} {d}, {ar(AK+8*t+4*ki,4)}, {vr(QF+8*t+4*mi,4)}, ' + ('0' if t == 0 else d))
                for l in rest[:2]: a(l)
                rest = rest[2:]
    cc = (128 ** -0.5) * math.log2(math.e)
    cbits = struct.unpack('<I', struct.pack('<f', cc))[0]
    a('s_waitcnt lgkmcnt(0)')
    a(f'v_readfirstlane_b32 s{S_T0}, v{VWB+56}')
    a(f'v_readfirstlane_b32 s{S_T0+1}, v{VWB+57}')
    a(f's_mov_b32 s{S_TMP+4}, {hex(cbits)}')
    a(f's_lshl_b32 s{S_TMP}, s{S_BR}, 4')
    a(f's_add_u32 s{S_TMP}, s{S_TMP}, s{S_B}')
    a(f's_lshl_b32 s{S_TMP+1}, s{S_TMP}, 2')
    a(f's_add_u32 s{S_TMP+1}, s{S_TMP+1}, s{S_HG}')
    a(f's_lshl_b32 s{S_TMP+1}, s{S_TMP+1}, 4')
    a(f's_add_u32 s{S_TMP+1}, s{S_TMP+1}, s{S_J8}')
    a(f's_lshl_b32 s{S_TMP+1}, s{S_TMP+1}, 3')
    a(f's_add_u32 s{S_TMP+1}, s{S_TMP+1}, {WS_FLAG}')
    a(f's_lshl_b32 s{S_TMP}, s{S_TMP}, 5')
    a(f's_add_u32 s{S_TMP}, s{S_TMP}, s{S_HEAD}')
    a(f's_lshl_b32 s{S_TMP}, s{S_TMP}, 11')
    x = [ACC, ACC + 1]; t0, t1 = ACC + 2, ACC + 3
    for mi in range(2): a(f'v_max3_f32 v{x[mi]}, v{S+8*mi}, v{S+8*mi+1}, v{S+8*mi+2}')
    for mi in range(2): a(f'v_max3_f32 v{x[mi]}, v{x[mi]}, v{S+8*mi+3}, v{S+8*mi+4}')
    for mi in range(2): a(f'v_max3_f32 v{x[mi]}, v{x[mi]}, v{S+8*mi+5}, v{S+8*mi+6}')
    for mi in range(2): a(f'v_max_f32 v{x[mi]}, v{x[mi]}, v{S+8*mi+7}')
    red2(a, 'v_max_f32', x[0], x[1], t0, t1)
    for mi in range(2): a(f'v_mul_f32 v{x[mi]}, s{S_TMP+4}, v{x[mi]}')
    for i in range(16):
        a(f'v_fma_f32 v{S+i}, v{S+i}, s{S_TMP+4}, -v{x[i//8]}')
    for i in range(16):
        a(f'v_exp_f32 v{S+i}, v{S+i}')
    for mi in range(2): a(f'v_add_f32 v{x[mi]}, v{S+8*mi}, v{S+8*mi+1}')
    for i in range(2, 8):
        for mi in range(2): a(f'v_add_f32 v{x[mi]}, v{x[mi]}, v{S+8*mi+i}')
    red2(a, 'v_add_f32', x[0], x[1], t0, t1)
    for mi in range(2): a(f'v_rcp_f32 v{x[mi]}, v{x[mi]}')
    a('s_nop 0')
    for i in range(16):
        a(f'v_mul_f32 v{S+i}, v{S+i}, v{x[i//8]}')
    for i in range(8):
        a(f'v_cvt_pk_bf16_f32 v{PF+i}, v{S+2*i}, v{S+2*i+1}')
    for G in range(2):
        a(f'buffer_store_dwordx4 {vr(PF+4*G,4)}, v{V_L16}, s[{SRD_WS}:{SRD_WS+3}], s{S_TMP} offen offset:{1024*G} sc0 sc1')
    for l in rt_setup(2, ACC + 4): a(l)
    a(f's_mul_i32 s10, s{S_W}, 6144')
    a(f's_add_u32 s10, s10, {AUX}')
    a(f'v_add_u32 v{V_SP}, s10, v{V_L16}')
    tail_salu(a)

S_SEND = 21
S_RCV = 25
S_OUTO = 29
S_TG2 = 18
def tail_salu(a):
    B = 19
    a(f's_mul_i32 s{S_TG2}, s{S_T0}, 0x9e3779b1')
    a(f's_xor_b32 s{S_TG2}, s{S_TG2}, s{S_T0+1}')
    a(f's_lshl_b32 s{B}, s{S_BR}, 2')
    a(f's_add_u32 s{B}, s{B}, s{S_MT}')
    a(f's_lshl_b32 s{B}, s{B}, 3')
    a(f's_add_u32 s{B}, s{B}, s{S_NT}')
    a(f's_mul_i32 s{B}, s{B}, {4*3*4*4096}')
    a(f's_add_u32 s{B}, s{B}, s{S_LW}')
    a(f's_add_u32 s{B}, s{B}, {WS_X}')
    for t in (1, 2, 3):
        d = S_SEND + t
        a(f's_add_u32 s{d}, s{S_HG}, {t}')
        a(f's_and_b32 s{d}, s{d}, 3')
        a(f's_mul_i32 s{d}, s{d}, {3*16384}')
        a(f's_add_u32 s{d}, s{d}, s{B}')
        a(f's_add_u32 s{d}, s{d}, {(t-1)*16384}')
    a(f's_mul_i32 s{S_RCV}, s{S_HG}, {3*16384}')
    a(f's_add_u32 s{S_RCV}, s{S_RCV}, s{B}')
    a(f's_add_u32 s{S_RCV+1}, s{S_RCV}, 16384')
    a(f's_add_u32 s28, s{S_RCV}, 32768')
    a(f's_lshl_b32 s{S_OUTO}, s{S_B}, 17')
    a(f's_lshl_b32 s11, s{S_BR}, 11')
    a(f's_add_u32 s{S_OUTO}, s{S_OUTO}, s11')
    a(f's_lshl_b32 s11, s{S_NT}, 8')
    a(f's_add_u32 s{S_OUTO}, s{S_OUTO}, s11')
    a(f's_lshl_b32 s11, s{S_HG}, 6')
    a(f's_add_u32 s{S_OUTO}, s{S_OUTO}, s11')

JOBS = [(1, 6), (2, 6), (1, 7), (2, 7), (3, 6), (3, 7), (0, 6), (0, 7)]
HZ = 4

def phase2(a, c, stamp):
    spin(a, c, 'WF16', flagread('F'), flagtest('F', 16))
    stamp(5)
    S = Sched(a, c)
    st = {}
    def pstage(u, preg, ptag, tiles=(1, 2, 3, 0)):
        last = {}
        for t in tiles:
            for e in range(2):
                for qi in range(2):
                    o = ar(AO + 16*t + 8*e + 4*qi, 4)
                    p = vr(PF + 4*qi, 4) if u == 0 else ar(preg + 4*qi, 4)
                    last[t] = S.m(f'{MF} {o}, {vr(VWB+32*(u%2)+8*t+4*e,4)}, {p}, ' + ('0' if u == 0 else o),
                                  needs=[ptag] if ptag else [], uses=[preg, preg + 4] if u else [], vneed=[f'cv{u}_{t}_{e}'])
        return last
    for j in range(16, 28):
        u = (j - 16) // 2
        base = len(S.M)
        if j == 24: st[base] = lambda: stamp(6)
        if j >= 21 and j % 2 == 1:
            S.load(p_items(u - 1, AP), f'P{u-1}', [AP, AP + 4], base + 12.7, ('P', 1) if j == 21 else ('F', j), j, depth=6)
        if j == 16:
            S.valu(['s_waitcnt vmcnt(0)', f'v_mov_b32 v{ACC_TAGT}, s{S_T0}', f'v_mov_b32 v{ACC_TAGT+1}, s{S_T0+1}',
                    f'buffer_store_dwordx2 v[{ACC_TAGT}:{ACC_TAGT+1}], off, s[{SRD_WS}:{SRD_WS+3}], s{S_TMP+1} sc0 sc1'], base + c.pubat)
        lw = gemm_stage(S, j, ('F', j))
        if j % 2 == 1:
            for t in range(4):
                for e in range(2):
                    r = ACC + 16*t + 8*e; d = VWB + 32*(u % 2) + 8*t + 4*e
                    S.valu([f'v_cvt_pk_bf16_f32 v{d+i}, v{r+2*i}, v{r+2*i+1}' for i in range(4)], lw[(t, e, 1)] + HZ, f'cv{u}_{t}_{e}')
            if u >= 2: pstage(u - 1, AP, f'P{u-1}')
        if j == 18: pstage(0, None, None)
    st[len(S.M)] = lambda: stamp(7)
    ACCB = [VWB, VWB + 16, VWB + 32]
    SB = VWB + 48; TMP = VWB + 60
    TGV = V_CB
    PB = AA
    S.load(p_items(5, PB), 'P5', [AA, AA + 4, AA + 8], len(S.M), ('F', 27), None)
    pstage(5, PB, 'P5')
    p5end = len(S.M)
    PFR = {6: AP, 7: PB}
    seenv = set(); seenp = set()
    pend = None
    def send(t):
        L = []
        for i in range(8):
            x, y = TMP + (2*i) % 4, TMP + (2*i+1) % 4
            L.append(f'v_accvgpr_read_b32 v{x}, a{AO+16*t+2*i}')
            L.append(f'v_accvgpr_read_b32 v{y}, a{AO+16*t+2*i+1}')
            L.append(f'v_cvt_pk_bf16_f32 v{SB+4*(i//3)+i%3}, v{x}, v{y}')
            if i in (2, 5, 7):
                L.append(f'buffer_store_dwordx4 {vr(SB+4*(i//3),4)}, v{V_L16}, s[{SRD_WS}:{SRD_WS+3}], s{S_SEND+t} offen offset:{1024*(i//3)} {c.xst}')
        return L
    def cvj(k, e):
        b = ACCB[k % 3] + 8*e
        return [f'v_cvt_pk_bf16_f32 v{b+i}, v{b+2*i}, v{b+2*i+1}' for i in range(4)]
    def pmf_ins(k):
        t, u = JOBS[k]; L = []
        for e in range(2):
            for qi in range(2):
                o = ar(AO + 16*t + 8*e + 4*qi, 4)
                L.append((e, f'{MF} {o}, {vr(ACCB[k%3]+8*e,4)}, {ar(PFR[u]+4*qi,4)}, {o}'))
        return L
    def pmf(k):
        t, u = JOBS[k]
        for e, ins in pmf_ins(k):
            i = S.m(ins, needs=[f'P{u}'], uses=[PFR[u], PFR[u] + 4], vneed=[f'cj{k}_{e}'], post=c.frate)
        if u == 7: S.valu(send(t), i + HZ, f'send{t}')
    R = [ACC, ACC + 12, ACC + 24]
    def rreg(k, qx):
        if k == 2 and qx == 2: return SB
        return R[k] + 4*qx
    RCV = [S_RCV, S_RCV + 1, 28]
    def rloads(ks):
        return [f'buffer_load_dwordx4 {vr(rreg(k,qx),4)}, v{V_L16}, s[{SRD_WS}:{SRD_WS+3}], s{RCV[k]} offen offset:{1024*qx} {c.xld}' for k in ks for qx in range(3)]
    tagset = False
    for k, (t, u) in enumerate(JOBS):
        lw = {}
        for k4 in range(4):
            j = 16 + 2*u + k4 // 2; kk = k4 % 2
            base = len(S.M)
            vreg = [ACC + 32*(u-6) + 8*k4 + 4*ki for ki in range(2)]
            if (u, k4) not in seenv:
                seenv.add((u, k4))
                for ki in range(2):
                    tt, ee = divmod((vreg[ki] - ACC) // 8, 2)
                    S.load(act_item(j, kk, ki, vr(vreg[ki], 4)), f'V{u}_{k4}_{ki}', 'none', base + ki - 0.5, ('F', j), None, vreq=f'cv5_{tt}_{ee}', depth=c.fdepth)
            fr = []
            for e in range(2):
                d = AW + 4*(S.wn % 8); S.wn += 1
                S.load(wt_items(j, kk, t, e, d), f'X{k}_{k4}_{e}', d, base + 2*e, ('F', j), None, depth=c.fdepth)
                fr.append(d)
            if k4 == 3 and u not in seenp:
                seenp.add(u)
                S.load(p_items(u, PFR[u]), f'P{u}', [PFR[u], PFR[u] + 4], base + 3.5, ('F', j), None, depth=c.fdepth)
            for e in range(2):
                for ki in range(2):
                    r = vr(ACCB[k % 3] + 8*e + 4*ki, 4)
                    lw[e] = S.m(f'{MF} {r}, {vr(vreg[ki],4)}, {ar(fr[e],4)}, ' + ('0' if k4 == 0 else r),
                                needs=[f'X{k}_{k4}_{e}', f'V{u}_{k4}_{ki}'], uses=[fr[e]], post=c.frate)
            if k4 == 1 and k > 0: pmf(k - 1)
            if u == 7 and k4 == 3 and not tagset:
                tagset = True
                S.valu([f'v_and_b32 v{V_T3}, 1, v{V_LANE}', f'v_cmp_eq_u32 vcc, 0, v{V_T3}', f'v_mov_b32 v{V_T3}, s{S_TG2}',
                        f'v_mov_b32 v{V_FL}, s{S_T0}', f'v_cndmask_b32 v{TGV}, v{V_T3}, v{V_FL}, vcc'] +
                       [f'v_mov_b32 v{SB+4*x+3}, v{TGV}' for x in range(3)], len(S.M) - 3)
            if k == 7 and k4 == c.rcv_k4:
                S.valu(rloads((0, 1)), len(S.M) - 2)
        if k < 7:
            for e in range(2): S.valu(cvj(k, e), lw[e] + HZ - 0.5, f'cj{k}_{e}')
    V = S.run({('F', 16)}, 16, 27, st)
    for v in V: a(v['ins'])
    VO = V_RA
    a(f'v_and_b32 v{VO}, 15, v{V_LANE}')
    a(f'v_lshlrev_b32 v{VO}, 12, v{VO}')
    a(f'v_bfe_u32 v{V_T3}, v{V_LANE}, 4, 1')
    a(f'v_lshl_add_u32 v{VO}, v{V_T3}, 5, v{VO}')
    a(f'v_lshrrev_b32 v{V_T3}, 5, v{V_LANE}')
    a(f'v_lshl_add_u32 v{VO}, v{V_T3}, 4, v{VO}')
    a(f's_mov_b32 s{S_TMP+3}, {c.spin}')
    a(f's_mov_b32 s{S_TMP+4}, 0xffff0000')
    a(f's_add_u32 s{S_TMP+5}, s{S_OUTO}, 65536')
    for e in range(2):
        for l in cvj(7, e): a(l)
    for l in rloads((2,)): a(l)
    for e, ins in pmf_ins(7): a(ins)
    stamp(8)
    O = ACCB[2]
    XT = V_RT
    def check(k, first_wait):
        a(f's_waitcnt vmcnt({first_wait})')
        a(f's_branch XC{k}')
        a.label(f'XR{k}')
        a(f's_sub_u32 s{S_TMP+3}, s{S_TMP+3}, 1')
        a('s_cbranch_scc1 K_END')
        if c.xsleep: a(f's_sleep {c.xsleep}')
        for l in rloads((k,)): a(l)
        a('s_waitcnt vmcnt(0)')
        a.label(f'XC{k}')
        tg = [rreg(k, qx) + 3 for qx in range(3)]
        for i, r in enumerate(tg):
            a(f'v_xor_b32 v{XT+i}, v{r}, v{TGV}')
        a(f'v_or3_b32 v0, v{XT}, v{XT+1}, v{XT+2}')
        a('v_cmp_ne_u32 vcc, 0, v0')
        a(f's_cbranch_vccnz XR{k}')
    def acc(k, first):
        for i in range(8):
            d = rreg(k, i // 3) + i % 3
            if first:
                a(f'v_lshlrev_b32 v{O+2*i}, 16, v{d}')
                a(f'v_and_b32 v{O+2*i+1}, s{S_TMP+4}, v{d}')
            else:
                a(f'v_lshlrev_b32 v{XT+(2*i)%4}, 16, v{d}')
                a(f'v_and_b32 v{XT+(2*i+1)%4}, s{S_TMP+4}, v{d}')
                a(f'v_add_f32 v{O+2*i}, v{O+2*i}, v{XT+(2*i)%4}')
                a(f'v_add_f32 v{O+2*i+1}, v{O+2*i+1}, v{XT+(2*i+1)%4}')
    check(0, 6); acc(0, True)
    check(1, 3); acc(1, False)
    for r in range(16):
        a(f'v_accvgpr_read_b32 v{XT+r%4}, a{AO+r}')
        a(f'v_add_f32 v{O+r}, v{O+r}, v{XT+r%4}')
    check(2, 0)
    stamp(9)
    acc(2, False)
    F = ACCB[0]
    for e in range(2):
        for qi in range(2):
            for x in range(2):
                r = O + 8*e + 4*qi + 2*x
                a(f'v_cvt_pk_bf16_f32 v{F+4*qi+2*e+x}, v{r}, v{r+1}')
    a('s_nop 1')
    for qi in range(2):
        for x in range(2):
            a(f'v_permlane16_swap_b32 v{F+4*qi+x}, v{F+4*qi+2+x}')
    a('s_nop 1')
    a(f'buffer_store_dwordx4 {vr(F,4)}, v{VO}, s[{SRD_OUT}:{SRD_OUT+3}], s{S_OUTO} offen')
    a(f'buffer_store_dwordx4 {vr(F+4,4)}, v{VO}, s[{SRD_OUT}:{SRD_OUT+3}], s{S_TMP+5} offen')

def build(c, out):
    P2POS[:] = [int(x) for x in c.p2pos]
    P1POS[:] = [int(x) for x in c.p1pos]
    hdr = open('header.txt').read().splitlines()
    t = '\n'.join(hdr) + '\n'
    t += '; @launch grid=(256,1,1) block=(512,1,1) lds=163840\n'
    t += '.amdgcn_target "amdgcn-amd-amdhsa--gfx950"\n.text\n'
    t += f'.globl {NAME}_kernel\n'
    out_l = []
    for l in gen(c).split('\n'):
        if c.nodma and ' lds' in l and 'sc1' not in l: continue
        if c.noread and ('ds_read_b128' in l or 'ds_read_b64_tr' in l): continue
        if c.nomfma and 'v_mfma' in l: continue
        if c.same and f's_and_b32 s{S_IDX}, s{S_IDX},' in l: l = f'    s_and_b32 s{S_IDX}, s{S_IDX}, 1'
        out_l.append(l)
    t += '\n'.join(out_l)
    t += kd(f'{NAME}_kernel', 256, 102, ACCUM_OFF)
    open(out, 'w').write(t)

if __name__ == '__main__':
    c = Cfg()
    out = sys.argv[1]
    for kv in sys.argv[2:]:
        k, v = kv.split('=', 1)
        old = getattr(c, k)
        if v == 'None': v = None
        elif isinstance(old, bool): v = v in ('1', 'True')
        elif isinstance(old, int): v = int(v)
        setattr(c, k, v)
    build(c, out)
```

```python
import sys, math, struct
from asmlib import *

NAME = 'concat_heads__mha_block_cached__gqa_block_cached__near_ridge'
MF = 'v_mfma_f32_16x16x32_bf16'

class Cfg:
    stamps = False; cyc = False; trace = False
    fx = ''; fw = ''; fk = ''; fv = ''; fo = ''
    xst = 'sc1'; xld = 'sc1'
    spin = 1 << 16
    lspin = 1 << 20
    cprio = 1
    early = 16
    psleep = 8
    pfirst = 22
    budget = 320
    pfv = -1
    pfo = -1
    pfo2 = -1
    xsleep = 0
    leak = -1
    fdepth = 10
    rcv_at = 61
    fdepth2 = 3
    jobs = 'b'
    frate = 3
    tlbw = -1
    tlbws = True
    p2pos = '4444'
    p1pos = '2222'
    vslots = 2
    leakj = -1
    rhg = 0
    rbr = 0
    jrot = 0
    fine = -1
    ost = ''
    vwith = 0
    urgent = 7
    minage = 5
    flead = 5
    pubat = 22
    rcv_k4 = 2
    depth = 12
    same = False
    vthr = 8
    pprog = 18
    slowpath = True
    nodma = False; noread = False; nomfma = False
    padto = 0
    lsleep = 1
    ctrace = False
    nofree = False
    noprog = False
    noflag = False
    lpace = 0
    fewflags = False
    progop = ''
    ex1 = True

S_XCD, S_MT, S_BR, S_HG, S_J8, S_W, S_B, S_NT, S_HEAD, S_WID = 3, 4, 5, 6, 7, 8, 9, 15, 12, 14
SRD_X, SRD_K, SRD_V, SRD_WQ, SRD_WO, SRD_WS, SRD_OUT, SRD_DBG = 44, 48, 52, 56, 60, 64, 68, 72
S_SA, S_SW, S_IDX, S_LW = 24, 25, 26, 27
S_2HD = 28; S_PD = 29
S_TMP = 30
S_T0 = 16
S_LW2 = 18
S_CNT = 20
S_NB = 21
S_TB = 22
S_TAB = 36
S_NOW = 38
V_FL = 0; V_T3 = 1
V_LANE = 2; V_CB = 3
V_RA = 4; V_RT = 6; V_L16 = 10; V_SP = 11
ACC = 12; VWB = 76
ACCUM_OFF = 140
AW = 0; AA = 32; AP = 44; AO = 52
AK = AO
L_DX, L_DWQ, L_DV, L_DWO = 16, 20, 24, 28
L_POLLA, L_POLL, L_TAG, L_THR, L_WA, L_WV, L_FA, L_TMP, L_THR2 = 32, 34, 36, 38, 39, 40, 41, 42, 43
L_PFV, L_PFO, L_JUNK = 44, 45, 46

WS_FLAG = 2 << 20
WS_X = 4 << 20
WS_BYTES = 16 << 20
WT0 = 65536; WSLOT = 16512; WBLK = 4128
WOFF = [0, 1024, 2080, 3104]
AUX = WT0 + 4*WSLOT
CB = 163840 - 2048
CB_FULL = CB + 1024; CB_PRDY = CB + 1040; CB_TAG = CB + 1056
OFFR = [0, 2, 1, 3]
NG = 32

P1POS = [1, 2, 3, 4]
def p1_sched(mt):
    own = {0: 0}
    for r in (1, 2, 3): own[P1POS[mt] + 4*(r-1)] = r
    def ftime(r, q): return 0 if r == 0 else P1POS[q] + 4*(r-1)
    fol = sorted([(ftime(r, q), r, q) for r in range(4) for q in range(4) if q != mt])
    L = []
    for tau in range(16):
        if tau in own: L.append((own[tau], mt, True))
        else:
            ft, r, q = fol.pop(0)
            assert ft < tau, (mt, tau, ft)
            assert r < 2 or P1POS[mt] + 4 < tau, (mt, tau, r)
            L.append((r, q, False))
    return L
P2POS = [1, 2, 3, 4]
def p2_sched(mt):
    fol0 = [(0, q, False) for q in range(4) if q != mt]
    p = P2POS[mt]
    L = [(0, mt, True)] + fol0[:p-1] + [(1, mt, True)] + fol0[p-1:]
    L += [(1, q, False) for q in sorted(range(4), key=lambda q: P2POS[q]) if q != mt]
    return L

def gen(c):
    a = Asm()
    def stamp(i, fine=False):
        if c.fine >= 0 and not fine and 0 < i < 10: return
        if c.leak == i: a('s_memrealtime s[80:81]')
        if c.stamps: a(f'{"s_memtime" if (c.cyc and i > 0) else "s_memrealtime"} s[{80+2*i}:{81+2*i}]')
    a.raw('.p2align 8')
    a.raw(f'.type {NAME}_kernel,@function')
    a.label(f'{NAME}_kernel')
    a('s_cmp_ge_u32 s2, 256')
    a('s_cbranch_scc1 K_END')
    stamp(0)
    a('s_load_dwordx16 s[16:31], s[0:1], 0')
    a('s_load_dwordx8 s[32:39], s[0:1], 64')
    a('s_load_dwordx2 s[40:41], s[0:1], 96')
    a('s_memrealtime s[42:43]')
    a(f's_and_b32 s{S_XCD}, s2, 7')
    a(f's_lshr_b32 s{S_MT}, s2, 3')
    a(f's_lshr_b32 s{S_BR}, s{S_XCD}, 2')
    a(f's_and_b32 s{S_HG}, s{S_XCD}, 3')
    if c.jrot: a(f's_add_u32 s{S_J8}, s{S_MT}, {c.jrot}')
    a(f's_and_b32 s{S_J8}, s{S_J8 if c.jrot else S_MT}, 7')
    a(f's_lshr_b32 s{S_MT}, s{S_MT}, 3')
    a('v_lshrrev_b32 v1, 6, v0')
    a(f'v_and_b32 v{V_LANE}, 63, v0')
    a(f's_sub_u32 s{S_NT}, s{S_J8}, s{S_MT}')
    a(f'v_readfirstlane_b32 s{S_WID}, v1')
    a(f's_and_b32 s{S_NT}, s{S_NT}, 7')
    a(f's_lshl_b32 s{S_HEAD}, s{S_HG}, 3')
    a(f's_add_u32 s{S_HEAD}, s{S_HEAD}, s{S_J8}')
    a(f'v_lshlrev_b32 v{V_L16}, 4, v2')
    def srd_sel(d, pa, pb, nbytes):
        a(f's_cselect_b32 s{d}, s{pb}, s{pa}')
        a(f's_cselect_b32 s{d+1}, s{pb+1}, s{pa+1}')
        a(f's_mov_b32 s{d+2}, {hex(nbytes)}')
        a(f's_mov_b32 s{d+3}, 0x00020000')
    def srd(d, p, nbytes):
        a(f's_mov_b32 s{d}, s{p}')
        a(f's_mov_b32 s{d+1}, s{p+1}')
        a(f's_mov_b32 s{d+2}, {hex(nbytes)}')
        a(f's_mov_b32 s{d+3}, 0x00020000')
    a(f's_cmp_lt_u32 s{S_WID}, 4')
    a('s_cbranch_scc1 COMPUTE')

    a(f's_and_b32 s{S_W}, s{S_WID}, 3')
    a(f's_lshl_b32 s{S_B}, s{S_MT}, 2')
    a(f's_add_u32 s{S_B}, s{S_B}, s{S_W}')
    a('v_lshrrev_b32 v3, 3, v2')
    a('v_and_b32 v4, 7, v2')
    a('v_lshrrev_b32 v5, 4, v2')
    a(f's_lshl_b32 s10, s{S_B}, 16')
    for i in range(2):
        a(f'v_add_u32 v6, {4*i}, v5')
        a('v_xor_b32 v6, v6, v4')
        a(f'v_lshlrev_b32 v{8+i}, 4, v6')
    for i in range(4):
        a(f'v_add_u32 v7, {8*i}, v3')
        a(f'v_lshl_add_u32 v6, v7, 11, v{8+i%2}')
        a(f'v_add_u32 v6, s10, v6')
        a(f'v_subrev_u32 v{L_DX+i}, {1024*i}, v6')
    a('v_and_b32 v6, 15, v2')
    a('v_lshlrev_b32 v7, 2, v5')
    a('v_xor_b32 v6, v6, v7')
    a('v_lshlrev_b32 v12, 4, v6')
    a(f's_lshl_b32 s10, s{S_W}, 17')
    a(f's_lshl_b32 s13, s{S_HEAD}, 8')
    a('s_add_u32 s10, s10, s13')
    a('v_lshl_add_u32 v6, v5, 13, v12')
    a(f'v_add_u32 v{L_DWQ}, s10, v6')
    for i in range(1, 4):
        a(f'v_add_u32 v{L_DWQ+i}, {i*4*8192-WOFF[i]}, v{L_DWQ}')
    a(f's_lshl_b32 s11, s{S_B}, 5')
    a(f's_lshl_b32 s13, s{S_HG}, 3')
    a('s_add_u32 s11, s11, s13')
    a('s_lshl_b32 s11, s11, 13')
    for i in range(4):
        a(f'v_add_u32 v7, {8*i}, v3')
        a(f'v_lshl_add_u32 v6, v7, 8, v{8+i%2}')
        a(f'v_add_u32 v6, s11, v6')
        a(f'v_subrev_u32 v{L_DV+i}, {1024*i}, v6')
    a('s_waitcnt lgkmcnt(0)')
    a(f's_cmp_eq_u32 s{S_BR}, 1')
    srd_sel(SRD_X, 16, 26, 1 << 20)
    srd_sel(SRD_WQ, 22, 32, 8 << 20)
    srd_sel(SRD_K, 18, 28, 4 << 20)
    srd_sel(SRD_V, 20, 30, 4 << 20)
    srd_sel(SRD_WO, 24, 34, 8 << 20)
    srd(SRD_WS, 40, WS_BYTES)
    srd(SRD_DBG, 38, 256)
    a(f's_lshl_b32 s{S_LW}, s{S_W}, 12')
    a(f's_mul_i32 s{S_LW2}, s{S_W}, {WBLK}')
    a(f's_lshl_b32 s{S_2HD}, s{S_J8}, 1')
    if c.rhg:
        a(f's_mul_i32 s10, s{S_HG}, {c.rhg}')
        a(f's_add_u32 s{S_2HD}, s{S_2HD}, s10')
    if c.rbr:
        a(f's_mul_i32 s10, s{S_BR}, {c.rbr}')
        a(f's_add_u32 s{S_2HD}, s{S_2HD}, s10')
    a(f's_mov_b32 s{S_PD}, 0')

    def late_setup():
        a(f's_lshl_b32 s10, s{S_W}, 15')
        a(f's_lshl_b32 s13, s{S_NT}, 8')
        a('s_add_u32 s10, s10, s13')
        a(f's_lshl_b32 s13, s{S_HG}, 21')
        a('s_add_u32 s10, s10, s13')
        a('v_lshl_add_u32 v6, v5, 11, v12')
        a(f'v_add_u32 v{L_DWO}, s10, v6')
        for i in range(1, 4):
            a(f'v_add_u32 v{L_DWO+i}, {i*4*2048-WOFF[i]}, v{L_DWO}')
        a(f'v_and_b32 v6, 7, v2')
        a(f'v_lshlrev_b32 v{L_POLLA}, 3, v6')
        a(f's_lshl_b32 s{S_TMP}, s{S_BR}, 4')
        a(f's_add_u32 s{S_TMP}, s{S_TMP}, s{S_B}')
        a(f's_lshl_b32 s{S_TMP}, s{S_TMP}, 2')
        a(f's_add_u32 s{S_TMP}, s{S_TMP}, s{S_HG}')
        a(f's_lshl_b32 s{S_TMP+2}, s{S_TMP}, 7')
        a(f's_add_u32 s{S_TMP+2}, s{S_TMP+2}, {WS_FLAG}')
        a(f's_lshl_b32 s{S_TMP+4}, s{S_TMP}, 14')
        a(f's_mul_i32 s{S_TMP+5}, s{S_W}, 6144')
        a(f's_add_u32 s{S_TMP+5}, s{S_TMP+5}, {AUX}')
        a(f'v_lshlrev_b32 v{L_WA}, 2, v2')
        a(f's_lshl_b32 s10, s{S_B}, 5')
        a(f's_add_u32 s10, s10, s{S_HEAD}')
        a('s_lshl_b32 s10, s10, 13')
        a('v_lshlrev_b32 v6, 7, v2')
        a(f'v_add_u32 v{L_PFV}, s10, v6')
        a(f's_lshl_b32 s10, s{S_HG}, 21')
        a(f's_lshl_b32 s11, s{S_W}, 16')
        a('s_add_u32 s10, s10, s11')
        a(f's_lshl_b32 s11, s{S_NT}, 8')
        a('s_add_u32 s10, s10, s11')
        a('v_lshrrev_b32 v6, 1, v2')
        a('v_lshlrev_b32 v6, 11, v6')
        a('v_and_b32 v7, 1, v2')
        a('v_lshl_add_u32 v6, v7, 7, v6')
        a(f'v_add_u32 v{L_PFO}, s10, v6')

    a(f's_getpc_b64 s[{S_TAB}:{S_TAB+1}]')
    a.label('PCREF')
    a(f's_add_u32 s{S_TAB}, s{S_TAB}, SEQTAB-PCREF')
    a(f's_addc_u32 s{S_TAB+1}, s{S_TAB+1}, 0')
    a(f's_lshl_b32 s{S_TMP+3}, s{S_W}, 2')
    a(f's_add_u32 s{S_TMP+3}, s{S_TMP+3}, {CB_FULL}')
    a(f's_mov_b32 s{S_NB}, 0')
    for v in range(1, 4):
        a(f's_cmp_eq_u32 s{S_MT}, {v}')
        a(f's_cbranch_scc1 LOADER{v}')

    def loader(mt):
        tagn = f'{mt}'
        s1, s2 = p1_sched(mt), p2_sched(mt)
        nops = [0]; endpos = {}
        def tile(kind, slot):
            if kind in ('x', 'v', 'k'):
                base = slot*16384 if kind != 'k' else AUX
                v, s, f = {'x': (L_DX, SRD_X, c.fx), 'v': (L_DV, SRD_V, c.fv), 'k': (L_DV, SRD_K, c.fk)}[kind]
                so = S_SA
            else:
                base = WT0 + slot*WSLOT
                v, s, f = (L_DWQ, SRD_WQ, c.fw) if kind == 'wq' else (L_DWO, SRD_WO, c.fo)
                so = S_SW
            wt = kind in ('wq', 'wo')
            a(f's_add_u32 m0, s{S_LW2 if wt else S_LW}, {base}')
            a('s_nop 0')
            for i in range(4):
                a(f'buffer_load_dwordx4 v{v+i}, s[{s}:{s+3}], s{so} offen offset:{WOFF[i] if wt else 1024*i} {f} lds')
                nops[0] += 1
        def wflag(off, val):
            a(f's_add_u32 m0, s{S_TMP+3}, {off}')
            a(f'v_mov_b32 v{L_WV}, {4*val}')
            a('s_mov_b64 exec, 1')
            a(f'global_load_lds_dword v{L_WV}, s[{S_TAB}:{S_TAB+1}]')
            a('s_mov_b64 exec, -1')
        def pload(u, count):
            r, i, own = s2[u]
            a(f's_add_u32 s10, s{S_NT}, {4*r+i}')
            a(f's_and_b32 s10, s10, 7')
            a(f's_lshl_b32 s10, s10, 11')
            a(f's_add_u32 m0, s{S_TMP+5}, {((u-1)%3)*2048}')
            a(f's_add_u32 s10, s10, s{S_TMP+4}')
            for G in range(2):
                a(f'buffer_load_dwordx4 v{V_L16}, s[{SRD_WS}:{SRD_WS+3}], s10 offen offset:{1024*G} sc1 lds')
                if count: nops[0] += 1
        def poll():
            a(f'buffer_load_dwordx2 v[{L_POLL}:{L_POLL+1}], v{L_POLLA}, s[{SRD_WS}:{SRD_WS+3}], s{S_TMP+2} offen sc1')
        def bar():
            a('s_barrier')
            a(f's_memtime s[{S_TB}:{S_TB+1}]')
            a(f's_add_u32 s{S_NB}, s{S_NB}, 1')
        def gate(n):
            nm = f'{tagn}_{n}'
            if n < 3: return
            a.label(f'GA{nm}')
            if n >= 4:
                a(f's_cmp_ge_u32 s{S_NB}, {n-3}')
                a(f's_cbranch_scc1 GB{nm}')
                bar()
                a.label(f'GB{nm}')
            if n >= 30: return
            a(f's_cmp_ge_u32 s{S_NB}, {n-2}')
            a(f's_cbranch_scc1 GO{nm}')
            a.label(f'GP{nm}')
            a(f's_getreg_b32 s10, hwreg(HW_REG_IB_STS)')
            a(f's_memtime s[{S_NOW}:{S_NOW+1}]')
            a('s_and_b32 s10, s10, 0xc0000f')
            a(f's_cmp_le_u32 s10, {c.vthr}')
            a(f's_cbranch_scc1 GO{nm}')
            a('s_waitcnt lgkmcnt(0)')
            a(f's_sub_u32 s10, s{S_NOW}, s{S_TB}')
            nb = n - 3
            bud = c.budget + (1100 if nb == 16 else 0) + (256 if (nb == 18 or (nb >= 22 and nb % 2 == 0)) else 0)
            a(f's_cmp_lt_u32 s10, {bud if n > 3 else 1 << 20}')
            a(f's_cbranch_scc1 GP{nm}')
            bar()
            a.label(f'GO{nm}')
        def tr(lane, reg):
            if c.trace:
                a('s_memrealtime s[76:77]')
                a('s_waitcnt lgkmcnt(0)')
                a(f'v_writelane_b32 v{reg}, s76, {lane}')
        PA = list(range(c.pfirst, 24))
        a(f's_memtime s[{S_TB}:{S_TB+1}]')
        for g in range(NG):
            slot = g % 4
            gate(g)
            tr(g, 50)
            if g in PA:
                if g > PA[0]:
                    a(f's_cmp_lg_u32 s{S_PD}, 0')
                    a(f's_cbranch_scc1 NP{tagn}_{g}')
                poll()
                if g > PA[0]: a.label(f'NP{tagn}_{g}')
            if g == 6:
                a(f'buffer_load_dwordx2 v[{L_TAG}:{L_TAG+1}], off, s[{SRD_DBG}:{SRD_DBG+3}], 0 sc1')
            start = nops[0]
            if g < 16:
                r, i, own = s1[g]
                a(f's_add_u32 s{S_IDX}, s{S_2HD}, {4*i+OFFR[r]}')
                a(f's_and_b32 s{S_IDX}, s{S_IDX}, 15')
                a(f's_lshl_b32 s{S_SA}, s{S_IDX}, 7')
                a(f's_lshl_b32 s{S_SW}, s{S_IDX}, 19')
                tile('x', slot); tile('wq', slot)
                if g == 0:
                    late_setup()
                    a('s_barrier')
                wflag(0, g + 1); nops[0] += 1
                if own and r in (1, 3):
                    a(f's_lshl_b32 s{S_SA}, s{S_J8}, 13')
                    if r == 3: a(f's_add_u32 s{S_SA}, s{S_SA}, 128')
                    tile('k', 0)
            else:
                u, half = divmod(g - 16, 2)
                r, i, own = s2[u]
                a(f's_add_u32 s{S_IDX}, s{S_NT}, {4*r+i}')
                a(f's_and_b32 s{S_IDX}, s{S_IDX}, 7')
                a(f's_lshl_b32 s{S_SA}, s{S_IDX}, 13')
                a(f's_lshl_b32 s{S_SW}, s{S_IDX}, 18')
                if half:
                    a(f's_add_u32 s{S_SA}, s{S_SA}, 128')
                    a(f's_add_u32 s{S_SW}, s{S_SW}, {64*2048}')
                if g in (25, 27, 29, 31): pload((g - 25) // 2 + 4, True)
                if half and own and r == 1: tile('wo', slot); tile('v', slot)
                else: tile('v', slot); tile('wo', slot)
                wflag(0, g + 1); nops[0] += 1
            if g == c.tlbw:
                a('s_mov_b64 exec, 1')
                a(f'buffer_load_dword v{L_JUNK}, v{L_PFV}, s[{SRD_V}:{SRD_V+3}], 0 offen'); nops[0] += 1
                a(f'buffer_load_dword v{L_JUNK+1}, v{L_PFO}, s[{SRD_WO}:{SRD_WO+3}], 0 offen'); nops[0] += 1
                a(f'buffer_load_dword v{L_JUNK+2}, v{L_PFV}, s[{SRD_K}:{SRD_K+3}], 0 offen'); nops[0] += 1
                if c.tlbws:
                    a(f's_lshl_b32 s10, s{S_J8}, 11')
                    a(f's_add_u32 s10, s10, s{S_TMP+4}')
                    a(f'buffer_load_dword v{L_JUNK+3}, off, s[{SRD_WS}:{SRD_WS+3}], s10 sc1'); nops[0] += 1
                    a(f's_mov_b32 s10, {WS_FLAG + (1<<20)}')
                    a(f'buffer_load_dword v{L_JUNK+4}, off, s[{SRD_WS}:{SRD_WS+3}], s10 sc1'); nops[0] += 1
                    a(f's_lshl_b32 s10, s{S_BR}, 2')
                    a(f's_add_u32 s10, s10, s{S_MT}')
                    a(f's_lshl_b32 s10, s10, 3')
                    a(f's_add_u32 s10, s10, s{S_NT}')
                    a(f's_mul_i32 s10, s10, {4*3*4*4096}')
                    a(f's_mul_i32 s11, s{S_W}, {3*16384}')
                    a('s_add_u32 s10, s10, s11')
                    a(f's_add_u32 s10, s10, {WS_X + 3072}')
                    a(f'buffer_load_dword v{L_JUNK+5}, off, s[{SRD_WS}:{SRD_WS+3}], s10 sc1'); nops[0] += 1
                a('s_mov_b64 exec, -1')
            if c.pfv >= 0 and g == c.pfv + mt:
                a(f'buffer_load_dword v{L_JUNK}, v{L_PFV}, s[{SRD_V}:{SRD_V+3}], 0 offen'); nops[0] += 1
            if c.pfo >= 0 and g == c.pfo + mt:
                a(f's_lshl_b32 s10, s{S_J8}, 18')
                a(f'buffer_load_dword v{L_JUNK+1}, v{L_PFO}, s[{SRD_WO}:{SRD_WO+3}], s10 offen'); nops[0] += 1
            if c.pfo2 >= 0 and g == c.pfo2 + mt:
                a(f's_add_u32 s10, s{S_J8}, 4')
                a('s_and_b32 s10, s10, 7')
                a(f's_lshl_b32 s10, s10, 18')
                a(f'buffer_load_dword v{L_JUNK+2}, v{L_PFO}, s[{SRD_WO}:{SRD_WO+3}], s10 offen'); nops[0] += 1
            n_this = nops[0] - start
            tr(32 + g, 50)
            if g == 6:
                a(f's_waitcnt vmcnt({n_this})')
                a(f's_mov_b32 s{S_CNT}, {c.spin}')
                a.label(f'TG{tagn}')
                a(f'v_cmp_eq_u64 vcc, 0, v[{L_TAG}:{L_TAG+1}]')
                a(f's_cbranch_vccz TGOK{tagn}')
                a(f's_sub_u32 s{S_CNT}, s{S_CNT}, 1')
                a(f's_cbranch_scc1 TGOK{tagn}')
                a('s_sleep 1')
                a(f'buffer_load_dwordx2 v[{L_TAG}:{L_TAG+1}], off, s[{SRD_DBG}:{SRD_DBG+3}], 0 sc1')
                a('s_waitcnt vmcnt(0)')
                a(f's_branch TG{tagn}')
                a.label(f'TGOK{tagn}')
                a(f's_mov_b32 m0, {CB_TAG}')
                a('s_mov_b64 exec, 3')
                a(f'buffer_load_dword v{L_WA}, s[{SRD_DBG}:{SRD_DBG+3}], 0 offen sc1 lds')
                a('s_mov_b64 exec, -1')
            if g in PA:
                last = g == PA[-1]
                a(f's_cmp_lg_u32 s{S_PD}, 0')
                a(f's_cbranch_scc1 PD{tagn}_{g}')
                a(f's_waitcnt vmcnt({n_this})')
                if last:
                    a(f's_mov_b32 s{S_CNT}, {c.spin}')
                    a.label(f'PC{tagn}')
                a(f'v_cmp_ne_u64 vcc, v[{L_POLL}:{L_POLL+1}], v[{L_TAG}:{L_TAG+1}]')
                if not last:
                    a(f's_cbranch_vccnz PD{tagn}_{g}')
                else:
                    a(f's_cbranch_vccz PG{tagn}')
                    a(f's_sub_u32 s{S_CNT}, s{S_CNT}, 1')
                    a(f's_cbranch_scc1 PG{tagn}')
                    a(f's_cmp_ge_u32 s{S_NB}, 21')
                    a(f's_cbranch_scc1 PB{tagn}')
                    bar()
                    a.label(f'PB{tagn}')
                    poll()
                    a('s_waitcnt vmcnt(0)')
                    a(f's_branch PC{tagn}')
                    a.label(f'PG{tagn}')
                for u in (1, 2, 3): pload(u, False)
                wflag(CB_PRDY - CB_FULL, 1)
                a(f's_mov_b32 s{S_PD}, 1')
                tr(60, 51)
                a.label(f'PD{tagn}_{g}')
        a('s_waitcnt vmcnt(0)')
        if c.trace:
            a(f'v_writelane_b32 v51, s42, 63')
            a('s_mov_b32 s76, s40')
            a('s_mov_b32 s77, s41')
            a('s_mov_b32 s78, 0x10000000')
            a('s_mov_b32 s79, 0x00020000')
            a('s_lshl_b32 s75, s2, 2')
            a(f's_add_u32 s75, s75, s{S_W}')
            a('s_lshl_b32 s75, s75, 9')
            a(f's_add_u32 s75, s75, {(130<<20)}')
            a('v_lshlrev_b32 v3, 2, v2')
            a('buffer_store_dword v50, v3, s[76:79], s75 offen')
            a('buffer_store_dword v51, v3, s[76:79], s75 offen offset:256')
        a('s_endpgm')
    for v in range(4):
        if v: a.label(f'LOADER{v}')
        loader(v)

    a.label('COMPUTE')
    if c.cprio: a(f's_setprio {c.cprio}')
    a(f's_mov_b32 s{S_W}, s{S_WID}')
    a(f's_lshl_b32 s{S_B}, s{S_MT}, 2')
    a(f's_add_u32 s{S_B}, s{S_B}, s{S_W}')
    T = ACC
    a(f'v_lshlrev_b32 v{T}, 2, v2')
    a(f'v_mov_b32 v{T+1}, 0')
    a(f'v_add_u32 v{T}, {CB_FULL}, v{T}')
    a(f'ds_write_b32 v{T}, v{T+1}')
    a(f'v_and_b32 v{V_CB}, 3, v2')
    a(f'v_lshlrev_b32 v{V_CB}, 2, v{V_CB}')
    a(f'v_add_u32 v{V_CB}, {CB_FULL}, v{V_CB}')
    a('s_waitcnt lgkmcnt(0)')
    a('s_barrier')
    a(f's_lshl_b32 s{S_LW}, s{S_W}, 12')
    a(f'v_and_b32 v{T}, 15, v2')
    a(f'v_lshrrev_b32 v{T+1}, 4, v2')
    a(f'v_lshrrev_b32 v{T+2}, 1, v{T}')
    a(f'v_lshlrev_b32 v{T+3}, 7, v{T}')
    a(f'v_add_u32 v{T+3}, s{S_LW}, v{T+3}')
    a(f'v_xor_b32 v{T+4}, v{T+2}, v{T+1}')
    a(f'v_lshl_add_u32 v{V_RA}, v{T+4}, 4, v{T+3}')
    a(f'v_xor_b32 v{V_RA+1}, 64, v{V_RA}')
    a(f'v_lshrrev_b32 v{T+4}, 1, v{T+1}')
    a(f'v_xor_b32 v{T+4}, v{T+4}, v{T+2}')
    a(f'v_lshl_add_u32 v{T+4}, v{T+4}, 4, v{T+3}')
    a(f'v_and_b32 v{T+5}, 1, v{T+1}')
    a(f'v_lshl_add_u32 v{T+4}, v{T+5}, 3, v{T+4}')
    a(f'v_add_u32 v{V_SP}, {AUX}, v{T+4}')
    def rt_setup(phase, T):
        L = []
        L.append(f'v_bfe_u32 v{T}, v2, 2, 2')
        L.append(f'v_bfe_u32 v{T+1}, v2, 4, 1')
        L.append(f'v_lshrrev_b32 v{T+2}, 5, v2')
        L.append(f'v_and_b32 v{T+3}, 3, v2')
        L.append(f'v_mul_u32_u24 v{T+1}, 2080, v{T+1}')
        L.append(f'v_mul_u32_u24 v{T+2}, {WBLK}, v{T+2}')
        L.append(f'v_add3_u32 v{T+4}, v{T+1}, v{T+2}, 0')
        L.append(f'v_lshl_add_u32 v{T+4}, v{T}, 8, v{T+4}')
        L.append(f'v_lshl_add_u32 v{T+4}, v{T+3}, 3, v{T+4}')
        L.append(f'v_add_u32 v{T+4}, {WT0}, v{T+4}')
        for t in range(4):
            if phase == 1:
                L.append(f'v_xor_b32 v{T+5}, {t}, v{T}')
            else:
                L.append(f's_add_u32 s10, s{S_HG}, {t}')
                L.append('s_and_b32 s10, s10, 3')
                L.append(f'v_xor_b32 v{T+5}, s10, v{T}')
            L.append(f'v_lshl_add_u32 v{V_RT+t}, v{T+5}, 6, v{T+4}')
        return L
    for l in rt_setup(1, T): a(l)
    srd(SRD_WS, 40, WS_BYTES)
    srd(SRD_OUT, 36, 2 << 20)
    srd(SRD_DBG, 38, 256)
    a(f's_or_b32 s13, s2, s{S_W}')
    a('s_cmp_lg_u32 s13, 0')
    a('s_cbranch_scc1 NOTAG')
    a(f'v_mov_b32 v{T}, s42')
    a(f'v_mov_b32 v{T+1}, s43')
    a(f'buffer_store_dwordx2 v[{T}:{T+1}], off, s[{SRD_DBG}:{SRD_DBG+3}], 0 sc0 sc1')
    a.label('NOTAG')
    stamp(1)
    phase1(a, c, stamp)
    softmax(a, c, stamp, rt_setup)
    phase2(a, c, stamp)
    if c.leak >= 0:
        if c.leakj >= 0:
            a(f's_and_b32 s76, s{S_J8}, 3')
            a(f's_cmp_lg_u32 s76, {c.leakj}')
            a('s_cbranch_scc1 K_END')
        a.label('LEAKL')
        a('s_memrealtime s[76:77]')
        a('s_waitcnt lgkmcnt(0)')
        a('s_sub_u32 s76, s76, s80')
        a('s_cmp_lt_u32 s76, 3000')
        a('s_cbranch_scc1 LEAKL')
    if c.padto:
        a.label('PADL')
        a('s_memrealtime s[76:77]')
        a('s_waitcnt lgkmcnt(0)')
        a(f's_sub_u32 s76, s76, s{S_T0}')
        a(f's_cmp_lt_u32 s76, {c.padto}')
        a('s_cbranch_scc1 PADL')
    if c.stamps:
        n = 11
        a('s_waitcnt vmcnt(0) lgkmcnt(0)')
        stamp(n - 1)
        a('s_waitcnt lgkmcnt(0)')
        a(f's_cmp_lg_u32 s{S_WID}, 0')
        a('s_cbranch_scc1 K_END')
        a('s_mov_b32 s76, s40')
        a('s_mov_b32 s77, s41')
        a('s_mov_b32 s78, 0x10000000')
        a('s_mov_b32 s79, 0x00020000')
        a('s_lshl_b32 s75, s2, 7')
        a(f's_add_u32 s75, s75, {128<<20}')
        a('v_mov_b32 v3, 0')
        for i in range(n):
            a(f'v_mov_b32 v4, s{80+2*i}')
            a(f'v_mov_b32 v5, s{81+2*i}')
            a(f'buffer_store_dwordx2 v[4:5], v3, s[76:79], s75 offen offset:{8*i}')
            a('s_nop 1')
    a.label('K_END')
    a('s_endpgm')
    for g in OOL:
        a.label(f'SP{g[0]}{g[1]}')
        spin(a, c, f'W{g[0]}{g[1]}', flagread(g[0]), flagtest(*g))
        a(f's_branch OK{g[0]}{g[1]}')
    a.raw('.p2align 8')
    a.raw('.type SEQTAB,@object')
    a.label('SEQTAB')
    for i in range(64): a(f'.long {i}')
    a.raw('.size SEQTAB, 256')
    return a.text()

PF = VWB + 48
ACC_TAGT = VWB + 32

def spin(a, c, name, rd, test):
    a(f's_mov_b32 s{S_CNT}, {c.lspin}')
    a.label(name)
    a(rd)
    a(f's_sub_u32 s{S_CNT}, s{S_CNT}, 1')
    a('s_cbranch_scc1 K_END')
    a('s_waitcnt lgkmcnt(0)')
    a(test)
    a(f's_cbranch_vccnz {name}')
def flagread(kind):
    return f'ds_read_b32 v{V_FL}, v{V_CB}' + ('' if kind == 'F' else f' offset:{CB_PRDY-CB_FULL}')
def flagtest(kind, g):
    return f'v_cmp_ge_u32 vcc, {g}, v{V_FL}' if kind == 'F' else f'v_cmp_eq_u32 vcc, 0, v{V_FL}'

OOL = []
class Sched:
    def __init__(s, a, c):
        s.a, s.c = a, c
        s.M = []; s.L = []; s.V = []
        s.lastuse = {}
        s.wn = 0; s.an = 0
    def m(s, ins, needs=(), uses=(), vneed=(), post=None):
        for r in uses: s.lastuse[r] = len(s.M)
        s.M.append(dict(ins=ins, needs=list(needs), vneed=list(vneed), post=post))
        return len(s.M) - 1
    def load(s, instrs, tag, reg, first, gate=None, rel=None, vreq=None, depth=None):
        after = -1
        for r in (reg if isinstance(reg, (list, tuple)) else [reg]):
            after = max(after, s.lastuse.get(r, -1))
        d = s.c.depth if depth is None else depth
        for it in instrs:
            s.L.append(dict(it=it, tag=tag, after=max(after + 1, first - d), first=first, gate=gate, rel=rel, vreq=vreq))
    def valu(s, instrs, after, group=None):
        for i in instrs: s.V.append(dict(ins=i, after=after, group=group))
    def run(s, have, first_bar, last_bar, stamps={}):
        a, c = s.a, s.c
        s.L.sort(key=lambda e: e['first'])
        s.V.sort(key=lambda e: e['after'])
        Q = []; seen = set(have)
        for e in s.L:
            g = e['gate']
            if g is not None and g not in seen:
                seen.add(g)
                pos = len(Q)
                tgt = e['after'] - c.flead
                while pos > 0 and Q[pos-1]['after'] > tgt and Q[pos-1].get('chk') is None and Q[pos-1]['tag'][0] != '?': pos -= 1
                Q.insert(pos, dict(it=[flagread(g[0])], tag=f'?{g}', after=tgt, first=0, gate=None, rel=None, vreq=None))
                e['chk'] = g
            Q.append(e)
        issued = []; done = [0]; itime = []
        relcount = {}
        for e in Q:
            if e['rel'] is not None: relcount[e['rel']] = relcount.get(e['rel'], 0) + 1
        relpos = {}
        nextbar = [first_bar]
        nm = [0]
        V = s.V
        def need(tags):
            if not tags: return
            for t in tags:
                if any(e['tag'] == t for e in Q):
                    while any(e['tag'] == t for e in Q):
                        assert pump(1, True), ('stuck', t, Q[0])
            idx = max(i for i, t in enumerate(issued) if t in tags) + 1
            if idx > done[0]:
                while idx < len(issued) and nm[0] - itime[idx] >= c.minage: idx += 1
                n = min(14, len(issued) - idx)
                a(f's_waitcnt lgkmcnt({n})')
                done[0] = len(issued) - n
        def pump(k, force=False):
            n = 0
            while n < k and Q:
                e = Q[0]
                if e['after'] > nm[0]:
                    if not (force and e['after'] - nm[0] <= 0): break
                if e['vreq'] is not None and any(v['group'] == e['vreq'] for v in V): break
                if e.get('chk') is not None:
                    g = e['chk']
                    need([f'?{g}'])
                    a(flagtest(*g))
                    a(f's_cbranch_vccnz SP{g[0]}{g[1]}')
                    a.label(f'OK{g[0]}{g[1]}')
                    OOL.append(g)
                    e['chk'] = None
                    n += 1
                Q.pop(0)
                for l in e['it']: a(l)
                issued.append(e['tag']); itime.append(nm[0])
                if e['rel'] is not None:
                    relcount[e['rel']] -= 1; relpos[e['rel']] = len(issued)
                n += len(e['it'])
            return n
        def fill(k):
            n = 0
            while n < k and V and V[0]['after'] <= nm[0]:
                a(V.pop(0)['ins']); n += 1
            return n
        pump(99)
        for i, m in enumerate(s.M):
            flushed = False
            for g in m['vneed']:
                while any(v['group'] == g for v in V):
                    assert V[0]['after'] <= nm[0], ('valu not ready', i, g, V[0])
                    a(V.pop(0)['ins']); flushed = True
            last_valu = [l for l in a.lines[-2:] if l.strip().startswith('v_cvt')]
            if m['vneed'] and last_valu: a('s_nop 1')
            need(m['needs'])
            a(m['ins']); nm[0] += 1
            if i in stamps: stamps[i]()
            b = nextbar[0]
            if b <= last_bar and relcount.get(b, 0) == 0 and relpos.get(b, 0) <= done[0]:
                a('s_barrier'); nextbar[0] += 1
            urgent = Q and Q[0]['first'] - nm[0] <= c.urgent
            n = pump(2 if urgent else 1)
            fill((m['post'] or c.vslots) - (c.vslots - c.vwith) * min(n, 1))
        assert not Q, Q[0]
        assert nextbar[0] > last_bar, nextbar
        return V

def wt_items(j, kk, t, e, d):
    return [[f'ds_read_b64_tr_b16 {ar(d+2*u,2)}, v{V_RT+t} offset:{(j%4)*WSLOT+kk*2*WBLK+u*1024+e*32}'] for u in range(2)]
def act_item(j, kk, ai, dst):
    return [[f'ds_read_b128 {dst}, v{V_RA+kk} offset:{(j%4)*16384+ai*2048}']]
def p_items(u, d):
    return [[f'ds_read_b128 {ar(d+4*G,4)}, v{V_SP} offset:{((u-1)%3)*2048+1024*G}'] for G in range(2)]

def gemm_stage(S, j, gate):
    lastw = {}
    for kk in range(2):
        aslot = [AA + 4*((S.an + x) % 3) for x in range(2)]; S.an += 2
        for h in range(2):
            base = len(S.M)
            if h == 0:
                for ai in range(2):
                    S.load(act_item(j, kk, ai, ar(aslot[ai], 4)), f'A{j}_{kk}_{ai}', aslot[ai], base + 4*ai - 0.5, gate, j)
            fr = []
            for w4 in range(4):
                t, e = 2*h + w4 // 2, w4 % 2
                d = AW + 4*(S.wn % 8); S.wn += 1
                S.load(wt_items(j, kk, t, e, d), f'W{j}_{kk}_{t}_{e}', d, base + w4, gate, j)
                fr.append((t, e, d))
            for ai in range(2):
                for (t, e, d) in fr:
                    r = ACC + 16*t + 8*e + 4*ai
                    first = kk == 0 and (j == 0 or (j >= 16 and j % 2 == 0))
                    ops = f'{ar(d,4)}, {ar(aslot[ai],4)}' if j < 16 else f'{ar(aslot[ai],4)}, {ar(d,4)}'
                    vn = [f'cv{(j-16)//2-1}_{t}_{e}'] if (first and j >= 18) else []
                    lastw[(t, e, ai)] = S.m(f'{MF} {vr(r,4)}, {ops}, ' + ('0' if first else vr(r, 4)),
                                            needs=[f'W{j}_{kk}_{t}_{e}', f'A{j}_{kk}_{ai}'], uses=[d, aslot[ai]], vneed=vn)
    return lastw

def phase1(a, c, stamp):
    spin(a, c, 'WF0', flagread('F'), flagtest('F', 0))
    stamp(2)
    S = Sched(a, c)
    st = {}
    for j in range(16):
        if j in (5, 13):
            hf = 0 if j == 5 else 1
            base = len(S.M)
            n = 0
            for Tp in range(2):
                for e in range(2):
                    it = []
                    for ki in range(2):
                        x = [f'v_xor_b32 v{V_T3}, {(4*Tp+2*e)<<4}, v{V_SP}'] if ki == 0 else []
                        it.append(x + [f'ds_read_b64 {ar(AK+8*(2*hf+Tp)+4*ki+2*e,2)}, v{V_T3} offset:{2048*ki}'])
                    S.load(it, f'K{hf}_{Tp}_{e}', 'none', base + 12.7 + 4*n, ('F', j), j, depth=8)
                    n += 1
        if j == 8: st[len(S.M)] = lambda: stamp(3)
        if c.fine >= 0 and 0 <= j - c.fine < 9: st[len(S.M)] = (lambda jj: lambda: stamp(jj - c.fine + 1, True))(j)
        gemm_stage(S, j, ('F', j))
    V = S.run({('F', 0)}, 0, 15, st)
    assert not V

def red2(a, op, x0, x1, t0, t1):
    for sw in ('v_permlane32_swap_b32', 'v_permlane16_swap_b32'):
        a(f'v_mov_b32 v{t0}, v{x0}')
        a(f'v_mov_b32 v{t1}, v{x1}')
        a('s_nop 0')
        a(f'{sw} v{x0}, v{t0}')
        a(f'{sw} v{x1}, v{t1}')
        a('s_nop 0')
        a(f'{op} v{x0}, v{x0}, v{t0}')
        a(f'{op} v{x1}, v{x1}, v{t1}')

def softmax(a, c, stamp, rt_setup):
    QF = VWB; S = VWB + 32
    stamp(4)
    a(f'v_mov_b32 v{V_T3}, {CB_TAG}')
    a(f'ds_read_b64 v[{VWB+56}:{VWB+57}], v{V_T3}')
    def qcv(t):
        L = []
        for ai in range(2):
            for e in range(2):
                for x in range(2):
                    r = ACC + 16*t + 8*e + 4*ai + 2*x
                    L.append(f'v_cvt_pk_bf16_f32 v{QF+8*t+4*ai+2*e+x}, v{r}, v{r+1}')
        return L
    for l in qcv(0) + qcv(1): a(l)
    for t in range(4):
        rest = qcv(t + 2) if t < 2 else []
        for mi in range(2):
            for ki in range(2):
                d = vr(S + 8*mi + 4*ki, 4)
                a(f'{MF} {d}, {ar(AK+8*t+4*ki,4)}, {vr(QF+8*t+4*mi,4)}, ' + ('0' if t == 0 else d))
                for l in rest[:2]: a(l)
                rest = rest[2:]
    cc = (128 ** -0.5) * math.log2(math.e)
    cbits = struct.unpack('<I', struct.pack('<f', cc))[0]
    a('s_waitcnt lgkmcnt(0)')
    a(f'v_readfirstlane_b32 s{S_T0}, v{VWB+56}')
    a(f'v_readfirstlane_b32 s{S_T0+1}, v{VWB+57}')
    a(f's_mov_b32 s{S_TMP+4}, {hex(cbits)}')
    a(f's_lshl_b32 s{S_TMP}, s{S_BR}, 4')
    a(f's_add_u32 s{S_TMP}, s{S_TMP}, s{S_B}')
    a(f's_lshl_b32 s{S_TMP+1}, s{S_TMP}, 2')
    a(f's_add_u32 s{S_TMP+1}, s{S_TMP+1}, s{S_HG}')
    a(f's_lshl_b32 s{S_TMP+1}, s{S_TMP+1}, 4')
    a(f's_add_u32 s{S_TMP+1}, s{S_TMP+1}, s{S_J8}')
    a(f's_lshl_b32 s{S_TMP+1}, s{S_TMP+1}, 3')
    a(f's_add_u32 s{S_TMP+1}, s{S_TMP+1}, {WS_FLAG}')
    a(f's_lshl_b32 s{S_TMP}, s{S_TMP}, 5')
    a(f's_add_u32 s{S_TMP}, s{S_TMP}, s{S_HEAD}')
    a(f's_lshl_b32 s{S_TMP}, s{S_TMP}, 11')
    x = [ACC, ACC + 1]; t0, t1 = ACC + 2, ACC + 3
    for mi in range(2): a(f'v_max3_f32 v{x[mi]}, v{S+8*mi}, v{S+8*mi+1}, v{S+8*mi+2}')
    for mi in range(2): a(f'v_max3_f32 v{x[mi]}, v{x[mi]}, v{S+8*mi+3}, v{S+8*mi+4}')
    for mi in range(2): a(f'v_max3_f32 v{x[mi]}, v{x[mi]}, v{S+8*mi+5}, v{S+8*mi+6}')
    for mi in range(2): a(f'v_max_f32 v{x[mi]}, v{x[mi]}, v{S+8*mi+7}')
    red2(a, 'v_max_f32', x[0], x[1], t0, t1)
    for mi in range(2): a(f'v_mul_f32 v{x[mi]}, s{S_TMP+4}, v{x[mi]}')
    for i in range(16):
        a(f'v_fma_f32 v{S+i}, v{S+i}, s{S_TMP+4}, -v{x[i//8]}')
    for i in range(16):
        a(f'v_exp_f32 v{S+i}, v{S+i}')
    for mi in range(2): a(f'v_add_f32 v{x[mi]}, v{S+8*mi}, v{S+8*mi+1}')
    for i in range(2, 8):
        for mi in range(2): a(f'v_add_f32 v{x[mi]}, v{x[mi]}, v{S+8*mi+i}')
    red2(a, 'v_add_f32', x[0], x[1], t0, t1)
    for mi in range(2): a(f'v_rcp_f32 v{x[mi]}, v{x[mi]}')
    a('s_nop 0')
    for i in range(16):
        a(f'v_mul_f32 v{S+i}, v{S+i}, v{x[i//8]}')
    for i in range(8):
        a(f'v_cvt_pk_bf16_f32 v{PF+i}, v{S+2*i}, v{S+2*i+1}')
    for G in range(2):
        a(f'buffer_store_dwordx4 {vr(PF+4*G,4)}, v{V_L16}, s[{SRD_WS}:{SRD_WS+3}], s{S_TMP} offen offset:{1024*G} sc0 sc1')
    for l in rt_setup(2, ACC + 4): a(l)
    a(f's_mul_i32 s10, s{S_W}, 6144')
    a(f's_add_u32 s10, s10, {AUX}')
    a(f'v_add_u32 v{V_SP}, s10, v{V_L16}')
    tail_salu(a)

S_SEND = 21
S_RCV = 25
S_OUTO = 29
S_TG2 = 18
def tail_salu(a):
    B = 19
    a(f's_mul_i32 s{S_TG2}, s{S_T0}, 0x9e3779b1')
    a(f's_xor_b32 s{S_TG2}, s{S_TG2}, s{S_T0+1}')
    a(f's_lshl_b32 s{B}, s{S_BR}, 2')
    a(f's_add_u32 s{B}, s{B}, s{S_MT}')
    a(f's_lshl_b32 s{B}, s{B}, 3')
    a(f's_add_u32 s{B}, s{B}, s{S_NT}')
    a(f's_mul_i32 s{B}, s{B}, {4*3*4*4096}')
    a(f's_add_u32 s{B}, s{B}, s{S_LW}')
    a(f's_add_u32 s{B}, s{B}, {WS_X}')
    for t in (1, 2, 3):
        d = S_SEND + t
        a(f's_add_u32 s{d}, s{S_HG}, {t}')
        a(f's_and_b32 s{d}, s{d}, 3')
        a(f's_mul_i32 s{d}, s{d}, {3*16384}')
        a(f's_add_u32 s{d}, s{d}, s{B}')
        a(f's_add_u32 s{d}, s{d}, {(t-1)*16384}')
    a(f's_mul_i32 s{S_RCV}, s{S_HG}, {3*16384}')
    a(f's_add_u32 s{S_RCV}, s{S_RCV}, s{B}')
    a(f's_add_u32 s{S_RCV+1}, s{S_RCV}, 16384')
    a(f's_add_u32 s28, s{S_RCV}, 32768')
    a(f's_lshl_b32 s{S_OUTO}, s{S_B}, 17')
    a(f's_lshl_b32 s11, s{S_BR}, 11')
    a(f's_add_u32 s{S_OUTO}, s{S_OUTO}, s11')
    a(f's_lshl_b32 s11, s{S_NT}, 8')
    a(f's_add_u32 s{S_OUTO}, s{S_OUTO}, s11')
    a(f's_lshl_b32 s11, s{S_HG}, 6')
    a(f's_add_u32 s{S_OUTO}, s{S_OUTO}, s11')

JOBS = [(1, 6), (2, 6), (1, 7), (2, 7), (3, 6), (3, 7), (0, 6), (0, 7)]
HZ = 4

def phase2(a, c, stamp):
    spin(a, c, 'WF16', flagread('F'), flagtest('F', 16))
    stamp(5)
    S = Sched(a, c)
    st = {}
    def pstage(u, preg, ptag, tiles=(1, 2, 3, 0)):
        last = {}
        for t in tiles:
            for e in range(2):
                for qi in range(2):
                    o = ar(AO + 16*t + 8*e + 4*qi, 4)
                    p = vr(PF + 4*qi, 4) if u == 0 else ar(preg + 4*qi, 4)
                    last[t] = S.m(f'{MF} {o}, {vr(VWB+32*(u%2)+8*t+4*e,4)}, {p}, ' + ('0' if u == 0 else o),
                                  needs=[ptag] if ptag else [], uses=[preg, preg + 4] if u else [], vneed=[f'cv{u}_{t}_{e}'])
        return last
    for j in range(16, 28):
        u = (j - 16) // 2
        base = len(S.M)
        if j == 24: st[base] = lambda: stamp(6)
        if c.fine >= 0 and 0 <= j - c.fine < 9: st[base] = (lambda jj: lambda: stamp(jj - c.fine + 1, True))(j)
        if j >= 21 and j % 2 == 1:
            S.load(p_items(u - 1, AP), f'P{u-1}', [AP, AP + 4], base + 12.7, ('P', 1) if j == 21 else ('F', j), j, depth=6)
        if j == 16:
            S.valu(['s_waitcnt vmcnt(0)', f'v_mov_b32 v{ACC_TAGT}, s{S_T0}', f'v_mov_b32 v{ACC_TAGT+1}, s{S_T0+1}',
                    f'buffer_store_dwordx2 v[{ACC_TAGT}:{ACC_TAGT+1}], off, s[{SRD_WS}:{SRD_WS+3}], s{S_TMP+1} sc0 sc1'], base + c.pubat)
        lw = gemm_stage(S, j, ('F', j))
        if j % 2 == 1:
            for t in range(4):
                for e in range(2):
                    r = ACC + 16*t + 8*e; d = VWB + 32*(u % 2) + 8*t + 4*e
                    S.valu([f'v_cvt_pk_bf16_f32 v{d+i}, v{r+2*i}, v{r+2*i+1}' for i in range(4)], lw[(t, e, 1)] + HZ, f'cv{u}_{t}_{e}')
            if u >= 2: pstage(u - 1, AP, f'P{u-1}')
        if j == 18: pstage(0, None, None)
    st[len(S.M)] = lambda: stamp(7)
    ACCB = [VWB, VWB + 16, VWB + 32]
    SB = VWB + 48; TMP = VWB + 60
    TGV = V_CB
    PB = AA
    S.load(p_items(5, PB), 'P5', [AA, AA + 4, AA + 8], len(S.M), ('F', 27), None)
    pstage(5, PB, 'P5')
    p5end = len(S.M)
    PFR = {6: AP, 7: PB}
    seenv = set(); seenp = set()
    pend = None
    def send(t):
        L = []
        for i in range(8):
            x, y = TMP + (2*i) % 4, TMP + (2*i+1) % 4
            L.append(f'v_accvgpr_read_b32 v{x}, a{AO+16*t+2*i}')
            L.append(f'v_accvgpr_read_b32 v{y}, a{AO+16*t+2*i+1}')
            L.append(f'v_cvt_pk_bf16_f32 v{SB+4*(i//3)+i%3}, v{x}, v{y}')
            if i in (2, 5, 7):
                L.append(f'buffer_store_dwordx4 {vr(SB+4*(i//3),4)}, v{V_L16}, s[{SRD_WS}:{SRD_WS+3}], s{S_SEND+t} offen offset:{1024*(i//3)} {c.xst}')
        return L
    def cvj(k, e):
        b = ACCB[k % 3] + 8*e
        return [f'v_cvt_pk_bf16_f32 v{b+i}, v{b+2*i}, v{b+2*i+1}' for i in range(4)]
    def pmf_ins(k):
        t, u = JOBS[k]; L = []
        for e in range(2):
            for qi in range(2):
                o = ar(AO + 16*t + 8*e + 4*qi, 4)
                L.append((e, f'{MF} {o}, {vr(ACCB[k%3]+8*e,4)}, {ar(PFR[u]+4*qi,4)}, {o}'))
        return L
    def pmf(k):
        t, u = JOBS[k]
        for e, ins in pmf_ins(k):
            i = S.m(ins, needs=[f'P{u}'], uses=[PFR[u], PFR[u] + 4], vneed=[f'cj{k}_{e}'], post=c.frate)
        if u == 7: S.valu(send(t), i + HZ, f'send{t}')
    R = [ACC, ACC + 12, ACC + 24]
    def rreg(k, qx):
        if k == 2 and qx == 2: return SB
        return R[k] + 4*qx
    RCV = [S_RCV, S_RCV + 1, 28]
    def rloads(ks):
        return [f'buffer_load_dwordx4 {vr(rreg(k,qx),4)}, v{V_L16}, s[{SRD_WS}:{SRD_WS+3}], s{RCV[k]} offen offset:{1024*qx} {c.xld}' for k in ks for qx in range(3)]
    tagset = False
    for k, (t, u) in enumerate(JOBS):
        lw = {}
        for k4 in range(4):
            j = 16 + 2*u + k4 // 2; kk = k4 % 2
            base = len(S.M)
            vreg = [ACC + 32*(u-6) + 8*k4 + 4*ki for ki in range(2)]
            if (u, k4) not in seenv:
                seenv.add((u, k4))
                for ki in range(2):
                    tt, ee = divmod((vreg[ki] - ACC) // 8, 2)
                    S.load(act_item(j, kk, ki, vr(vreg[ki], 4)), f'V{u}_{k4}_{ki}', 'none', base + ki - 0.5, ('F', j), None, vreq=f'cv5_{tt}_{ee}', depth=c.fdepth)
            fr = []
            for e in range(2):
                d = AW + 4*(S.wn % 8); S.wn += 1
                S.load(wt_items(j, kk, t, e, d), f'X{k}_{k4}_{e}', d, base + 2*e, ('F', j), None, depth=c.fdepth)
                fr.append(d)
            if k4 == 3 and u not in seenp:
                seenp.add(u)
                S.load(p_items(u, PFR[u]), f'P{u}', [PFR[u], PFR[u] + 4], base + 3.5, ('F', j), None, depth=c.fdepth)
            for e in range(2):
                for ki in range(2):
                    r = vr(ACCB[k % 3] + 8*e + 4*ki, 4)
                    lw[e] = S.m(f'{MF} {r}, {vr(vreg[ki],4)}, {ar(fr[e],4)}, ' + ('0' if k4 == 0 else r),
                                needs=[f'X{k}_{k4}_{e}', f'V{u}_{k4}_{ki}'], uses=[fr[e]], post=c.frate)
            if k4 == 1 and k > 0: pmf(k - 1)
            if u == 7 and k4 == 3 and not tagset:
                tagset = True
                S.valu([f'v_and_b32 v{V_T3}, 1, v{V_LANE}', f'v_cmp_eq_u32 vcc, 0, v{V_T3}', f'v_mov_b32 v{V_T3}, s{S_TG2}',
                        f'v_mov_b32 v{V_FL}, s{S_T0}', f'v_cndmask_b32 v{TGV}, v{V_T3}, v{V_FL}, vcc'] +
                       [f'v_mov_b32 v{SB+4*x+3}, v{TGV}' for x in range(3)], len(S.M) - 3)
            if k == 7 and k4 == c.rcv_k4:
                S.valu(rloads((0, 1)), len(S.M) - 2)
        if k < 7:
            for e in range(2): S.valu(cvj(k, e), lw[e] + HZ - 0.5, f'cj{k}_{e}')
    V = S.run({('F', 16)}, 16, 27, st)
    for v in V: a(v['ins'])
    VO = V_RA
    a(f'v_and_b32 v{VO}, 15, v{V_LANE}')
    a(f'v_lshlrev_b32 v{VO}, 12, v{VO}')
    a(f'v_bfe_u32 v{V_T3}, v{V_LANE}, 4, 1')
    a(f'v_lshl_add_u32 v{VO}, v{V_T3}, 5, v{VO}')
    a(f'v_lshrrev_b32 v{V_T3}, 5, v{V_LANE}')
    a(f'v_lshl_add_u32 v{VO}, v{V_T3}, 4, v{VO}')
    a(f's_mov_b32 s{S_TMP+3}, {c.spin}')
    a(f's_mov_b32 s{S_TMP+4}, 0xffff0000')
    a(f's_add_u32 s{S_TMP+5}, s{S_OUTO}, 65536')
    for e in range(2):
        for l in cvj(7, e): a(l)
    for l in rloads((2,)): a(l)
    for e, ins in pmf_ins(7): a(ins)
    stamp(8)
    O = ACCB[2]
    XT = V_RT
    def check(k, first_wait):
        a(f's_waitcnt vmcnt({first_wait})')
        a(f's_branch XC{k}')
        a.label(f'XR{k}')
        a(f's_sub_u32 s{S_TMP+3}, s{S_TMP+3}, 1')
        a('s_cbranch_scc1 K_END')
        if c.xsleep: a(f's_sleep {c.xsleep}')
        for l in rloads((k,)): a(l)
        a('s_waitcnt vmcnt(0)')
        a.label(f'XC{k}')
        tg = [rreg(k, qx) + 3 for qx in range(3)]
        for i, r in enumerate(tg):
            a(f'v_xor_b32 v{XT+i}, v{r}, v{TGV}')
        a(f'v_or3_b32 v0, v{XT}, v{XT+1}, v{XT+2}')
        a('v_cmp_ne_u32 vcc, 0, v0')
        a(f's_cbranch_vccnz XR{k}')
    def acc(k, first):
        for i in range(8):
            d = rreg(k, i // 3) + i % 3
            if first:
                a(f'v_lshlrev_b32 v{O+2*i}, 16, v{d}')
                a(f'v_and_b32 v{O+2*i+1}, s{S_TMP+4}, v{d}')
            else:
                a(f'v_lshlrev_b32 v{XT+(2*i)%4}, 16, v{d}')
                a(f'v_and_b32 v{XT+(2*i+1)%4}, s{S_TMP+4}, v{d}')
                a(f'v_add_f32 v{O+2*i}, v{O+2*i}, v{XT+(2*i)%4}')
                a(f'v_add_f32 v{O+2*i+1}, v{O+2*i+1}, v{XT+(2*i+1)%4}')
    check(0, 6); acc(0, True)
    check(1, 3); acc(1, False)
    for r in range(16):
        a(f'v_accvgpr_read_b32 v{XT+r%4}, a{AO+r}')
        a(f'v_add_f32 v{O+r}, v{O+r}, v{XT+r%4}')
    check(2, 0)
    stamp(9)
    acc(2, False)
    F = ACCB[0]
    for e in range(2):
        for qi in range(2):
            for x in range(2):
                r = O + 8*e + 4*qi + 2*x
                a(f'v_cvt_pk_bf16_f32 v{F+4*qi+2*e+x}, v{r}, v{r+1}')
    a('s_nop 1')
    for qi in range(2):
        for x in range(2):
            a(f'v_permlane16_swap_b32 v{F+4*qi+x}, v{F+4*qi+2+x}')
    a('s_nop 1')
    a(f'buffer_store_dwordx4 {vr(F,4)}, v{VO}, s[{SRD_OUT}:{SRD_OUT+3}], s{S_OUTO} offen {c.ost}')
    a(f'buffer_store_dwordx4 {vr(F+4,4)}, v{VO}, s[{SRD_OUT}:{SRD_OUT+3}], s{S_TMP+5} offen {c.ost}')

def build(c, out):
    P2POS[:] = [int(x) for x in c.p2pos]
    P1POS[:] = [int(x) for x in c.p1pos]
    hdr = open('header.txt').read().splitlines()
    t = '\n'.join(hdr) + '\n'
    t += '; @launch grid=(256,1,1) block=(512,1,1) lds=163840\n'
    t += '.amdgcn_target "amdgcn-amd-amdhsa--gfx950"\n.text\n'
    t += f'.globl {NAME}_kernel\n'
    out_l = []
    for l in gen(c).split('\n'):
        if c.nodma and ' lds' in l and 'sc1' not in l: continue
        if c.noread and ('ds_read_b128' in l or 'ds_read_b64_tr' in l): continue
        if c.nomfma and 'v_mfma' in l: continue
        if c.same and f's_and_b32 s{S_IDX}, s{S_IDX},' in l: l = f'    s_and_b32 s{S_IDX}, s{S_IDX}, 1'
        out_l.append(l)
    t += '\n'.join(out_l)
    t += kd(f'{NAME}_kernel', 256, 102, ACCUM_OFF)
    open(out, 'w').write(t)

if __name__ == '__main__':
    c = Cfg()
    out = sys.argv[1]
    for kv in sys.argv[2:]:
        k, v = kv.split('=', 1)
        old = getattr(c, k)
        if v == 'None': v = None
        elif isinstance(old, bool): v = v in ('1', 'True')
        elif isinstance(old, int): v = int(v)
        setattr(c, k, v)
    build(c, out)
```

```python
import sys, math, struct, re
from asmlib import *

NAME = 'concat_heads__mha_block_cached__gqa_block_cached__near_ridge'
MF = 'v_mfma_f32_16x16x32_bf16'

class Cfg:
    stamps = False; cyc = False; trace = False
    fx = ''; fw = ''; fk = ''; fv = ''; fo = ''
    xst = 'sc1'; xld = 'sc1'
    spin = 1 << 16
    lspin = 1 << 20
    cprio = 1
    early = 16
    psleep = 8
    pfirst = 22
    budget = 320
    pfv = -1
    pfo = -1
    pfo2 = -1
    xsleep = 0
    leak = -1
    fdepth = 10
    rcv_at = 61
    fdepth2 = 3
    jobs = 'b'
    frate = 3
    tlbw = -1
    tlbws = True
    p2pos = '4444'
    p1pos = '4444'
    vslots = 2
    ra = 0
    rb = 0
    p1last = 13
    b16 = 'end'
    pg = 23
    gsw = 99
    gmode = 'static'
    leakj = -1
    rhg = 0
    rbr = 0
    jrot = 0
    fine = -1
    ost = ''
    vwith = 1
    urgent = 7
    minage = 5
    flead = 5
    pubat = 22
    rcv_k4 = 2
    depth = 12
    same = False
    vthr = 8
    pprog = 18
    slowpath = True
    nodma = False; noread = False; nomfma = False
    padto = 0
    lsleep = 1
    ctrace = False
    nofree = False
    noprog = False
    noflag = False
    lpace = 0
    fewflags = False
    progop = ''
    ex1 = True

S_XCD, S_MT, S_BR, S_HG, S_J8, S_W, S_B, S_NT, S_HEAD, S_WID = 3, 4, 5, 6, 7, 8, 9, 15, 12, 14
SRD_X, SRD_K, SRD_V, SRD_WQ, SRD_WO, SRD_WS, SRD_OUT, SRD_DBG = 44, 48, 52, 56, 60, 64, 68, 72
S_SA, S_SW, S_IDX, S_LW = 24, 25, 26, 27
S_2HD = 28; S_PD = 29
S_TMP = 30
S_T0 = 16
S_LW2 = 18
S_CNT = 20
S_NB = 21
S_TB = 22
S_TAB = 36
S_NOW = 38
V_FL = 0; V_T3 = 1
V_LANE = 2; V_CB = 3
V_RA = 4; V_RT = 6; V_L16 = 10; V_SP = 11
ACC = 12; VWB = 76
ACCUM_OFF = 140
AW = 0; AA = 32; AP = 44; AO = 52
AK = AO
L_DX, L_DWQ, L_DV, L_DWO = 16, 20, 24, 28
L_POLLA, L_POLL, L_TAG, L_THR, L_WA, L_WV, L_FA, L_TMP, L_THR2 = 32, 34, 36, 38, 39, 40, 41, 42, 43
L_PFV, L_PFO, L_JUNK = 44, 45, 46

WS_FLAG = 2 << 20
WS_X = 4 << 20
WS_BYTES = 16 << 20
WT0 = 65536; WSLOT = 16512; WBLK = 4128
WOFF = [0, 1024, 2080, 3104]
AUX = WT0 + 4*WSLOT
CB = 163840 - 2048
CB_FULL = CB + 1024; CB_PRDY = CB + 1040; CB_TAG = CB + 1056
OFFR = [0, 2, 1, 3]
NG = 32

P1POS = [1, 2, 3, 4]
def p1_sched(mt):
    own = {0: 0}
    for r in (1, 2, 3): own[P1POS[mt] + 4*(r-1)] = r
    def ftime(r, q): return 0 if r == 0 else P1POS[q] + 4*(r-1)
    fol = sorted([(ftime(r, q), r, q) for r in range(4) for q in range(4) if q != mt])
    L = []
    for tau in range(16):
        if tau in own: L.append((own[tau], mt, True))
        else:
            ft, r, q = fol.pop(0)
            assert ft < tau, (mt, tau, ft)
            assert r < 2 or P1POS[mt] + 4 < tau, (mt, tau, r)
            L.append((r, q, False))
    return L
P2POS = [1, 2, 3, 4]
def p2_sched(mt):
    fol0 = [(0, q, False) for q in range(4) if q != mt]
    p = P2POS[mt]
    L = [(0, mt, True)] + fol0[:p-1] + [(1, mt, True)] + fol0[p-1:]
    L += [(1, q, False) for q in sorted(range(4), key=lambda q: P2POS[q]) if q != mt]
    return L

def gen(c):
    a = Asm()
    def stamp(i, fine=False):
        if c.fine >= 0 and not fine and 0 < i < 10: return
        if c.leak == i: a('s_memrealtime s[80:81]')
        if c.stamps: a(f'{"s_memtime" if (c.cyc and i > 0) else "s_memrealtime"} s[{80+2*i}:{81+2*i}]')
    a.raw('.p2align 8')
    a.raw(f'.type {NAME}_kernel,@function')
    a.label(f'{NAME}_kernel')
    a('s_cmp_ge_u32 s2, 256')
    a('s_cbranch_scc1 K_END')
    stamp(0)
    a('s_load_dwordx16 s[16:31], s[0:1], 0')
    a('s_load_dwordx8 s[32:39], s[0:1], 64')
    a('s_load_dwordx2 s[40:41], s[0:1], 96')
    a('s_memrealtime s[42:43]')
    a(f's_and_b32 s{S_XCD}, s2, 7')
    a(f's_lshr_b32 s{S_MT}, s2, 3')
    a(f's_lshr_b32 s{S_BR}, s{S_XCD}, 2')
    a(f's_and_b32 s{S_HG}, s{S_XCD}, 3')
    if c.jrot: a(f's_add_u32 s{S_J8}, s{S_MT}, {c.jrot}')
    a(f's_and_b32 s{S_J8}, s{S_J8 if c.jrot else S_MT}, 7')
    a(f's_lshr_b32 s{S_MT}, s{S_MT}, 3')
    a('v_lshrrev_b32 v1, 6, v0')
    a(f'v_and_b32 v{V_LANE}, 63, v0')
    a(f's_sub_u32 s{S_NT}, s{S_J8}, s{S_MT}')
    a(f'v_readfirstlane_b32 s{S_WID}, v1')
    a(f's_and_b32 s{S_NT}, s{S_NT}, 7')
    a(f's_lshl_b32 s{S_HEAD}, s{S_HG}, 3')
    a(f's_add_u32 s{S_HEAD}, s{S_HEAD}, s{S_J8}')
    a(f'v_lshlrev_b32 v{V_L16}, 4, v2')
    def srd_sel(d, pa, pb, nbytes):
        a(f's_cselect_b32 s{d}, s{pb}, s{pa}')
        a(f's_cselect_b32 s{d+1}, s{pb+1}, s{pa+1}')
        a(f's_mov_b32 s{d+2}, {hex(nbytes)}')
        a(f's_mov_b32 s{d+3}, 0x00020000')
    def srd(d, p, nbytes):
        a(f's_mov_b32 s{d}, s{p}')
        a(f's_mov_b32 s{d+1}, s{p+1}')
        a(f's_mov_b32 s{d+2}, {hex(nbytes)}')
        a(f's_mov_b32 s{d+3}, 0x00020000')
    a(f's_cmp_lt_u32 s{S_WID}, 4')
    a('s_cbranch_scc1 COMPUTE')

    a(f's_and_b32 s{S_W}, s{S_WID}, 3')
    a(f's_lshl_b32 s{S_B}, s{S_MT}, 2')
    a(f's_add_u32 s{S_B}, s{S_B}, s{S_W}')
    a('v_lshrrev_b32 v3, 3, v2')
    a('v_and_b32 v4, 7, v2')
    a('v_lshrrev_b32 v5, 4, v2')
    a(f's_lshl_b32 s10, s{S_B}, 16')
    for i in range(2):
        a(f'v_add_u32 v6, {4*i}, v5')
        a('v_xor_b32 v6, v6, v4')
        a(f'v_lshlrev_b32 v{8+i}, 4, v6')
    for i in range(4):
        a(f'v_add_u32 v7, {8*i}, v3')
        a(f'v_lshl_add_u32 v6, v7, 11, v{8+i%2}')
        a(f'v_add_u32 v6, s10, v6')
        a(f'v_subrev_u32 v{L_DX+i}, {1024*i}, v6')
    a('v_and_b32 v6, 15, v2')
    a('v_lshlrev_b32 v7, 2, v5')
    a('v_xor_b32 v6, v6, v7')
    a('v_lshlrev_b32 v12, 4, v6')
    a(f's_lshl_b32 s10, s{S_W}, 17')
    a(f's_lshl_b32 s13, s{S_HEAD}, 8')
    a('s_add_u32 s10, s10, s13')
    a('v_lshl_add_u32 v6, v5, 13, v12')
    a(f'v_add_u32 v{L_DWQ}, s10, v6')
    for i in range(1, 4):
        a(f'v_add_u32 v{L_DWQ+i}, {i*4*8192-WOFF[i]}, v{L_DWQ}')
    a(f's_lshl_b32 s11, s{S_B}, 5')
    a(f's_lshl_b32 s13, s{S_HG}, 3')
    a('s_add_u32 s11, s11, s13')
    a('s_lshl_b32 s11, s11, 13')
    for i in range(4):
        a(f'v_add_u32 v7, {8*i}, v3')
        a(f'v_lshl_add_u32 v6, v7, 8, v{8+i%2}')
        a(f'v_add_u32 v6, s11, v6')
        a(f'v_subrev_u32 v{L_DV+i}, {1024*i}, v6')
    a('s_waitcnt lgkmcnt(0)')
    a(f's_cmp_eq_u32 s{S_BR}, 1')
    srd_sel(SRD_X, 16, 26, 1 << 20)
    srd_sel(SRD_WQ, 22, 32, 8 << 20)
    srd_sel(SRD_K, 18, 28, 4 << 20)
    srd_sel(SRD_V, 20, 30, 4 << 20)
    srd_sel(SRD_WO, 24, 34, 8 << 20)
    srd(SRD_WS, 40, WS_BYTES)
    srd(SRD_DBG, 38, 256)
    a(f's_lshl_b32 s{S_LW}, s{S_W}, 12')
    a(f's_mul_i32 s{S_LW2}, s{S_W}, {WBLK}')
    a(f's_lshl_b32 s{S_2HD}, s{S_J8}, 1')
    if c.rhg:
        a(f's_mul_i32 s10, s{S_HG}, {c.rhg}')
        a(f's_add_u32 s{S_2HD}, s{S_2HD}, s10')
    if c.rbr:
        a(f's_mul_i32 s10, s{S_BR}, {c.rbr}')
        a(f's_add_u32 s{S_2HD}, s{S_2HD}, s10')
    a(f's_mov_b32 s{S_PD}, 0')

    def late_setup():
        a(f's_lshl_b32 s10, s{S_W}, 15')
        a(f's_lshl_b32 s13, s{S_NT}, 8')
        a('s_add_u32 s10, s10, s13')
        a(f's_lshl_b32 s13, s{S_HG}, 21')
        a('s_add_u32 s10, s10, s13')
        a('v_lshl_add_u32 v6, v5, 11, v12')
        a(f'v_add_u32 v{L_DWO}, s10, v6')
        for i in range(1, 4):
            a(f'v_add_u32 v{L_DWO+i}, {i*4*2048-WOFF[i]}, v{L_DWO}')
        a(f'v_and_b32 v6, 7, v2')
        a(f'v_lshlrev_b32 v{L_POLLA}, 3, v6')
        a(f's_lshl_b32 s{S_TMP}, s{S_BR}, 4')
        a(f's_add_u32 s{S_TMP}, s{S_TMP}, s{S_B}')
        a(f's_lshl_b32 s{S_TMP}, s{S_TMP}, 2')
        a(f's_add_u32 s{S_TMP}, s{S_TMP}, s{S_HG}')
        a(f's_lshl_b32 s{S_TMP+2}, s{S_TMP}, 7')
        a(f's_add_u32 s{S_TMP+2}, s{S_TMP+2}, {WS_FLAG}')
        a(f's_lshl_b32 s{S_TMP+4}, s{S_TMP}, 14')
        a(f's_mul_i32 s{S_TMP+5}, s{S_W}, 6144')
        a(f's_add_u32 s{S_TMP+5}, s{S_TMP+5}, {AUX}')
        a(f'v_lshlrev_b32 v{L_WA}, 2, v2')
        a(f's_lshl_b32 s10, s{S_B}, 5')
        a(f's_add_u32 s10, s10, s{S_HEAD}')
        a('s_lshl_b32 s10, s10, 13')
        a('v_lshlrev_b32 v6, 7, v2')
        a(f'v_add_u32 v{L_PFV}, s10, v6')
        a(f's_lshl_b32 s10, s{S_HG}, 21')
        a(f's_lshl_b32 s11, s{S_W}, 16')
        a('s_add_u32 s10, s10, s11')
        a(f's_lshl_b32 s11, s{S_NT}, 8')
        a('s_add_u32 s10, s10, s11')
        a('v_lshrrev_b32 v6, 1, v2')
        a('v_lshlrev_b32 v6, 11, v6')
        a('v_and_b32 v7, 1, v2')
        a('v_lshl_add_u32 v6, v7, 7, v6')
        a(f'v_add_u32 v{L_PFO}, s10, v6')

    for v in range(1, 4):
        a(f's_cmp_eq_u32 s{S_MT}, {v}')
        a(f's_cbranch_scc1 LOADER{v}')

    def loader(mt):
        tagn = f'{mt}'
        s1, s2 = p1_sched(mt), p2_sched(mt)
        nops = [0]; endpos = {}
        def tile(kind, slot):
            if kind in ('x', 'v', 'k'):
                base = slot*16384 if kind != 'k' else AUX
                v, s, f = {'x': (L_DX, SRD_X, c.fx), 'v': (L_DV, SRD_V, c.fv), 'k': (L_DV, SRD_K, c.fk)}[kind]
                so = S_SA
            else:
                base = WT0 + slot*WSLOT
                v, s, f = (L_DWQ, SRD_WQ, c.fw) if kind == 'wq' else (L_DWO, SRD_WO, c.fo)
                so = S_SW
            wt = kind in ('wq', 'wo')
            a(f's_add_u32 m0, s{S_LW2 if wt else S_LW}, {base}')
            a('s_nop 0')
            for i in range(4):
                a(f'buffer_load_dwordx4 v{v+i}, s[{s}:{s+3}], s{so} offen offset:{WOFF[i] if wt else 1024*i} {f} lds')
                nops[0] += 1
        def wflag(off, val):
            a(f's_add_u32 m0, s{S_TMP+3}, {off}')
            a(f'v_mov_b32 v{L_WV}, {4*val}')
            a('s_mov_b64 exec, 1')
            a(f'global_load_lds_dword v{L_WV}, s[{S_TAB}:{S_TAB+1}]')
            a('s_mov_b64 exec, -1')
        def pload(u, count):
            r, i, own = s2[u]
            a(f's_add_u32 s10, s{S_NT}, {4*r+i}')
            a(f's_and_b32 s10, s10, 7')
            a(f's_lshl_b32 s10, s10, 11')
            a(f's_add_u32 m0, s{S_TMP+5}, {((u-1)%3)*2048}')
            a(f's_add_u32 s10, s10, s{S_TMP+4}')
            for G in range(2):
                a(f'buffer_load_dwordx4 v{V_L16}, s[{SRD_WS}:{SRD_WS+3}], s10 offen offset:{1024*G} sc1 lds')
                if count: nops[0] += 1
        def poll():
            a(f'buffer_load_dwordx2 v[{L_POLL}:{L_POLL+1}], v{L_POLLA}, s[{SRD_WS}:{SRD_WS+3}], s{S_TMP+2} offen sc1')
        def bar():
            a('s_barrier')
            if c.gmode == 'dyn': a(f's_memtime s[{S_TB}:{S_TB+1}]')
            a(f's_add_u32 s{S_NB}, s{S_NB}, 1')
        def gate(n):
            nm = f'{tagn}_{n}'
            if n < 3: return
            a.label(f'GA{nm}')
            if n >= 4:
                a(f's_cmp_ge_u32 s{S_NB}, {n-3}')
                a(f's_cbranch_scc1 GB{nm}')
                bar()
                a.label(f'GB{nm}')
            if n >= 30 or c.gmode == 'static' or n >= c.gsw: return
            if c.gmode == 'once':
                if n == 3: return
                a(f's_cmp_ge_u32 s{S_NB}, {n-2}')
                a(f's_cbranch_scc1 GO{nm}')
                a(f's_getreg_b32 s10, hwreg(HW_REG_IB_STS)')
                a('s_and_b32 s10, s10, 0xc0000f')
                a(f's_cmp_le_u32 s10, {c.vthr}')
                a(f's_cbranch_scc1 GO{nm}')
                bar()
                a.label(f'GO{nm}')
                return
            a(f's_cmp_ge_u32 s{S_NB}, {n-2}')
            a(f's_cbranch_scc1 GO{nm}')
            a.label(f'GP{nm}')
            a(f's_getreg_b32 s10, hwreg(HW_REG_IB_STS)')
            a(f's_memtime s[{S_NOW}:{S_NOW+1}]')
            a('s_and_b32 s10, s10, 0xc0000f')
            a(f's_cmp_le_u32 s10, {c.vthr}')
            a(f's_cbranch_scc1 GO{nm}')
            a('s_waitcnt lgkmcnt(0)')
            a(f's_sub_u32 s10, s{S_NOW}, s{S_TB}')
            nb = n - 3
            bud = c.budget + (1100 if nb == 16 else 0) + (256 if (nb == 18 or (nb >= 22 and nb % 2 == 0)) else 0)
            a(f's_cmp_lt_u32 s10, {bud if n > 3 else 1 << 20}')
            a(f's_cbranch_scc1 GP{nm}')
            bar()
            a.label(f'GO{nm}')
        def tr(lane, reg):
            if c.trace:
                a('s_memrealtime s[76:77]')
                a('s_waitcnt lgkmcnt(0)')
                a(f'v_writelane_b32 v{reg}, s76, {lane}')
        for g in range(NG + 1):
            slot = g % 4
            start = nops[0]
            if g < NG:
                if g == c.pg - 1: poll()
                if g == 6:
                    a(f'buffer_load_dwordx2 v[{L_TAG}:{L_TAG+1}], off, s[{SRD_DBG}:{SRD_DBG+3}], 0 sc1')
                if g == c.pg:
                    a(f's_mov_b32 s{S_CNT}, {c.spin}')
                    a.label(f'PC{tagn}')
                    a(f'v_cmp_ne_u64 vcc, v[{L_POLL}:{L_POLL+1}], v[{L_TAG}:{L_TAG+1}]')
                    a(f's_cbranch_vccz PG{tagn}')
                    a(f's_sub_u32 s{S_CNT}, s{S_CNT}, 1')
                    a(f's_cbranch_scc1 PG{tagn}')
                    poll()
                    a('s_waitcnt vmcnt(0)')
                    a(f's_branch PC{tagn}')
                    a.label(f'PG{tagn}')
                    for u in (1, 2, 3): pload(u, False)
                if g in (25, 27, 29, 31): pload((g - 25) // 2 + 4, True)
                if g < 16:
                    r, i, own = s1[g]
                    a(f's_add_u32 s{S_IDX}, s{S_2HD}, {4*i+OFFR[r]}')
                    a(f's_and_b32 s{S_IDX}, s{S_IDX}, 15')
                    a(f's_lshl_b32 s{S_SA}, s{S_IDX}, 7')
                    a(f's_lshl_b32 s{S_SW}, s{S_IDX}, 19')
                    tile('x', slot); tile('wq', slot)
                    if own and r in (1, 3):
                        a(f's_lshl_b32 s{S_SA}, s{S_J8}, 13')
                        if r == 3: a(f's_add_u32 s{S_SA}, s{S_SA}, 128')
                        tile('k', 0)
                else:
                    u, half = divmod(g - 16, 2)
                    r, i, own = s2[u]
                    a(f's_add_u32 s{S_IDX}, s{S_NT}, {4*r+i}')
                    a(f's_and_b32 s{S_IDX}, s{S_IDX}, 7')
                    a(f's_lshl_b32 s{S_SA}, s{S_IDX}, 13')
                    a(f's_lshl_b32 s{S_SW}, s{S_IDX}, 18')
                    if half:
                        a(f's_add_u32 s{S_SA}, s{S_SA}, 128')
                        a(f's_add_u32 s{S_SW}, s{S_SW}, {64*2048}')
                    if half and own and r == 1: tile('wo', slot); tile('v', slot)
                    else: tile('v', slot); tile('wo', slot)
            n_this = nops[0] - start
            if g == 0:
                late_setup()
                continue
            a(f's_waitcnt vmcnt({n_this})')
            if g == 6:
                a(f's_mov_b32 s{S_CNT}, {c.spin}')
                a.label(f'TG{tagn}')
                a(f'v_cmp_eq_u64 vcc, 0, v[{L_TAG}:{L_TAG+1}]')
                a(f's_cbranch_vccz TGOK{tagn}')
                a(f's_sub_u32 s{S_CNT}, s{S_CNT}, 1')
                a(f's_cbranch_scc1 TGOK{tagn}')
                a('s_sleep 1')
                a(f'buffer_load_dwordx2 v[{L_TAG}:{L_TAG+1}], off, s[{SRD_DBG}:{SRD_DBG+3}], 0 sc1')
                a('s_waitcnt vmcnt(0)')
                a(f's_branch TG{tagn}')
                a.label(f'TGOK{tagn}')
                a(f's_mov_b32 m0, {CB_TAG}')
                a('s_mov_b64 exec, 3')
                a(f'buffer_load_dword v{L_WA}, s[{SRD_DBG}:{SRD_DBG+3}], 0 offen sc1 lds')
                a('s_mov_b64 exec, -1')
            a('s_barrier')
        if c.trace:
            a(f'v_writelane_b32 v51, s42, 63')
            a('s_mov_b32 s76, s40')
            a('s_mov_b32 s77, s41')
            a('s_mov_b32 s78, 0x10000000')
            a('s_mov_b32 s79, 0x00020000')
            a('s_lshl_b32 s75, s2, 2')
            a(f's_add_u32 s75, s75, s{S_W}')
            a('s_lshl_b32 s75, s75, 9')
            a(f's_add_u32 s75, s75, {(130<<20)}')
            a('v_lshlrev_b32 v3, 2, v2')
            a('buffer_store_dword v50, v3, s[76:79], s75 offen')
            a('buffer_store_dword v51, v3, s[76:79], s75 offen offset:256')
        a('s_endpgm')
    for v in range(4):
        if v: a.label(f'LOADER{v}')
        loader(v)

    a.label('COMPUTE')
    if c.cprio: a(f's_setprio {c.cprio}')
    a(f's_mov_b32 s{S_W}, s{S_WID}')
    a(f's_lshl_b32 s{S_B}, s{S_MT}, 2')
    a(f's_add_u32 s{S_B}, s{S_B}, s{S_W}')
    T = ACC
    a('s_waitcnt lgkmcnt(0)')
    a(f's_lshl_b32 s{S_LW}, s{S_W}, 12')
    a(f'v_and_b32 v{T}, 15, v2')
    a(f'v_lshrrev_b32 v{T+1}, 4, v2')
    a(f'v_lshrrev_b32 v{T+2}, 1, v{T}')
    a(f'v_lshlrev_b32 v{T+3}, 7, v{T}')
    a(f'v_add_u32 v{T+3}, s{S_LW}, v{T+3}')
    a(f'v_xor_b32 v{T+4}, v{T+2}, v{T+1}')
    a(f'v_lshl_add_u32 v{V_RA}, v{T+4}, 4, v{T+3}')
    a(f'v_xor_b32 v{V_RA+1}, 64, v{V_RA}')
    a(f'v_lshrrev_b32 v{T+4}, 1, v{T+1}')
    a(f'v_xor_b32 v{T+4}, v{T+4}, v{T+2}')
    a(f'v_lshl_add_u32 v{T+4}, v{T+4}, 4, v{T+3}')
    a(f'v_and_b32 v{T+5}, 1, v{T+1}')
    a(f'v_lshl_add_u32 v{T+4}, v{T+5}, 3, v{T+4}')
    a(f'v_add_u32 v{V_SP}, {AUX}, v{T+4}')
    def rt_setup(phase, T):
        L = []
        L.append(f'v_bfe_u32 v{T}, v2, 2, 2')
        L.append(f'v_bfe_u32 v{T+1}, v2, 4, 1')
        L.append(f'v_lshrrev_b32 v{T+2}, 5, v2')
        L.append(f'v_and_b32 v{T+3}, 3, v2')
        L.append(f'v_mul_u32_u24 v{T+1}, 2080, v{T+1}')
        L.append(f'v_mul_u32_u24 v{T+2}, {WBLK}, v{T+2}')
        L.append(f'v_add3_u32 v{T+4}, v{T+1}, v{T+2}, 0')
        L.append(f'v_lshl_add_u32 v{T+4}, v{T}, 8, v{T+4}')
        L.append(f'v_lshl_add_u32 v{T+4}, v{T+3}, 3, v{T+4}')
        L.append(f'v_add_u32 v{T+4}, {WT0}, v{T+4}')
        for t in range(4):
            if phase == 1:
                L.append(f'v_xor_b32 v{T+5}, {t}, v{T}')
            else:
                L.append(f's_add_u32 s10, s{S_HG}, {t}')
                L.append('s_and_b32 s10, s10, 3')
                L.append(f'v_xor_b32 v{T+5}, s10, v{T}')
            L.append(f'v_lshl_add_u32 v{V_RT+t}, v{T+5}, 6, v{T+4}')
        return L
    for l in rt_setup(1, T): a(l)
    srd(SRD_WS, 40, WS_BYTES)
    srd(SRD_OUT, 36, 2 << 20)
    srd(SRD_DBG, 38, 256)
    a(f's_or_b32 s13, s2, s{S_W}')
    a('s_cmp_lg_u32 s13, 0')
    a('s_cbranch_scc1 NOTAG')
    a(f'v_mov_b32 v{T}, s42')
    a(f'v_mov_b32 v{T+1}, s43')
    a(f'buffer_store_dwordx2 v[{T}:{T+1}], off, s[{SRD_DBG}:{SRD_DBG+3}], 0 sc0 sc1')
    a.label('NOTAG')
    cc = (128 ** -0.5) * math.log2(math.e)
    cbits = struct.unpack('<I', struct.pack('<f', cc))[0]
    a(f's_mov_b32 s{S_TMP+4}, {hex(cbits)}')
    a(f's_lshl_b32 s{S_TMP}, s{S_BR}, 4')
    a(f's_add_u32 s{S_TMP}, s{S_TMP}, s{S_B}')
    a(f's_lshl_b32 s{S_TMP+1}, s{S_TMP}, 2')
    a(f's_add_u32 s{S_TMP+1}, s{S_TMP+1}, s{S_HG}')
    a(f's_lshl_b32 s{S_TMP+1}, s{S_TMP+1}, 4')
    a(f's_add_u32 s{S_TMP+1}, s{S_TMP+1}, s{S_J8}')
    a(f's_lshl_b32 s{S_TMP+1}, s{S_TMP+1}, 3')
    a(f's_add_u32 s{S_TMP+1}, s{S_TMP+1}, {WS_FLAG}')
    a(f's_lshl_b32 s{S_TMP}, s{S_TMP}, 5')
    a(f's_add_u32 s{S_TMP}, s{S_TMP}, s{S_HEAD}')
    a(f's_lshl_b32 s{S_TMP}, s{S_TMP}, 11')
    a(f's_mul_i32 s{S_TMP+2}, s{S_W}, 6144')
    a(f's_add_u32 s{S_TMP+2}, s{S_TMP+2}, {AUX}')
    tail_salu(a)
    stamp(1)
    phase1(a, c, stamp)
    softmax(a, c, stamp, rt_setup)
    phase2(a, c, stamp)
    if c.leak >= 0:
        if c.leakj >= 0:
            a(f's_and_b32 s76, s{S_J8}, 3')
            a(f's_cmp_lg_u32 s76, {c.leakj}')
            a('s_cbranch_scc1 K_END')
        a.label('LEAKL')
        a('s_memrealtime s[76:77]')
        a('s_waitcnt lgkmcnt(0)')
        a('s_sub_u32 s76, s76, s80')
        a('s_cmp_lt_u32 s76, 3000')
        a('s_cbranch_scc1 LEAKL')
    if c.padto:
        a.label('PADL')
        a('s_memrealtime s[76:77]')
        a('s_waitcnt lgkmcnt(0)')
        a(f's_sub_u32 s76, s76, s{S_T0}')
        a(f's_cmp_lt_u32 s76, {c.padto}')
        a('s_cbranch_scc1 PADL')
    if c.stamps:
        n = 11
        a('s_waitcnt vmcnt(0) lgkmcnt(0)')
        stamp(n - 1)
        a('s_waitcnt lgkmcnt(0)')
        a(f's_cmp_lg_u32 s{S_WID}, 0')
        a('s_cbranch_scc1 K_END')
        a('s_mov_b32 s76, s40')
        a('s_mov_b32 s77, s41')
        a('s_mov_b32 s78, 0x10000000')
        a('s_mov_b32 s79, 0x00020000')
        a('s_lshl_b32 s75, s2, 7')
        a(f's_add_u32 s75, s75, {128<<20}')
        a('v_mov_b32 v3, 0')
        for i in range(n):
            a(f'v_mov_b32 v4, s{80+2*i}')
            a(f'v_mov_b32 v5, s{81+2*i}')
            a(f'buffer_store_dwordx2 v[4:5], v3, s[76:79], s75 offen offset:{8*i}')
            a('s_nop 1')
    a.label('K_END')
    a('s_endpgm')
    return a.text()

PF = VWB + 48
ACC_TAGT = VWB + 32

def spin(a, c, name, rd, test):
    a(f's_mov_b32 s{S_CNT}, {c.lspin}')
    a.label(name)
    a(rd)
    a(f's_sub_u32 s{S_CNT}, s{S_CNT}, 1')
    a('s_cbranch_scc1 K_END')
    a('s_waitcnt lgkmcnt(0)')
    a(test)
    a(f's_cbranch_vccnz {name}')
def flagread(kind):
    return f'ds_read_b32 v{V_FL}, v{V_CB}' + ('' if kind == 'F' else f' offset:{CB_PRDY-CB_FULL}')
def flagtest(kind, g):
    return f'v_cmp_ge_u32 vcc, {g}, v{V_FL}' if kind == 'F' else f'v_cmp_eq_u32 vcc, 0, v{V_FL}'

NBAR = [0]
class Sched:
    def __init__(s, a, c):
        s.a, s.c = a, c
        s.M = []; s.L = []; s.V = []
        s.lastuse = {}
        s.wn = 0; s.an = 0
    def m(s, ins, needs=(), uses=(), vneed=(), post=None):
        for r in uses: s.lastuse[r] = len(s.M)
        s.M.append(dict(ins=ins, needs=list(needs), vneed=list(vneed), post=post))
        return len(s.M) - 1
    def load(s, instrs, tag, reg, first, gate=None, rel=None, vreq=None, depth=None):
        after = -1
        for r in (reg if isinstance(reg, (list, tuple)) else [reg]):
            after = max(after, s.lastuse.get(r, -1))
        d = s.c.depth if depth is None else depth
        for it in instrs:
            s.L.append(dict(it=it, tag=tag, after=max(after + 1, first - d), first=first, gate=gate, rel=rel, vreq=vreq))
    def valu(s, instrs, after, group=None):
        for i in instrs: s.V.append(dict(ins=i, after=after, group=group))
    def run(s, nbar, pure, last_bar, stamps={}):
        a, c = s.a, s.c
        s.L.sort(key=lambda e: e['first'])
        s.V.sort(key=lambda e: e['after'])
        Q = list(s.L)
        issued = []; done = [0]; itime = []
        relcount = {}
        for e in Q:
            if e['rel'] is not None: relcount[e['rel']] = relcount.get(e['rel'], 0) + 1
        relpos = {}
        nm = [0]
        V = s.V
        def need(tags):
            if not tags: return
            for t in tags:
                if any(e['tag'] == t for e in Q):
                    while any(e['tag'] == t for e in Q):
                        assert pump(1, True), ('stuck', t, Q[0])
            idx = max(i for i, t in enumerate(issued) if t in tags) + 1
            if idx > done[0]:
                while idx < len(issued) and nm[0] - itime[idx] >= c.minage: idx += 1
                n = min(14, len(issued) - idx)
                a(f's_waitcnt lgkmcnt({n})')
                done[0] = len(issued) - n
        def pump(k, force=False):
            n = 0
            while n < k and Q:
                e = Q[0]
                if e['after'] > nm[0]:
                    if not (force and e['after'] - nm[0] <= 0): break
                if e['vreq'] is not None and any(v['group'] == e['vreq'] for v in V): break
                if e['gate'] is not None and e['gate'][1] >= nbar[0]:
                    b = nbar[0] - 2
                    if b in pure:
                        a('s_barrier'); nbar[0] += 1
                        continue
                    assert not force, ('gate', e, nbar)
                    break
                Q.pop(0)
                for l in e['it']: a(l)
                issued.append(e['tag']); itime.append(nm[0])
                if e['rel'] is not None:
                    relcount[e['rel']] -= 1; relpos[e['rel']] = len(issued)
                n += len(e['it'])
            return n
        def fill(k):
            n = 0
            while n < k and V and V[0]['after'] <= nm[0]:
                a(V.pop(0)['ins']); n += 1
            return n
        pump(99)
        for i, m in enumerate(s.M):
            flushed = False
            for g in m['vneed']:
                while any(v['group'] == g for v in V):
                    assert V[0]['after'] <= nm[0], ('valu not ready', i, g, V[0])
                    a(V.pop(0)['ins']); flushed = True
            need(m['needs'])
            src = set()
            for lo, hi in re.findall(r'v\[(\d+):(\d+)\]', m['ins'].split(',', 1)[1]): src |= set(range(int(lo), int(hi) + 1))
            for back, l in enumerate(reversed(a.lines[-2:])):
                mm = re.match(r'\s*v_(?!mfma)\w+ v(\d+),', l)
                if mm and int(mm.group(1)) in src:
                    a(f's_nop {1 - back}'); break
            a(m['ins']); nm[0] += 1
            if i in stamps: stamps[i]()
            b = nbar[0] - 2
            if b not in pure and b <= last_bar and relcount.get(b, 0) == 0 and relpos.get(b, 0) <= done[0]:
                a('s_barrier'); nbar[0] += 1
            urgent = Q and Q[0]['first'] - nm[0] <= c.urgent
            if last_bar < 16 and c.ra * 32 <= i < c.rb * 32: urgent = True
            n = pump(2 if urgent else 1)
            fill((m['post'] or c.vslots) - (c.vslots - c.vwith) * min(n, 1))
        assert not Q, Q[0]
        assert nbar[0] - 2 > last_bar, nbar
        return V

def wt_items(j, kk, t, e, d):
    return [[f'ds_read_b64_tr_b16 {ar(d+2*u,2)}, v{V_RT+t} offset:{(j%4)*WSLOT+kk*2*WBLK+u*1024+e*32}'] for u in range(2)]
def act_item(j, kk, ai, dst):
    return [[f'ds_read_b128 {dst}, v{V_RA+kk} offset:{(j%4)*16384+ai*2048}']]
def p_items(u, d):
    return [[f'ds_read_b128 {ar(d+4*G,4)}, v{V_SP} offset:{((u-1)%3)*2048+1024*G}'] for G in range(2)]

def gemm_stage(S, j, gate):
    lastw = {}
    for kk in range(2):
        aslot = [AA + 4*((S.an + x) % 3) for x in range(2)]; S.an += 2
        for h in range(2):
            base = len(S.M)
            if h == 0:
                for ai in range(2):
                    S.load(act_item(j, kk, ai, ar(aslot[ai], 4)), f'A{j}_{kk}_{ai}', aslot[ai], base + 4*ai - 0.5, gate, j)
            fr = []
            for w4 in range(4):
                t, e = 2*h + w4 // 2, w4 % 2
                d = AW + 4*(S.wn % 8); S.wn += 1
                S.load(wt_items(j, kk, t, e, d), f'W{j}_{kk}_{t}_{e}', d, base + w4, gate, j)
                fr.append((t, e, d))
            for ai in range(2):
                for (t, e, d) in fr:
                    r = ACC + 16*t + 8*e + 4*ai
                    first = kk == 0 and (j == 0 or (j >= 16 and j % 2 == 0))
                    ops = f'{ar(d,4)}, {ar(aslot[ai],4)}' if j < 16 else f'{ar(aslot[ai],4)}, {ar(d,4)}'
                    vn = [f'cv{(j-16)//2-1}_{t}_{e}'] if (first and j >= 18) else []
                    lastw[(t, e, ai)] = S.m(f'{MF} {vr(r,4)}, {ops}, ' + ('0' if first else vr(r, 4)),
                                            needs=[f'W{j}_{kk}_{t}_{e}', f'A{j}_{kk}_{ai}'], uses=[d, aslot[ai]], vneed=vn)
    return lastw

def phase1(a, c, stamp):
    a('s_barrier'); NBAR[0] = 1
    stamp(2)
    S = Sched(a, c)
    st = {}
    for j in range(16):
        if j in (5, 13):
            hf = 0 if j == 5 else 1
            base = len(S.M)
            n = 0
            for Tp in range(2):
                for e in range(2):
                    it = []
                    for ki in range(2):
                        x = [f'v_xor_b32 v{V_T3}, {(4*Tp+2*e)<<4}, v{V_SP}'] if ki == 0 else []
                        it.append(x + [f'ds_read_b64 {ar(AK+8*(2*hf+Tp)+4*ki+2*e,2)}, v{V_T3} offset:{2048*ki}'])
                    S.load(it, f'K{hf}_{Tp}_{e}', 'none', base + 12.7 + 4*n, ('F', j), j, depth=8)
                    n += 1
        if j == 8: st[len(S.M)] = lambda: stamp(3)
        if c.fine >= 0 and 0 <= j - c.fine < 9: st[len(S.M)] = (lambda jj: lambda: stamp(jj - c.fine + 1, True))(j)
        gemm_stage(S, j, ('F', j))
    V = S.run(NBAR, {-1}, c.p1last, st)
    assert not V

def red2(a, op, x0, x1, t0, t1):
    for sw in ('v_permlane32_swap_b32', 'v_permlane16_swap_b32'):
        a(f'v_mov_b32 v{t0}, v{x0}')
        a(f'v_mov_b32 v{t1}, v{x1}')
        a('s_nop 0')
        a(f'{sw} v{x0}, v{t0}')
        a(f'{sw} v{x1}, v{t1}')
        a('s_nop 0')
        a(f'{op} v{x0}, v{x0}, v{t0}')
        a(f'{op} v{x1}, v{x1}, v{t1}')

def softmax(a, c, stamp, rt_setup):
    QF = VWB; S = VWB + 32
    stamp(4)
    a(f'v_mov_b32 v{V_T3}, {CB_TAG}')
    a(f'ds_read_b64 v[{VWB+56}:{VWB+57}], v{V_T3}')
    def qcv(t):
        L = []
        for ai in range(2):
            for e in range(2):
                for x in range(2):
                    r = ACC + 16*t + 8*e + 4*ai + 2*x
                    L.append(f'v_cvt_pk_bf16_f32 v{QF+8*t+4*ai+2*e+x}, v{r}, v{r+1}')
        return L
    for l in qcv(0) + qcv(1): a(l)
    for t in range(4):
        rest = qcv(t + 2) if t < 2 else []
        for mi in range(2):
            for ki in range(2):
                d = vr(S + 8*mi + 4*ki, 4)
                a(f'{MF} {d}, {ar(AK+8*t+4*ki,4)}, {vr(QF+8*t+4*mi,4)}, ' + ('0' if t == 0 else d))
                for l in rest[:2]: a(l)
                rest = rest[2:]
    a('s_waitcnt lgkmcnt(0)')
    if NBAR[0] == 16 and c.b16 == 'mid':
        a('s_barrier'); NBAR[0] += 1
    a(f'v_readfirstlane_b32 s{S_T0}, v{VWB+56}')
    a(f'v_readfirstlane_b32 s{S_T0+1}, v{VWB+57}')
    a(f's_bitcmp1_b32 s{S_HG}, 0')
    a('s_cbranch_scc0 RS0')
    a(f'v_swap_b32 v{V_RT}, v{V_RT+1}')
    a(f'v_swap_b32 v{V_RT+2}, v{V_RT+3}')
    a.label('RS0')
    a(f's_bitcmp1_b32 s{S_HG}, 1')
    a('s_cbranch_scc0 RS1')
    a(f'v_swap_b32 v{V_RT}, v{V_RT+2}')
    a(f'v_swap_b32 v{V_RT+1}, v{V_RT+3}')
    a.label('RS1')
    a('s_nop 1')
    x = [ACC, ACC + 1]; t0, t1 = ACC + 2, ACC + 3
    for mi in range(2): a(f'v_max3_f32 v{x[mi]}, v{S+8*mi}, v{S+8*mi+1}, v{S+8*mi+2}')
    for mi in range(2): a(f'v_max3_f32 v{x[mi]}, v{x[mi]}, v{S+8*mi+3}, v{S+8*mi+4}')
    for mi in range(2): a(f'v_max3_f32 v{x[mi]}, v{x[mi]}, v{S+8*mi+5}, v{S+8*mi+6}')
    for mi in range(2): a(f'v_max_f32 v{x[mi]}, v{x[mi]}, v{S+8*mi+7}')
    red2(a, 'v_max_f32', x[0], x[1], t0, t1)
    for mi in range(2): a(f'v_mul_f32 v{x[mi]}, s{S_TMP+4}, v{x[mi]}')
    for i in range(16):
        a(f'v_fma_f32 v{S+i}, v{S+i}, s{S_TMP+4}, -v{x[i//8]}')
    for i in range(16):
        a(f'v_exp_f32 v{S+i}, v{S+i}')
    for mi in range(2): a(f'v_add_f32 v{x[mi]}, v{S+8*mi}, v{S+8*mi+1}')
    for i in range(2, 8):
        for mi in range(2): a(f'v_add_f32 v{x[mi]}, v{x[mi]}, v{S+8*mi+i}')
    red2(a, 'v_add_f32', x[0], x[1], t0, t1)
    for mi in range(2): a(f'v_rcp_f32 v{x[mi]}, v{x[mi]}')
    a('s_nop 0')
    for i in range(16):
        a(f'v_mul_f32 v{S+i}, v{S+i}, v{x[i//8]}')
    for i in range(8):
        a(f'v_cvt_pk_bf16_f32 v{PF+i}, v{S+2*i}, v{S+2*i+1}')
    for G in range(2):
        a(f'buffer_store_dwordx4 {vr(PF+4*G,4)}, v{V_L16}, s[{SRD_WS}:{SRD_WS+3}], s{S_TMP} offen offset:{1024*G} sc0 sc1')
    a(f'v_add_u32 v{V_SP}, s{S_TMP+2}, v{V_L16}')
    a(f's_mul_i32 s{S_TG2}, s{S_T0}, 0x9e3779b1')
    a(f's_xor_b32 s{S_TG2}, s{S_TG2}, s{S_T0+1}')
    while NBAR[0] < (17 if c.b16 != 'late' else 17):
        a('s_barrier'); NBAR[0] += 1

S_SEND = 21
S_RCV = 25
S_OUTO = 29
S_TG2 = 18
def tail_salu(a):
    B = 19
    a(f's_lshl_b32 s{B}, s{S_BR}, 2')
    a(f's_add_u32 s{B}, s{B}, s{S_MT}')
    a(f's_lshl_b32 s{B}, s{B}, 3')
    a(f's_add_u32 s{B}, s{B}, s{S_NT}')
    a(f's_mul_i32 s{B}, s{B}, {4*3*4*4096}')
    a(f's_add_u32 s{B}, s{B}, s{S_LW}')
    a(f's_add_u32 s{B}, s{B}, {WS_X}')
    for t in (1, 2, 3):
        d = S_SEND + t
        a(f's_xor_b32 s{d}, s{S_HG}, {t}')
        a(f's_mul_i32 s{d}, s{d}, {3*16384}')
        a(f's_add_u32 s{d}, s{d}, s{B}')
        a(f's_add_u32 s{d}, s{d}, {(t-1)*16384}')
    a(f's_mul_i32 s{S_RCV}, s{S_HG}, {3*16384}')
    a(f's_add_u32 s{S_RCV}, s{S_RCV}, s{B}')
    a(f's_add_u32 s{S_RCV+1}, s{S_RCV}, 16384')
    a(f's_add_u32 s28, s{S_RCV}, 32768')
    a(f's_lshl_b32 s{S_OUTO}, s{S_B}, 17')
    a(f's_lshl_b32 s11, s{S_BR}, 11')
    a(f's_add_u32 s{S_OUTO}, s{S_OUTO}, s11')
    a(f's_lshl_b32 s11, s{S_NT}, 8')
    a(f's_add_u32 s{S_OUTO}, s{S_OUTO}, s11')
    a(f's_lshl_b32 s11, s{S_HG}, 6')
    a(f's_add_u32 s{S_OUTO}, s{S_OUTO}, s11')

JOBS = [(1, 6), (2, 6), (1, 7), (2, 7), (3, 6), (3, 7), (0, 6), (0, 7)]
HZ = 6

def phase2(a, c, stamp):
    stamp(5)
    S = Sched(a, c)
    st = {}
    def pstage(u, preg, ptag, tiles=(1, 2, 3, 0)):
        last = {}
        for t in tiles:
            for e in range(2):
                for qi in range(2):
                    o = ar(AO + 16*t + 8*e + 4*qi, 4)
                    p = vr(PF + 4*qi, 4) if u == 0 else ar(preg + 4*qi, 4)
                    last[t] = S.m(f'{MF} {o}, {vr(VWB+32*(u%2)+8*t+4*e,4)}, {p}, ' + ('0' if u == 0 else o),
                                  needs=[ptag] if ptag else [], uses=[preg, preg + 4] if u else [], vneed=[f'cv{u}_{t}_{e}'])
        return last
    for j in range(16, 28):
        u = (j - 16) // 2
        base = len(S.M)
        if j == 24: st[base] = lambda: stamp(6)
        if c.fine >= 0 and 0 <= j - c.fine < 9: st[base] = (lambda jj: lambda: stamp(jj - c.fine + 1, True))(j)
        if j >= 21 and j % 2 == 1:
            S.load(p_items(u - 1, AP), f'P{u-1}', [AP, AP + 4], base + 12.7, ('F', c.pg - 1) if j == 21 else ('F', j), j, depth=6)
        if j == 16:
            S.valu(['s_waitcnt vmcnt(0)', f'v_mov_b32 v{ACC_TAGT}, s{S_T0}', f'v_mov_b32 v{ACC_TAGT+1}, s{S_T0+1}',
                    f'buffer_store_dwordx2 v[{ACC_TAGT}:{ACC_TAGT+1}], off, s[{SRD_WS}:{SRD_WS+3}], s{S_TMP+1} sc0 sc1'], base + c.pubat)
        lw = gemm_stage(S, j, ('F', j))
        if j % 2 == 1:
            for t in range(4):
                for e in range(2):
                    r = ACC + 16*t + 8*e; d = VWB + 32*(u % 2) + 8*t + 4*e
                    S.valu([f'v_cvt_pk_bf16_f32 v{d+i}, v{r+2*i}, v{r+2*i+1}' for i in range(4)], lw[(t, e, 1)] + HZ, f'cv{u}_{t}_{e}')
            if u >= 2: pstage(u - 1, AP, f'P{u-1}')
        if j == 18: pstage(0, None, None)
    st[len(S.M)] = lambda: stamp(7)
    ACCB = [VWB, VWB + 16, VWB + 32]
    SB = VWB + 48; TMP = VWB + 60
    TGV = V_CB
    PB = AA
    S.load(p_items(5, PB), 'P5', [AA, AA + 4, AA + 8], len(S.M), ('F', 27), None)
    pstage(5, PB, 'P5')
    p5end = len(S.M)
    PFR = {6: AP, 7: PB}
    seenv = set(); seenp = set()
    pend = None
    def send(t):
        L = []
        for i in range(8):
            x, y = TMP + (2*i) % 4, TMP + (2*i+1) % 4
            L.append(f'v_accvgpr_read_b32 v{x}, a{AO+16*t+2*i}')
            L.append(f'v_accvgpr_read_b32 v{y}, a{AO+16*t+2*i+1}')
            L.append(f'v_cvt_pk_bf16_f32 v{SB+4*(i//3)+i%3}, v{x}, v{y}')
            if i in (2, 5, 7):
                L.append(f'buffer_store_dwordx4 {vr(SB+4*(i//3),4)}, v{V_L16}, s[{SRD_WS}:{SRD_WS+3}], s{S_SEND+t} offen offset:{1024*(i//3)} {c.xst}')
        return L
    def cvj(k, e):
        b = ACCB[k % 3] + 8*e
        return [f'v_cvt_pk_bf16_f32 v{b+i}, v{b+2*i}, v{b+2*i+1}' for i in range(4)]
    def pmf_ins(k):
        t, u = JOBS[k]; L = []
        for e in range(2):
            for qi in range(2):
                o = ar(AO + 16*t + 8*e + 4*qi, 4)
                L.append((e, f'{MF} {o}, {vr(ACCB[k%3]+8*e,4)}, {ar(PFR[u]+4*qi,4)}, {o}'))
        return L
    def pmf(k):
        t, u = JOBS[k]
        for e, ins in pmf_ins(k):
            i = S.m(ins, needs=[f'P{u}'], uses=[PFR[u], PFR[u] + 4], vneed=[f'cj{k}_{e}'], post=c.frate)
        if u == 7: S.valu(send(t), i + HZ, f'send{t}')
    R = [ACC, ACC + 12, ACC + 24]
    def rreg(k, qx):
        if k == 2 and qx == 2: return SB
        return R[k] + 4*qx
    RCV = [S_RCV, S_RCV + 1, 28]
    def rloads(ks):
        return [f'buffer_load_dwordx4 {vr(rreg(k,qx),4)}, v{V_L16}, s[{SRD_WS}:{SRD_WS+3}], s{RCV[k]} offen offset:{1024*qx} {c.xld}' for k in ks for qx in range(3)]
    tagset = False
    for k, (t, u) in enumerate(JOBS):
        lw = {}
        for k4 in range(4):
            j = 16 + 2*u + k4 // 2; kk = k4 % 2
            base = len(S.M)
            vreg = [ACC + 32*(u-6) + 8*k4 + 4*ki for ki in range(2)]
            if (u, k4) not in seenv:
                seenv.add((u, k4))
                for ki in range(2):
                    tt, ee = divmod((vreg[ki] - ACC) // 8, 2)
                    S.load(act_item(j, kk, ki, vr(vreg[ki], 4)), f'V{u}_{k4}_{ki}', 'none', base + ki - 0.5, ('F', j), None, vreq=f'cv5_{tt}_{ee}', depth=c.fdepth)
            fr = []
            for e in range(2):
                d = AW + 4*(S.wn % 8); S.wn += 1
                S.load(wt_items(j, kk, t, e, d), f'X{k}_{k4}_{e}', d, base + 2*e, ('F', j), None, depth=c.fdepth)
                fr.append(d)
            if k4 == 3 and u not in seenp:
                seenp.add(u)
                S.load(p_items(u, PFR[u]), f'P{u}', [PFR[u], PFR[u] + 4], base + 3.5, ('F', j), None, depth=c.fdepth)
            for e in range(2):
                for ki in range(2):
                    r = vr(ACCB[k % 3] + 8*e + 4*ki, 4)
                    lw[e] = S.m(f'{MF} {r}, {vr(vreg[ki],4)}, {ar(fr[e],4)}, ' + ('0' if k4 == 0 else r),
                                needs=[f'X{k}_{k4}_{e}', f'V{u}_{k4}_{ki}'], uses=[fr[e]], post=c.frate)
            if k4 == 1 and k > 0: pmf(k - 1)
            if u == 7 and k4 == 3 and not tagset:
                tagset = True
                S.valu([f'v_and_b32 v{V_T3}, 1, v{V_LANE}', f'v_cmp_eq_u32 vcc, 0, v{V_T3}', f'v_mov_b32 v{V_T3}, s{S_TG2}',
                        f'v_mov_b32 v{V_FL}, s{S_T0}', f'v_cndmask_b32 v{TGV}, v{V_T3}, v{V_FL}, vcc'] +
                       [f'v_mov_b32 v{SB+4*x+3}, v{TGV}' for x in range(3)], len(S.M) - 3)
            if k == 7 and k4 == c.rcv_k4:
                S.valu(rloads((0, 1)), len(S.M) - 2)
        if k < 7:
            for e in range(2): S.valu(cvj(k, e), lw[e] + HZ - 0.5, f'cj{k}_{e}')
    V = S.run(NBAR, {28, 29}, 27, st)
    assert NBAR[0] == 32, NBAR
    for v in V: a(v['ins'])
    VO = V_RA
    a(f'v_and_b32 v{VO}, 15, v{V_LANE}')
    a(f'v_lshlrev_b32 v{VO}, 12, v{VO}')
    a(f'v_bfe_u32 v{V_T3}, v{V_LANE}, 4, 1')
    a(f'v_lshl_add_u32 v{VO}, v{V_T3}, 5, v{VO}')
    a(f'v_lshrrev_b32 v{V_T3}, 5, v{V_LANE}')
    a(f'v_lshl_add_u32 v{VO}, v{V_T3}, 4, v{VO}')
    a(f's_mov_b32 s{S_TMP+3}, {c.spin}')
    a(f's_mov_b32 s{S_TMP+4}, 0xffff0000')
    a(f's_add_u32 s{S_TMP+5}, s{S_OUTO}, 65536')
    for e in range(2):
        for l in cvj(7, e): a(l)
    for l in rloads((2,)): a(l)
    for e, ins in pmf_ins(7): a(ins)
    stamp(8)
    O = ACCB[2]
    XT = V_RT
    def check(k, first_wait):
        a(f's_waitcnt vmcnt({first_wait})')
        a(f's_branch XC{k}')
        a.label(f'XR{k}')
        a(f's_sub_u32 s{S_TMP+3}, s{S_TMP+3}, 1')
        a('s_cbranch_scc1 K_END')
        if c.xsleep: a(f's_sleep {c.xsleep}')
        for l in rloads((k,)): a(l)
        a('s_waitcnt vmcnt(0)')
        a.label(f'XC{k}')
        tg = [rreg(k, qx) + 3 for qx in range(3)]
        for i, r in enumerate(tg):
            a(f'v_xor_b32 v{XT+i}, v{r}, v{TGV}')
        a(f'v_or3_b32 v0, v{XT}, v{XT+1}, v{XT+2}')
        a('v_cmp_ne_u32 vcc, 0, v0')
        a(f's_cbranch_vccnz XR{k}')
    def acc(k, first):
        for i in range(8):
            d = rreg(k, i // 3) + i % 3
            if first:
                a(f'v_lshlrev_b32 v{O+2*i}, 16, v{d}')
                a(f'v_and_b32 v{O+2*i+1}, s{S_TMP+4}, v{d}')
            else:
                a(f'v_lshlrev_b32 v{XT+(2*i)%4}, 16, v{d}')
                a(f'v_and_b32 v{XT+(2*i+1)%4}, s{S_TMP+4}, v{d}')
                a(f'v_add_f32 v{O+2*i}, v{O+2*i}, v{XT+(2*i)%4}')
                a(f'v_add_f32 v{O+2*i+1}, v{O+2*i+1}, v{XT+(2*i+1)%4}')
    check(0, 6); acc(0, True)
    check(1, 3); acc(1, False)
    for r in range(16):
        a(f'v_accvgpr_read_b32 v{XT+r%4}, a{AO+r}')
        a(f'v_add_f32 v{O+r}, v{O+r}, v{XT+r%4}')
    check(2, 0)
    stamp(9)
    acc(2, False)
    F = ACCB[0]
    for e in range(2):
        for qi in range(2):
            for x in range(2):
                r = O + 8*e + 4*qi + 2*x
                a(f'v_cvt_pk_bf16_f32 v{F+4*qi+2*e+x}, v{r}, v{r+1}')
    a('s_nop 1')
    for qi in range(2):
        for x in range(2):
            a(f'v_permlane16_swap_b32 v{F+4*qi+x}, v{F+4*qi+2+x}')
    a('s_nop 1')
    a(f'buffer_store_dwordx4 {vr(F,4)}, v{VO}, s[{SRD_OUT}:{SRD_OUT+3}], s{S_OUTO} offen {c.ost}')
    a(f'buffer_store_dwordx4 {vr(F+4,4)}, v{VO}, s[{SRD_OUT}:{SRD_OUT+3}], s{S_TMP+5} offen {c.ost}')

def build(c, out):
    P2POS[:] = [int(x) for x in c.p2pos]
    P1POS[:] = [int(x) for x in c.p1pos]
    hdr = open('header.txt').read().splitlines()
    t = '\n'.join(hdr) + '\n'
    t += '; @launch grid=(256,1,1) block=(512,1,1) lds=163840\n'
    t += '.amdgcn_target "amdgcn-amd-amdhsa--gfx950"\n.text\n'
    t += f'.globl {NAME}_kernel\n'
    out_l = []
    for l in gen(c).split('\n'):
        if c.nodma and ' lds' in l and 'sc1' not in l: continue
        if c.noread and ('ds_read_b128' in l or 'ds_read_b64_tr' in l): continue
        if c.nomfma and 'v_mfma' in l: continue
        if c.same and f's_and_b32 s{S_IDX}, s{S_IDX},' in l: l = f'    s_and_b32 s{S_IDX}, s{S_IDX}, 1'
        out_l.append(l)
    t += '\n'.join(out_l)
    t += kd(f'{NAME}_kernel', 256, 102, ACCUM_OFF)
    open(out, 'w').write(t)

if __name__ == '__main__':
    c = Cfg()
    out = sys.argv[1]
    for kv in sys.argv[2:]:
        k, v = kv.split('=', 1)
        old = getattr(c, k)
        if v == 'None': v = None
        elif isinstance(old, bool): v = v in ('1', 'True')
        elif isinstance(old, int): v = int(v)
        setattr(c, k, v)
    build(c, out)
```

```python
import sys, math, struct, re
from asmlib import *

NAME = 'concat_heads__mha_block_cached__gqa_block_cached__near_ridge'
MF = 'v_mfma_f32_16x16x32_bf16'

class Cfg:
    stamps = False; cyc = False; trace = False
    fx = ''; fw = ''; fk = ''; fv = ''; fo = ''
    xst = 'sc1'; xld = 'sc1'
    spin = 1 << 16
    lspin = 1 << 20
    cprio = 1
    early = 16
    psleep = 8
    pfirst = 22
    budget = 320
    pfv = -1
    pfo = -1
    pfo2 = -1
    xsleep = 0
    leak = -1
    fdepth = 10
    rcv_at = 61
    fdepth2 = 3
    jobs = 'b'
    frate = 3
    tlbw = -1
    tlbws = True
    p2pos = '2344'
    p1pos = '4444_4444_1234'
    vslots = 2
    lsat = 0
    kearly = False
    calign = 0
    cpad = 0
    lfirst = False
    ra = 0
    rb = 4
    d0 = 0
    dn = 0
    p1last = 13
    b16 = 'end'
    pg = 23
    gsw = 99
    gmode = 'static'
    leakj = -1
    rhg = 0
    rbr = 0
    jrot = 0
    fine = -1
    ost = ''
    vwith = 1
    urgent = 7
    minage = 5
    flead = 5
    pubat = 22
    rcv_k4 = 2
    depth = 12
    same = False
    vthr = 8
    pprog = 18
    slowpath = True
    nodma = False; noread = False; nomfma = False
    padto = 0
    lsleep = 1
    ctrace = False
    nofree = False
    noprog = False
    noflag = False
    lpace = 0
    fewflags = False
    progop = ''
    ex1 = True

S_XCD, S_MT, S_BR, S_HG, S_J8, S_W, S_B, S_NT, S_HEAD, S_WID = 3, 4, 5, 6, 7, 8, 9, 15, 12, 14
SRD_X, SRD_K, SRD_V, SRD_WQ, SRD_WO, SRD_WS, SRD_OUT, SRD_DBG = 44, 48, 52, 56, 60, 64, 68, 72
S_SA, S_SW, S_IDX, S_LW = 24, 25, 26, 27
S_2HD = 28; S_PD = 29
S_TMP = 30
S_T0 = 16
S_LW2 = 18
S_CNT = 20
S_NB = 21
S_TB = 22
S_TAB = 36
S_NOW = 38
V_FL = 0; V_T3 = 1
V_LANE = 2; V_CB = 3
V_RA = 4; V_RT = 6; V_L16 = 10; V_SP = 11
ACC = 12; VWB = 76
ACCUM_OFF = 140
AW = 0; AA = 32; AP = 44; AO = 52
AK = AO
L_DX, L_DWQ, L_DV, L_DWO = 16, 20, 24, 28
L_POLLA, L_POLL, L_TAG, L_THR, L_WA, L_WV, L_FA, L_TMP, L_THR2 = 32, 34, 36, 38, 39, 40, 41, 42, 43
L_PFV, L_PFO, L_JUNK = 44, 45, 46

WS_FLAG = 2 << 20
WS_X = 4 << 20
WS_BYTES = 16 << 20
WT0 = 65536; WSLOT = 16512; WBLK = 4128
WOFF = [0, 1024, 2080, 3104]
AUX = WT0 + 4*WSLOT
CB = 163840 - 2048
CB_FULL = CB + 1024; CB_PRDY = CB + 1040; CB_TAG = CB + 1056
OFFR = [0, 2, 1, 3]
NG = 32

P1POS = [[1, 2, 3, 4]] * 3
def p1_sched(mt):
    own = {0: 0}
    def ftime(r, q): return 0 if r == 0 else P1POS[r-1][q] + 4*(r-1)
    for r in (1, 2, 3): own[ftime(r, mt)] = r
    fol = sorted([(ftime(r, q), r, q) for r in range(4) for q in range(4) if q != mt], key=lambda x: (x[1], x[0]))
    L = []
    for tau in range(16):
        if tau in own: L.append((own[tau], mt, True))
        else:
            ft, r, q = fol.pop(0)
            assert ft < tau, (mt, tau, ft)
            assert r < 2 or ftime(2, mt) < tau, (mt, tau, r)
            L.append((r, q, False))
    return L
P2POS = [1, 2, 3, 4]
def p2_sched(mt):
    fol0 = [(0, q, False) for q in range(4) if q != mt]
    p = P2POS[mt]
    L = [(0, mt, True)] + fol0[:p-1] + [(1, mt, True)] + fol0[p-1:]
    L += [(1, q, False) for q in sorted(range(4), key=lambda q: P2POS[q]) if q != mt]
    return L

def gen(c):
    a = Asm()
    def stamp(i, fine=False):
        if c.fine >= 0 and not fine and 0 < i < 10: return
        if c.leak == i: a('s_memrealtime s[80:81]')
        if c.stamps: a(f'{"s_memtime" if (c.cyc and i > 0) else "s_memrealtime"} s[{80+2*i}:{81+2*i}]')
    a.raw('.p2align 8')
    a.raw(f'.type {NAME}_kernel,@function')
    a.label(f'{NAME}_kernel')
    a('s_cmp_ge_u32 s2, 256')
    a('s_cbranch_scc1 K_END')
    stamp(0)
    a('s_load_dwordx16 s[16:31], s[0:1], 0')
    a('s_load_dwordx8 s[32:39], s[0:1], 64')
    a('s_load_dwordx2 s[40:41], s[0:1], 96')
    a(f's_and_b32 s{S_XCD}, s2, 7')
    a(f's_lshr_b32 s{S_MT}, s2, 3')
    a(f's_lshr_b32 s{S_BR}, s{S_XCD}, 2')
    a(f's_and_b32 s{S_HG}, s{S_XCD}, 3')
    if c.jrot: a(f's_add_u32 s{S_J8}, s{S_MT}, {c.jrot}')
    a(f's_and_b32 s{S_J8}, s{S_J8 if c.jrot else S_MT}, 7')
    a(f's_lshr_b32 s{S_MT}, s{S_MT}, 3')
    a('v_lshrrev_b32 v1, 6, v0')
    a(f'v_and_b32 v{V_LANE}, 63, v0')
    a(f's_sub_u32 s{S_NT}, s{S_J8}, s{S_MT}')
    a(f'v_readfirstlane_b32 s{S_WID}, v1')
    a(f's_and_b32 s{S_NT}, s{S_NT}, 7')
    a(f's_lshl_b32 s{S_HEAD}, s{S_HG}, 3')
    a(f's_add_u32 s{S_HEAD}, s{S_HEAD}, s{S_J8}')
    a(f'v_lshlrev_b32 v{V_L16}, 4, v2')
    def srd_sel(d, pa, pb, nbytes):
        a(f's_cselect_b32 s{d}, s{pb}, s{pa}')
        a(f's_cselect_b32 s{d+1}, s{pb+1}, s{pa+1}')
        a(f's_mov_b32 s{d+2}, {hex(nbytes)}')
        a(f's_mov_b32 s{d+3}, 0x00020000')
    def srd(d, p, nbytes):
        a(f's_mov_b32 s{d}, s{p}')
        a(f's_mov_b32 s{d+1}, s{p+1}')
        a(f's_mov_b32 s{d+2}, {hex(nbytes)}')
        a(f's_mov_b32 s{d+3}, 0x00020000')
    if c.lfirst: a(f's_xor_b32 s{S_WID}, s{S_WID}, 4')
    a(f's_cmp_lt_u32 s{S_WID}, 4')
    a('s_cbranch_scc1 COMPUTE')

    a(f's_and_b32 s{S_W}, s{S_WID}, 3')
    a(f's_lshl_b32 s{S_B}, s{S_MT}, 2')
    a(f's_add_u32 s{S_B}, s{S_B}, s{S_W}')
    a(f's_mov_b32 s44, {8*2048-1024}')
    a('v_lshrrev_b32 v3, 3, v2')
    a('v_and_b32 v4, 7, v2')
    a('v_lshrrev_b32 v5, 4, v2')
    a(f's_lshl_b32 s10, s{S_B}, 16')
    a('v_xor_b32 v6, v5, v4')
    a('v_lshlrev_b32 v8, 4, v6')
    a('v_xor_b32 v9, 64, v8')
    a('v_lshl_add_u32 v6, v3, 11, s10')
    a(f'v_add_u32 v{L_DX}, v6, v8')
    a(f'v_add3_u32 v{L_DX+1}, v6, v9, s44')
    a(f'v_add_u32 v{L_DX+2}, {16*2048-2048}, v{L_DX}')
    a(f'v_add_u32 v{L_DX+3}, {16*2048-2048}, v{L_DX+1}')
    a('v_and_b32 v6, 15, v2')
    a('v_lshlrev_b32 v7, 2, v5')
    a('v_xor_b32 v6, v6, v7')
    a('v_lshlrev_b32 v12, 4, v6')
    a(f's_lshl_b32 s10, s{S_W}, 17')
    a(f's_lshl_b32 s13, s{S_HEAD}, 8')
    a('s_add_u32 s10, s10, s13')
    a('v_lshl_add_u32 v6, v5, 13, v12')
    a(f'v_add_u32 v{L_DWQ}, s10, v6')
    for i in range(1, 4):
        a(f'v_add_u32 v{L_DWQ+i}, {i*4*8192-WOFF[i]}, v{L_DWQ}')
    a(f's_lshl_b32 s78, s{S_MT}, 1')
    a(f's_add_u32 s78, s78, s{S_J8}')
    a('s_and_b32 s78, s78, 7')
    a('s_lshl_b32 s79, s78, 20')
    a('s_lshl_b32 s78, s78, 8')
    a(f's_mul_i32 s77, s{S_W}, {WBLK}')
    a(f's_lshl_b32 m0, s{S_W}, 12')
    a(f's_mov_b32 s{SRD_X+2}, {1 << 20}')
    a(f's_mov_b32 s{SRD_X+3}, 0x00020000')
    a(f's_mov_b32 s{SRD_WQ+2}, {8 << 20}')
    a(f's_mov_b32 s{SRD_WQ+3}, 0x00020000')
    a(f's_cmp_eq_u32 s{S_BR}, 1')
    a('s_waitcnt lgkmcnt(0)')
    a(f's_cselect_b64 s[{SRD_X}:{SRD_X+1}], s[26:27], s[16:17]')
    a(f's_cselect_b64 s[{SRD_WQ}:{SRD_WQ+1}], s[32:33], s[22:23]')
    for i in range(4):
        a(f'buffer_load_dwordx4 v{L_DX+i}, s[{SRD_X}:{SRD_X+3}], s78 offen offset:{1024*i} {c.fx} lds')
    srd_sel(SRD_K, 18, 28, 4 << 20)
    srd_sel(SRD_V, 20, 30, 4 << 20)
    srd_sel(SRD_WO, 24, 34, 8 << 20)
    a(f's_add_u32 m0, s77, {WT0}')
    a('s_nop 0')
    for i in range(4):
        a(f'buffer_load_dwordx4 v{L_DWQ+i}, s[{SRD_WQ}:{SRD_WQ+3}], s79 offen offset:{WOFF[i]} {c.fw} lds')
    srd(SRD_WS, 40, WS_BYTES)
    srd(SRD_DBG, 38, 256)
    a(f's_lshl_b32 s{S_LW}, s{S_W}, 12')
    a(f's_mov_b32 s{S_LW2}, s77')
    a(f's_lshl_b32 s{S_2HD}, s{S_J8}, 1')
    a(f's_lshl_b32 s11, s{S_B}, 5')
    a(f's_lshl_b32 s13, s{S_HG}, 3')
    a('s_add_u32 s11, s11, s13')
    a('s_lshl_b32 s11, s11, 13')
    for i in range(4):
        a(f'v_add_u32 v7, {8*i}, v3')
        a(f'v_lshl_add_u32 v6, v7, 8, v{8+i%2}')
        a(f'v_add_u32 v6, s11, v6')
        a(f'v_subrev_u32 v{L_DV+i}, {1024*i}, v6')

    def late_setup():
        a(f's_lshl_b32 s10, s{S_W}, 15')
        a(f's_lshl_b32 s13, s{S_NT}, 8')
        a('s_add_u32 s10, s10, s13')
        a(f's_lshl_b32 s13, s{S_HG}, 21')
        a('s_add_u32 s10, s10, s13')
        a('v_lshl_add_u32 v6, v5, 11, v12')
        a(f'v_add_u32 v{L_DWO}, s10, v6')
        for i in range(1, 4):
            a(f'v_add_u32 v{L_DWO+i}, {i*4*2048-WOFF[i]}, v{L_DWO}')
        a(f'v_and_b32 v6, 7, v2')
        a(f'v_lshlrev_b32 v{L_POLLA}, 3, v6')
        a(f's_lshl_b32 s{S_TMP}, s{S_BR}, 4')
        a(f's_add_u32 s{S_TMP}, s{S_TMP}, s{S_B}')
        a(f's_lshl_b32 s{S_TMP}, s{S_TMP}, 2')
        a(f's_add_u32 s{S_TMP}, s{S_TMP}, s{S_HG}')
        a(f's_lshl_b32 s{S_TMP+2}, s{S_TMP}, 7')
        a(f's_add_u32 s{S_TMP+2}, s{S_TMP+2}, {WS_FLAG}')
        a(f's_lshl_b32 s{S_TMP+4}, s{S_TMP}, 14')
        a(f's_mul_i32 s{S_TMP+5}, s{S_W}, 6144')
        a(f's_add_u32 s{S_TMP+5}, s{S_TMP+5}, {AUX}')
        a(f'v_lshlrev_b32 v{L_WA}, 2, v2')

    if c.lsat == 0: late_setup()
    for v in range(1, 4):
        a(f's_cmp_eq_u32 s{S_MT}, {v}')
        a(f's_cbranch_scc1 LOADER{v}')

    def loader(mt):
        tagn = f'{mt}'
        s1, s2 = p1_sched(mt), p2_sched(mt)
        nops = [0]; endpos = {}
        def tile(kind, slot):
            if kind in ('x', 'v', 'k'):
                base = slot*16384 if kind != 'k' else AUX
                v, s, f = {'x': (L_DX, SRD_X, c.fx), 'v': (L_DV, SRD_V, c.fv), 'k': (L_DV, SRD_K, c.fk)}[kind]
                so = S_SA
            else:
                base = WT0 + slot*WSLOT
                v, s, f = (L_DWQ, SRD_WQ, c.fw) if kind == 'wq' else (L_DWO, SRD_WO, c.fo)
                so = S_SW
            wt = kind in ('wq', 'wo')
            a(f's_add_u32 m0, s{S_LW2 if wt else S_LW}, {base}')
            a('s_nop 0')
            for i in range(4):
                a(f'buffer_load_dwordx4 v{v+i}, s[{s}:{s+3}], s{so} offen offset:{WOFF[i] if wt else 1024*i} {f} lds')
                nops[0] += 1
        def wflag(off, val):
            a(f's_add_u32 m0, s{S_TMP+3}, {off}')
            a(f'v_mov_b32 v{L_WV}, {4*val}')
            a('s_mov_b64 exec, 1')
            a(f'global_load_lds_dword v{L_WV}, s[{S_TAB}:{S_TAB+1}]')
            a('s_mov_b64 exec, -1')
        def pload(u, count):
            r, i, own = s2[u]
            a(f's_add_u32 s10, s{S_NT}, {4*r+i}')
            a(f's_and_b32 s10, s10, 7')
            a(f's_lshl_b32 s10, s10, 11')
            a(f's_add_u32 m0, s{S_TMP+5}, {((u-1)%3)*2048}')
            a(f's_add_u32 s10, s10, s{S_TMP+4}')
            for G in range(2):
                a(f'buffer_load_dwordx4 v{V_L16}, s[{SRD_WS}:{SRD_WS+3}], s10 offen offset:{1024*G} sc1 lds')
                if count: nops[0] += 1
        def poll():
            a(f'buffer_load_dwordx2 v[{L_POLL}:{L_POLL+1}], v{L_POLLA}, s[{SRD_WS}:{SRD_WS+3}], s{S_TMP+2} offen sc1')
        def bar():
            a('s_barrier')
            if c.gmode == 'dyn': a(f's_memtime s[{S_TB}:{S_TB+1}]')
            a(f's_add_u32 s{S_NB}, s{S_NB}, 1')
        def gate(n):
            nm = f'{tagn}_{n}'
            if n < 3: return
            a.label(f'GA{nm}')
            if n >= 4:
                a(f's_cmp_ge_u32 s{S_NB}, {n-3}')
                a(f's_cbranch_scc1 GB{nm}')
                bar()
                a.label(f'GB{nm}')
            if n >= 30 or c.gmode == 'static' or n >= c.gsw: return
            if c.gmode == 'once':
                if n == 3: return
                a(f's_cmp_ge_u32 s{S_NB}, {n-2}')
                a(f's_cbranch_scc1 GO{nm}')
                a(f's_getreg_b32 s10, hwreg(HW_REG_IB_STS)')
                a('s_and_b32 s10, s10, 0xc0000f')
                a(f's_cmp_le_u32 s10, {c.vthr}')
                a(f's_cbranch_scc1 GO{nm}')
                bar()
                a.label(f'GO{nm}')
                return
            a(f's_cmp_ge_u32 s{S_NB}, {n-2}')
            a(f's_cbranch_scc1 GO{nm}')
            a.label(f'GP{nm}')
            a(f's_getreg_b32 s10, hwreg(HW_REG_IB_STS)')
            a(f's_memtime s[{S_NOW}:{S_NOW+1}]')
            a('s_and_b32 s10, s10, 0xc0000f')
            a(f's_cmp_le_u32 s10, {c.vthr}')
            a(f's_cbranch_scc1 GO{nm}')
            a('s_waitcnt lgkmcnt(0)')
            a(f's_sub_u32 s10, s{S_NOW}, s{S_TB}')
            nb = n - 3
            bud = c.budget + (1100 if nb == 16 else 0) + (256 if (nb == 18 or (nb >= 22 and nb % 2 == 0)) else 0)
            a(f's_cmp_lt_u32 s10, {bud if n > 3 else 1 << 20}')
            a(f's_cbranch_scc1 GP{nm}')
            bar()
            a.label(f'GO{nm}')
        def tr(lane, reg):
            if c.trace:
                a('s_memrealtime s[76:77]')
                a('s_waitcnt lgkmcnt(0)')
                a(f'v_writelane_b32 v{reg}, s76, {lane}')
        for g in range(1, NG + 1):
            slot = g % 4
            start = nops[0]
            if g < NG:
                if g == c.pg - 1: poll()
                if g == 6:
                    a(f'buffer_load_dwordx2 v[{L_TAG}:{L_TAG+1}], off, s[{SRD_DBG}:{SRD_DBG+3}], 0 sc1')
                if g == c.pg:
                    a(f's_mov_b32 s{S_CNT}, {c.spin}')
                    a.label(f'PC{tagn}')
                    a(f'v_cmp_ne_u64 vcc, v[{L_POLL}:{L_POLL+1}], v[{L_TAG}:{L_TAG+1}]')
                    a(f's_cbranch_vccz PG{tagn}')
                    a(f's_sub_u32 s{S_CNT}, s{S_CNT}, 1')
                    a(f's_cbranch_scc1 PG{tagn}')
                    poll()
                    a('s_waitcnt vmcnt(0)')
                    a(f's_branch PC{tagn}')
                    a.label(f'PG{tagn}')
                    for u in (1, 2, 3): pload(u, False)
                if g in (25, 27, 29, 31): pload((g - 25) // 2 + 4, True)
                if g < 16:
                    r, i, own = s1[g]
                    a(f's_add_u32 s{S_IDX}, s{S_2HD}, {4*i+OFFR[r]}')
                    a(f's_and_b32 s{S_IDX}, s{S_IDX}, 15')
                    a(f's_lshl_b32 s{S_SA}, s{S_IDX}, 7')
                    a(f's_lshl_b32 s{S_SW}, s{S_IDX}, 19')
                    tile('x', slot); tile('wq', slot)
                    if c.kearly: hf = 0 if g == 1 else (1 if (own and r == 1) else None)
                    else: hf = {1: 0, 3: 1}.get(r) if own else None
                    if hf is not None:
                        assert not (c.kearly and hf == 1 and g < 4)
                        a(f's_lshl_b32 s{S_SA}, s{S_J8}, 13')
                        if hf: a(f's_add_u32 s{S_SA}, s{S_SA}, 128')
                        tile('k', 0)
                else:
                    u, half = divmod(g - 16, 2)
                    r, i, own = s2[u]
                    a(f's_add_u32 s{S_IDX}, s{S_NT}, {4*r+i}')
                    a(f's_and_b32 s{S_IDX}, s{S_IDX}, 7')
                    a(f's_lshl_b32 s{S_SA}, s{S_IDX}, 13')
                    a(f's_lshl_b32 s{S_SW}, s{S_IDX}, 18')
                    if half:
                        a(f's_add_u32 s{S_SA}, s{S_SA}, 128')
                        a(f's_add_u32 s{S_SW}, s{S_SW}, {64*2048}')
                    if half and own and r == 1: tile('wo', slot); tile('v', slot)
                    else: tile('v', slot); tile('wo', slot)
            n_this = nops[0] - start
            if g == c.lsat: late_setup()
            a(f's_waitcnt vmcnt({n_this})')
            if g == 6:
                a(f's_mov_b32 s{S_CNT}, {c.spin}')
                a.label(f'TG{tagn}')
                a(f'v_cmp_eq_u64 vcc, 0, v[{L_TAG}:{L_TAG+1}]')
                a(f's_cbranch_vccz TGOK{tagn}')
                a(f's_sub_u32 s{S_CNT}, s{S_CNT}, 1')
                a(f's_cbranch_scc1 TGOK{tagn}')
                a('s_sleep 1')
                a(f'buffer_load_dwordx2 v[{L_TAG}:{L_TAG+1}], off, s[{SRD_DBG}:{SRD_DBG+3}], 0 sc1')
                a('s_waitcnt vmcnt(0)')
                a(f's_branch TG{tagn}')
                a.label(f'TGOK{tagn}')
                a(f's_mov_b32 m0, {CB_TAG}')
                a('s_mov_b64 exec, 3')
                a(f'buffer_load_dword v{L_WA}, s[{SRD_DBG}:{SRD_DBG+3}], 0 offen sc1 lds')
                a('s_mov_b64 exec, -1')
            a('s_barrier')
        if c.trace:
            a(f'v_writelane_b32 v51, s42, 63')
            a('s_mov_b32 s76, s40')
            a('s_mov_b32 s77, s41')
            a('s_mov_b32 s78, 0x10000000')
            a('s_mov_b32 s79, 0x00020000')
            a('s_lshl_b32 s75, s2, 2')
            a(f's_add_u32 s75, s75, s{S_W}')
            a('s_lshl_b32 s75, s75, 9')
            a(f's_add_u32 s75, s75, {(130<<20)}')
            a('v_lshlrev_b32 v3, 2, v2')
            a('buffer_store_dword v50, v3, s[76:79], s75 offen')
            a('buffer_store_dword v51, v3, s[76:79], s75 offen offset:256')
        a('s_endpgm')
    for v in range(4):
        if v: a.label(f'LOADER{v}')
        loader(v)

    if c.calign: a.raw(f'.p2align {c.calign}')
    a.label('COMPUTE')
    for _ in range(c.cpad): a('s_nop 0')
    a('s_memrealtime s[42:43]')
    if c.cprio: a(f's_setprio {c.cprio}')
    a(f's_mov_b32 s{S_W}, s{S_WID}')
    a(f's_lshl_b32 s{S_B}, s{S_MT}, 2')
    a(f's_add_u32 s{S_B}, s{S_B}, s{S_W}')
    T = ACC
    a('s_waitcnt lgkmcnt(0)')
    a(f's_lshl_b32 s{S_LW}, s{S_W}, 12')
    a(f'v_and_b32 v{T}, 15, v2')
    a(f'v_lshrrev_b32 v{T+1}, 4, v2')
    a(f'v_lshrrev_b32 v{T+2}, 1, v{T}')
    a(f'v_lshlrev_b32 v{T+3}, 7, v{T}')
    a(f'v_add_u32 v{T+3}, s{S_LW}, v{T+3}')
    a(f'v_xor_b32 v{T+4}, v{T+2}, v{T+1}')
    a(f'v_lshl_add_u32 v{V_RA}, v{T+4}, 4, v{T+3}')
    a(f'v_xor_b32 v{V_RA+1}, 64, v{V_RA}')
    a(f'v_lshrrev_b32 v{T+4}, 1, v{T+1}')
    a(f'v_xor_b32 v{T+4}, v{T+4}, v{T+2}')
    a(f'v_lshl_add_u32 v{T+4}, v{T+4}, 4, v{T+3}')
    a(f'v_and_b32 v{T+5}, 1, v{T+1}')
    a(f'v_lshl_add_u32 v{T+4}, v{T+5}, 3, v{T+4}')
    a(f'v_add_u32 v{V_SP}, {AUX}, v{T+4}')
    def rt_setup(phase, T):
        L = []
        L.append(f'v_bfe_u32 v{T}, v2, 2, 2')
        L.append(f'v_bfe_u32 v{T+1}, v2, 4, 1')
        L.append(f'v_lshrrev_b32 v{T+2}, 5, v2')
        L.append(f'v_and_b32 v{T+3}, 3, v2')
        L.append(f'v_mul_u32_u24 v{T+1}, 2080, v{T+1}')
        L.append(f'v_mul_u32_u24 v{T+2}, {WBLK}, v{T+2}')
        L.append(f'v_add3_u32 v{T+4}, v{T+1}, v{T+2}, 0')
        L.append(f'v_lshl_add_u32 v{T+4}, v{T}, 8, v{T+4}')
        L.append(f'v_lshl_add_u32 v{T+4}, v{T+3}, 3, v{T+4}')
        L.append(f'v_add_u32 v{T+4}, {WT0}, v{T+4}')
        for t in range(4):
            if phase == 1:
                L.append(f'v_xor_b32 v{T+5}, {t}, v{T}')
            else:
                L.append(f's_add_u32 s10, s{S_HG}, {t}')
                L.append('s_and_b32 s10, s10, 3')
                L.append(f'v_xor_b32 v{T+5}, s10, v{T}')
            L.append(f'v_lshl_add_u32 v{V_RT+t}, v{T+5}, 6, v{T+4}')
        return L
    for l in rt_setup(1, T): a(l)
    srd(SRD_WS, 40, WS_BYTES)
    srd(SRD_OUT, 36, 2 << 20)
    srd(SRD_DBG, 38, 256)
    a(f's_or_b32 s13, s2, s{S_W}')
    a('s_cmp_lg_u32 s13, 0')
    a('s_cbranch_scc1 NOTAG')
    a(f'v_mov_b32 v{T}, s42')
    a(f'v_mov_b32 v{T+1}, s43')
    a(f'buffer_store_dwordx2 v[{T}:{T+1}], off, s[{SRD_DBG}:{SRD_DBG+3}], 0 sc0 sc1')
    a.label('NOTAG')
    cc = (128 ** -0.5) * math.log2(math.e)
    cbits = struct.unpack('<I', struct.pack('<f', cc))[0]
    a(f's_mov_b32 s{S_TMP+4}, {hex(cbits)}')
    a(f's_lshl_b32 s{S_TMP}, s{S_BR}, 4')
    a(f's_add_u32 s{S_TMP}, s{S_TMP}, s{S_B}')
    a(f's_lshl_b32 s{S_TMP+1}, s{S_TMP}, 2')
    a(f's_add_u32 s{S_TMP+1}, s{S_TMP+1}, s{S_HG}')
    a(f's_lshl_b32 s{S_TMP+1}, s{S_TMP+1}, 4')
    a(f's_add_u32 s{S_TMP+1}, s{S_TMP+1}, s{S_J8}')
    a(f's_lshl_b32 s{S_TMP+1}, s{S_TMP+1}, 3')
    a(f's_add_u32 s{S_TMP+1}, s{S_TMP+1}, {WS_FLAG}')
    a(f's_lshl_b32 s{S_TMP}, s{S_TMP}, 5')
    a(f's_add_u32 s{S_TMP}, s{S_TMP}, s{S_HEAD}')
    a(f's_lshl_b32 s{S_TMP}, s{S_TMP}, 11')
    a(f's_mul_i32 s{S_TMP+2}, s{S_W}, 6144')
    a(f's_add_u32 s{S_TMP+2}, s{S_TMP+2}, {AUX}')
    tail_salu(a)
    stamp(1)
    phase1(a, c, stamp)
    softmax(a, c, stamp, rt_setup)
    phase2(a, c, stamp)
    if c.leak >= 0:
        if c.leakj >= 0:
            a(f's_and_b32 s76, s{S_J8}, 3')
            a(f's_cmp_lg_u32 s76, {c.leakj}')
            a('s_cbranch_scc1 K_END')
        a.label('LEAKL')
        a('s_memrealtime s[76:77]')
        a('s_waitcnt lgkmcnt(0)')
        a('s_sub_u32 s76, s76, s80')
        a('s_cmp_lt_u32 s76, 3000')
        a('s_cbranch_scc1 LEAKL')
    if c.padto:
        a.label('PADL')
        a('s_memrealtime s[76:77]')
        a('s_waitcnt lgkmcnt(0)')
        a(f's_sub_u32 s76, s76, s{S_T0}')
        a(f's_cmp_lt_u32 s76, {c.padto}')
        a('s_cbranch_scc1 PADL')
    if c.stamps:
        n = 11
        a('s_waitcnt vmcnt(0) lgkmcnt(0)')
        stamp(n - 1)
        a('s_waitcnt lgkmcnt(0)')
        a(f's_cmp_lg_u32 s{S_WID}, 0')
        a('s_cbranch_scc1 K_END')
        a('s_mov_b32 s76, s40')
        a('s_mov_b32 s77, s41')
        a('s_mov_b32 s78, 0x10000000')
        a('s_mov_b32 s79, 0x00020000')
        a('s_lshl_b32 s75, s2, 7')
        a(f's_add_u32 s75, s75, {128<<20}')
        a('v_mov_b32 v3, 0')
        for i in range(n):
            a(f'v_mov_b32 v4, s{80+2*i}')
            a(f'v_mov_b32 v5, s{81+2*i}')
            a(f'buffer_store_dwordx2 v[4:5], v3, s[76:79], s75 offen offset:{8*i}')
            a('s_nop 1')
    a.label('K_END')
    a('s_endpgm')
    return a.text()

PF = VWB + 48
ACC_TAGT = VWB + 32

def spin(a, c, name, rd, test):
    a(f's_mov_b32 s{S_CNT}, {c.lspin}')
    a.label(name)
    a(rd)
    a(f's_sub_u32 s{S_CNT}, s{S_CNT}, 1')
    a('s_cbranch_scc1 K_END')
    a('s_waitcnt lgkmcnt(0)')
    a(test)
    a(f's_cbranch_vccnz {name}')
def flagread(kind):
    return f'ds_read_b32 v{V_FL}, v{V_CB}' + ('' if kind == 'F' else f' offset:{CB_PRDY-CB_FULL}')
def flagtest(kind, g):
    return f'v_cmp_ge_u32 vcc, {g}, v{V_FL}' if kind == 'F' else f'v_cmp_eq_u32 vcc, 0, v{V_FL}'

NBAR = [0]
class Sched:
    def __init__(s, a, c):
        s.a, s.c = a, c
        s.M = []; s.L = []; s.V = []
        s.lastuse = {}
        s.wn = 0; s.an = 0
    def m(s, ins, needs=(), uses=(), vneed=(), post=None):
        for r in uses: s.lastuse[r] = len(s.M)
        s.M.append(dict(ins=ins, needs=list(needs), vneed=list(vneed), post=post))
        return len(s.M) - 1
    def load(s, instrs, tag, reg, first, gate=None, rel=None, vreq=None, depth=None):
        after = -1
        for r in (reg if isinstance(reg, (list, tuple)) else [reg]):
            after = max(after, s.lastuse.get(r, -1))
        d = s.c.depth if depth is None else depth
        for it in instrs:
            s.L.append(dict(it=it, tag=tag, after=max(after + 1, first - d), first=first, gate=gate, rel=rel, vreq=vreq))
    def valu(s, instrs, after, group=None):
        for i in instrs: s.V.append(dict(ins=i, after=after, group=group))
    def run(s, nbar, pure, last_bar, stamps={}):
        a, c = s.a, s.c
        s.L.sort(key=lambda e: e['first'])
        s.V.sort(key=lambda e: e['after'])
        Q = list(s.L)
        issued = []; done = [0]; itime = []
        relcount = {}
        for e in Q:
            if e['rel'] is not None: relcount[e['rel']] = relcount.get(e['rel'], 0) + 1
        relpos = {}
        nm = [0]
        V = s.V
        def need(tags):
            if not tags: return
            for t in tags:
                if any(e['tag'] == t for e in Q):
                    while any(e['tag'] == t for e in Q):
                        assert pump(1, True), ('stuck', t, Q[0])
            idx = max(i for i, t in enumerate(issued) if t in tags) + 1
            if idx > done[0]:
                while idx < len(issued) and nm[0] - itime[idx] >= c.minage: idx += 1
                n = min(14, len(issued) - idx)
                a(f's_waitcnt lgkmcnt({n})')
                done[0] = len(issued) - n
        def pump(k, force=False):
            n = 0
            while n < k and Q:
                e = Q[0]
                if e['after'] > nm[0]:
                    if not (force and e['after'] - nm[0] <= 0): break
                if e['vreq'] is not None and any(v['group'] == e['vreq'] for v in V): break
                if e['gate'] is not None and e['gate'][1] >= nbar[0]:
                    b = nbar[0] - 2
                    if b in pure:
                        a('s_barrier'); nbar[0] += 1
                        continue
                    assert not force, ('gate', e, nbar)
                    break
                Q.pop(0)
                for l in e['it']: a(l)
                issued.append(e['tag']); itime.append(nm[0])
                if e['rel'] is not None:
                    relcount[e['rel']] -= 1; relpos[e['rel']] = len(issued)
                n += len(e['it'])
            return n
        def fill(k):
            n = 0
            while n < k and V and V[0]['after'] <= nm[0]:
                a(V.pop(0)['ins']); n += 1
            return n
        pump(99)
        for i, m in enumerate(s.M):
            flushed = False
            for g in m['vneed']:
                while any(v['group'] == g for v in V):
                    assert V[0]['after'] <= nm[0], ('valu not ready', i, g, V[0])
                    a(V.pop(0)['ins']); flushed = True
            need(m['needs'])
            src = set()
            for lo, hi in re.findall(r'v\[(\d+):(\d+)\]', m['ins'].split(',', 1)[1]): src |= set(range(int(lo), int(hi) + 1))
            for back, l in enumerate(reversed(a.lines[-2:])):
                mm = re.match(r'\s*v_(?!mfma)\w+ v(\d+),', l)
                if mm and int(mm.group(1)) in src:
                    a(f's_nop {1 - back}'); break
            a(m['ins']); nm[0] += 1
            if i in stamps: stamps[i]()
            b = nbar[0] - 2
            if b not in pure and b <= last_bar and relcount.get(b, 0) == 0 and relpos.get(b, 0) <= done[0]:
                a('s_barrier'); nbar[0] += 1
            urgent = Q and Q[0]['first'] - nm[0] <= c.urgent
            if last_bar < 16 and c.ra * 32 <= i < c.rb * 32: urgent = True
            n = pump(2 if urgent else 1)
            fill((m['post'] or c.vslots) - (c.vslots - c.vwith) * min(n, 1))
        assert not Q, Q[0]
        assert nbar[0] - 2 > last_bar, nbar
        return V

def wt_items(j, kk, t, e, d):
    return [[f'ds_read_b64_tr_b16 {ar(d+2*u,2)}, v{V_RT+t} offset:{(j%4)*WSLOT+kk*2*WBLK+u*1024+e*32}'] for u in range(2)]
def act_item(j, kk, ai, dst):
    return [[f'ds_read_b128 {dst}, v{V_RA+kk} offset:{(j%4)*16384+ai*2048}']]
def p_items(u, d):
    return [[f'ds_read_b128 {ar(d+4*G,4)}, v{V_SP} offset:{((u-1)%3)*2048+1024*G}'] for G in range(2)]

def gemm_stage(S, j, gate):
    lastw = {}
    dd = S.c.d0 if j < S.c.dn else None
    for kk in range(2):
        aslot = [AA + 4*((S.an + x) % 3) for x in range(2)]; S.an += 2
        for h in range(2):
            base = len(S.M)
            if h == 0:
                for ai in range(2):
                    S.load(act_item(j, kk, ai, ar(aslot[ai], 4)), f'A{j}_{kk}_{ai}', aslot[ai], base + 4*ai - 0.5, gate, j, depth=dd)
            fr = []
            for w4 in range(4):
                t, e = 2*h + w4 // 2, w4 % 2
                d = AW + 4*(S.wn % 8); S.wn += 1
                S.load(wt_items(j, kk, t, e, d), f'W{j}_{kk}_{t}_{e}', d, base + w4, gate, j, depth=dd)
                fr.append((t, e, d))
            for ai in range(2):
                for (t, e, d) in fr:
                    r = ACC + 16*t + 8*e + 4*ai
                    first = kk == 0 and (j == 0 or (j >= 16 and j % 2 == 0))
                    ops = f'{ar(d,4)}, {ar(aslot[ai],4)}' if j < 16 else f'{ar(aslot[ai],4)}, {ar(d,4)}'
                    vn = [f'cv{(j-16)//2-1}_{t}_{e}'] if (first and j >= 18) else []
                    lastw[(t, e, ai)] = S.m(f'{MF} {vr(r,4)}, {ops}, ' + ('0' if first else vr(r, 4)),
                                            needs=[f'W{j}_{kk}_{t}_{e}', f'A{j}_{kk}_{ai}'], uses=[d, aslot[ai]], vneed=vn)
    return lastw

def phase1(a, c, stamp):
    a('s_barrier'); NBAR[0] = 1
    stamp(2)
    S = Sched(a, c)
    st = {}
    for j in range(16):
        kj = (0, 6) if c.kearly else (5, 13)
        if j in kj:
            hf = kj.index(j)
            base = len(S.M) + (12 if j == 0 else 0)
            n = 0
            for Tp in range(2):
                for e in range(2):
                    it = []
                    for ki in range(2):
                        x = [f'v_xor_b32 v{V_T3}, {(4*Tp+2*e)<<4}, v{V_SP}'] if ki == 0 else []
                        it.append(x + [f'ds_read_b64 {ar(AK+8*(2*hf+Tp)+4*ki+2*e,2)}, v{V_T3} offset:{2048*ki}'])
                    S.load(it, f'K{hf}_{Tp}_{e}', 'none', base + 12.7 + (1 if j == 0 else 4)*n, ('F', max(j, 1)), j, depth=8)
                    n += 1
        if j == 8: st[len(S.M)] = lambda: stamp(3)
        if c.fine >= 0 and 0 <= j - c.fine < 9: st[len(S.M)] = (lambda jj: lambda: stamp(jj - c.fine + 1, True))(j)
        gemm_stage(S, j, ('F', j))
    V = S.run(NBAR, {-1}, c.p1last, st)
    assert not V

def red2(a, op, x0, x1, t0, t1):
    for sw in ('v_permlane32_swap_b32', 'v_permlane16_swap_b32'):
        a(f'v_mov_b32 v{t0}, v{x0}')
        a(f'v_mov_b32 v{t1}, v{x1}')
        a('s_nop 0')
        a(f'{sw} v{x0}, v{t0}')
        a(f'{sw} v{x1}, v{t1}')
        a('s_nop 0')
        a(f'{op} v{x0}, v{x0}, v{t0}')
        a(f'{op} v{x1}, v{x1}, v{t1}')

def softmax(a, c, stamp, rt_setup):
    QF = VWB; S = VWB + 32
    stamp(4)
    a(f'v_mov_b32 v{V_T3}, {CB_TAG}')
    a(f'ds_read_b64 v[{VWB+56}:{VWB+57}], v{V_T3}')
    def qcv(t):
        L = []
        for ai in range(2):
            for e in range(2):
                for x in range(2):
                    r = ACC + 16*t + 8*e + 4*ai + 2*x
                    L.append(f'v_cvt_pk_bf16_f32 v{QF+8*t+4*ai+2*e+x}, v{r}, v{r+1}')
        return L
    for l in qcv(0) + qcv(1): a(l)
    for t in range(4):
        rest = qcv(t + 2) if t < 2 else []
        for mi in range(2):
            for ki in range(2):
                d = vr(S + 8*mi + 4*ki, 4)
                a(f'{MF} {d}, {ar(AK+8*t+4*ki,4)}, {vr(QF+8*t+4*mi,4)}, ' + ('0' if t == 0 else d))
                for l in rest[:2]: a(l)
                rest = rest[2:]
    a('s_waitcnt lgkmcnt(0)')
    if NBAR[0] == 16 and c.b16 == 'mid':
        a('s_barrier'); NBAR[0] += 1
    a(f'v_readfirstlane_b32 s{S_T0}, v{VWB+56}')
    a(f'v_readfirstlane_b32 s{S_T0+1}, v{VWB+57}')
    a(f's_bitcmp1_b32 s{S_HG}, 0')
    a('s_cbranch_scc0 RS0')
    a(f'v_swap_b32 v{V_RT}, v{V_RT+1}')
    a(f'v_swap_b32 v{V_RT+2}, v{V_RT+3}')
    a.label('RS0')
    a(f's_bitcmp1_b32 s{S_HG}, 1')
    a('s_cbranch_scc0 RS1')
    a(f'v_swap_b32 v{V_RT}, v{V_RT+2}')
    a(f'v_swap_b32 v{V_RT+1}, v{V_RT+3}')
    a.label('RS1')
    a('s_nop 1')
    x = [ACC, ACC + 1]; t0, t1 = ACC + 2, ACC + 3
    for mi in range(2): a(f'v_max3_f32 v{x[mi]}, v{S+8*mi}, v{S+8*mi+1}, v{S+8*mi+2}')
    for mi in range(2): a(f'v_max3_f32 v{x[mi]}, v{x[mi]}, v{S+8*mi+3}, v{S+8*mi+4}')
    for mi in range(2): a(f'v_max3_f32 v{x[mi]}, v{x[mi]}, v{S+8*mi+5}, v{S+8*mi+6}')
    for mi in range(2): a(f'v_max_f32 v{x[mi]}, v{x[mi]}, v{S+8*mi+7}')
    red2(a, 'v_max_f32', x[0], x[1], t0, t1)
    for mi in range(2): a(f'v_mul_f32 v{x[mi]}, s{S_TMP+4}, v{x[mi]}')
    for i in range(16):
        a(f'v_fma_f32 v{S+i}, v{S+i}, s{S_TMP+4}, -v{x[i//8]}')
    for i in range(16):
        a(f'v_exp_f32 v{S+i}, v{S+i}')
    for mi in range(2): a(f'v_add_f32 v{x[mi]}, v{S+8*mi}, v{S+8*mi+1}')
    for i in range(2, 8):
        for mi in range(2): a(f'v_add_f32 v{x[mi]}, v{x[mi]}, v{S+8*mi+i}')
    red2(a, 'v_add_f32', x[0], x[1], t0, t1)
    for mi in range(2): a(f'v_rcp_f32 v{x[mi]}, v{x[mi]}')
    a('s_nop 0')
    for i in range(16):
        a(f'v_mul_f32 v{S+i}, v{S+i}, v{x[i//8]}')
    for i in range(8):
        a(f'v_cvt_pk_bf16_f32 v{PF+i}, v{S+2*i}, v{S+2*i+1}')
    for G in range(2):
        a(f'buffer_store_dwordx4 {vr(PF+4*G,4)}, v{V_L16}, s[{SRD_WS}:{SRD_WS+3}], s{S_TMP} offen offset:{1024*G} sc0 sc1')
    a(f'v_add_u32 v{V_SP}, s{S_TMP+2}, v{V_L16}')
    a(f's_mul_i32 s{S_TG2}, s{S_T0}, 0x9e3779b1')
    a(f's_xor_b32 s{S_TG2}, s{S_TG2}, s{S_T0+1}')
    while NBAR[0] < (17 if c.b16 != 'late' else 17):
        a('s_barrier'); NBAR[0] += 1

S_SEND = 21
S_RCV = 25
S_OUTO = 29
S_TG2 = 18
def tail_salu(a):
    B = 19
    a(f's_lshl_b32 s{B}, s{S_BR}, 2')
    a(f's_add_u32 s{B}, s{B}, s{S_MT}')
    a(f's_lshl_b32 s{B}, s{B}, 3')
    a(f's_add_u32 s{B}, s{B}, s{S_NT}')
    a(f's_mul_i32 s{B}, s{B}, {4*3*4*4096}')
    a(f's_add_u32 s{B}, s{B}, s{S_LW}')
    a(f's_add_u32 s{B}, s{B}, {WS_X}')
    for t in (1, 2, 3):
        d = S_SEND + t
        a(f's_xor_b32 s{d}, s{S_HG}, {t}')
        a(f's_mul_i32 s{d}, s{d}, {3*16384}')
        a(f's_add_u32 s{d}, s{d}, s{B}')
        a(f's_add_u32 s{d}, s{d}, {(t-1)*16384}')
    a(f's_mul_i32 s{S_RCV}, s{S_HG}, {3*16384}')
    a(f's_add_u32 s{S_RCV}, s{S_RCV}, s{B}')
    a(f's_add_u32 s{S_RCV+1}, s{S_RCV}, 16384')
    a(f's_add_u32 s28, s{S_RCV}, 32768')
    a(f's_lshl_b32 s{S_OUTO}, s{S_B}, 17')
    a(f's_lshl_b32 s11, s{S_BR}, 11')
    a(f's_add_u32 s{S_OUTO}, s{S_OUTO}, s11')
    a(f's_lshl_b32 s11, s{S_NT}, 8')
    a(f's_add_u32 s{S_OUTO}, s{S_OUTO}, s11')
    a(f's_lshl_b32 s11, s{S_HG}, 6')
    a(f's_add_u32 s{S_OUTO}, s{S_OUTO}, s11')

JOBS = [(1, 6), (2, 6), (1, 7), (2, 7), (3, 6), (3, 7), (0, 6), (0, 7)]
HZ = 6

def phase2(a, c, stamp):
    stamp(5)
    S = Sched(a, c)
    st = {}
    def pstage(u, preg, ptag, tiles=(1, 2, 3, 0)):
        last = {}
        for t in tiles:
            for e in range(2):
                for qi in range(2):
                    o = ar(AO + 16*t + 8*e + 4*qi, 4)
                    p = vr(PF + 4*qi, 4) if u == 0 else ar(preg + 4*qi, 4)
                    last[t] = S.m(f'{MF} {o}, {vr(VWB+32*(u%2)+8*t+4*e,4)}, {p}, ' + ('0' if u == 0 else o),
                                  needs=[ptag] if ptag else [], uses=[preg, preg + 4] if u else [], vneed=[f'cv{u}_{t}_{e}'])
        return last
    for j in range(16, 28):
        u = (j - 16) // 2
        base = len(S.M)
        if j == 24: st[base] = lambda: stamp(6)
        if c.fine >= 0 and 0 <= j - c.fine < 9: st[base] = (lambda jj: lambda: stamp(jj - c.fine + 1, True))(j)
        if j >= 21 and j % 2 == 1:
            S.load(p_items(u - 1, AP), f'P{u-1}', [AP, AP + 4], base + 12.7, ('F', c.pg - 1) if j == 21 else ('F', j), j, depth=6)
        if j == 16:
            S.valu(['s_waitcnt vmcnt(0)', f'v_mov_b32 v{ACC_TAGT}, s{S_T0}', f'v_mov_b32 v{ACC_TAGT+1}, s{S_T0+1}',
                    f'buffer_store_dwordx2 v[{ACC_TAGT}:{ACC_TAGT+1}], off, s[{SRD_WS}:{SRD_WS+3}], s{S_TMP+1} sc0 sc1'], base + c.pubat)
        lw = gemm_stage(S, j, ('F', j))
        if j % 2 == 1:
            for t in range(4):
                for e in range(2):
                    r = ACC + 16*t + 8*e; d = VWB + 32*(u % 2) + 8*t + 4*e
                    S.valu([f'v_cvt_pk_bf16_f32 v{d+i}, v{r+2*i}, v{r+2*i+1}' for i in range(4)], lw[(t, e, 1)] + HZ, f'cv{u}_{t}_{e}')
            if u >= 2: pstage(u - 1, AP, f'P{u-1}')
        if j == 18: pstage(0, None, None)
    st[len(S.M)] = lambda: stamp(7)
    ACCB = [VWB, VWB + 16, VWB + 32]
    SB = VWB + 48; TMP = VWB + 60
    TGV = V_CB
    PB = AA
    S.load(p_items(5, PB), 'P5', [AA, AA + 4, AA + 8], len(S.M), ('F', 27), None)
    pstage(5, PB, 'P5')
    p5end = len(S.M)
    PFR = {6: AP, 7: PB}
    seenv = set(); seenp = set()
    pend = None
    def send(t):
        L = []
        for i in range(8):
            x, y = TMP + (2*i) % 4, TMP + (2*i+1) % 4
            L.append(f'v_accvgpr_read_b32 v{x}, a{AO+16*t+2*i}')
            L.append(f'v_accvgpr_read_b32 v{y}, a{AO+16*t+2*i+1}')
            L.append(f'v_cvt_pk_bf16_f32 v{SB+4*(i//3)+i%3}, v{x}, v{y}')
            if i in (2, 5, 7):
                L.append(f'buffer_store_dwordx4 {vr(SB+4*(i//3),4)}, v{V_L16}, s[{SRD_WS}:{SRD_WS+3}], s{S_SEND+t} offen offset:{1024*(i//3)} {c.xst}')
        return L
    def cvj(k, e):
        b = ACCB[k % 3] + 8*e
        return [f'v_cvt_pk_bf16_f32 v{b+i}, v{b+2*i}, v{b+2*i+1}' for i in range(4)]
    def pmf_ins(k):
        t, u = JOBS[k]; L = []
        for e in range(2):
            for qi in range(2):
                o = ar(AO + 16*t + 8*e + 4*qi, 4)
                L.append((e, f'{MF} {o}, {vr(ACCB[k%3]+8*e,4)}, {ar(PFR[u]+4*qi,4)}, {o}'))
        return L
    def pmf(k):
        t, u = JOBS[k]
        for e, ins in pmf_ins(k):
            i = S.m(ins, needs=[f'P{u}'], uses=[PFR[u], PFR[u] + 4], vneed=[f'cj{k}_{e}'], post=c.frate)
        if u == 7: S.valu(send(t), i + HZ, f'send{t}')
    R = [ACC, ACC + 12, ACC + 24]
    def rreg(k, qx):
        if k == 2 and qx == 2: return SB
        return R[k] + 4*qx
    RCV = [S_RCV, S_RCV + 1, 28]
    def rloads(ks):
        return [f'buffer_load_dwordx4 {vr(rreg(k,qx),4)}, v{V_L16}, s[{SRD_WS}:{SRD_WS+3}], s{RCV[k]} offen offset:{1024*qx} {c.xld}' for k in ks for qx in range(3)]
    tagset = False
    for k, (t, u) in enumerate(JOBS):
        lw = {}
        for k4 in range(4):
            j = 16 + 2*u + k4 // 2; kk = k4 % 2
            base = len(S.M)
            vreg = [ACC + 32*(u-6) + 8*k4 + 4*ki for ki in range(2)]
            if (u, k4) not in seenv:
                seenv.add((u, k4))
                for ki in range(2):
                    tt, ee = divmod((vreg[ki] - ACC) // 8, 2)
                    S.load(act_item(j, kk, ki, vr(vreg[ki], 4)), f'V{u}_{k4}_{ki}', 'none', base + ki - 0.5, ('F', j), None, vreq=f'cv5_{tt}_{ee}', depth=c.fdepth)
            fr = []
            for e in range(2):
                d = AW + 4*(S.wn % 8); S.wn += 1
                S.load(wt_items(j, kk, t, e, d), f'X{k}_{k4}_{e}', d, base + 2*e, ('F', j), None, depth=c.fdepth)
                fr.append(d)
            if k4 == 3 and u not in seenp:
                seenp.add(u)
                S.load(p_items(u, PFR[u]), f'P{u}', [PFR[u], PFR[u] + 4], base + 3.5, ('F', j), None, depth=c.fdepth)
            for e in range(2):
                for ki in range(2):
                    r = vr(ACCB[k % 3] + 8*e + 4*ki, 4)
                    lw[e] = S.m(f'{MF} {r}, {vr(vreg[ki],4)}, {ar(fr[e],4)}, ' + ('0' if k4 == 0 else r),
                                needs=[f'X{k}_{k4}_{e}', f'V{u}_{k4}_{ki}'], uses=[fr[e]], post=c.frate)
            if k4 == 1 and k > 0: pmf(k - 1)
            if u == 7 and k4 == 3 and not tagset:
                tagset = True
                S.valu([f'v_and_b32 v{V_T3}, 1, v{V_LANE}', f'v_cmp_eq_u32 vcc, 0, v{V_T3}', f'v_mov_b32 v{V_T3}, s{S_TG2}',
                        f'v_mov_b32 v{V_FL}, s{S_T0}', f'v_cndmask_b32 v{TGV}, v{V_T3}, v{V_FL}, vcc'] +
                       [f'v_mov_b32 v{SB+4*x+3}, v{TGV}' for x in range(3)], len(S.M) - 3)
            if k == 7 and k4 == c.rcv_k4:
                S.valu(rloads((0, 1)), len(S.M) - 2)
        if k < 7:
            for e in range(2): S.valu(cvj(k, e), lw[e] + HZ - 0.5, f'cj{k}_{e}')
    V = S.run(NBAR, {28, 29}, 27, st)
    assert NBAR[0] == 32, NBAR
    for v in V: a(v['ins'])
    VO = V_RA
    a(f'v_and_b32 v{VO}, 15, v{V_LANE}')
    a(f'v_lshlrev_b32 v{VO}, 12, v{VO}')
    a(f'v_bfe_u32 v{V_T3}, v{V_LANE}, 4, 1')
    a(f'v_lshl_add_u32 v{VO}, v{V_T3}, 5, v{VO}')
    a(f'v_lshrrev_b32 v{V_T3}, 5, v{V_LANE}')
    a(f'v_lshl_add_u32 v{VO}, v{V_T3}, 4, v{VO}')
    a(f's_mov_b32 s{S_TMP+3}, {c.spin}')
    a(f's_mov_b32 s{S_TMP+4}, 0xffff0000')
    a(f's_add_u32 s{S_TMP+5}, s{S_OUTO}, 65536')
    for e in range(2):
        for l in cvj(7, e): a(l)
    for l in rloads((2,)): a(l)
    for e, ins in pmf_ins(7): a(ins)
    stamp(8)
    O = ACCB[2]
    XT = V_RT
    def check(k, first_wait):
        a(f's_waitcnt vmcnt({first_wait})')
        a(f's_branch XC{k}')
        a.label(f'XR{k}')
        a(f's_sub_u32 s{S_TMP+3}, s{S_TMP+3}, 1')
        a('s_cbranch_scc1 K_END')
        if c.xsleep: a(f's_sleep {c.xsleep}')
        for l in rloads((k,)): a(l)
        a('s_waitcnt vmcnt(0)')
        a.label(f'XC{k}')
        tg = [rreg(k, qx) + 3 for qx in range(3)]
        for i, r in enumerate(tg):
            a(f'v_xor_b32 v{XT+i}, v{r}, v{TGV}')
        a(f'v_or3_b32 v0, v{XT}, v{XT+1}, v{XT+2}')
        a('v_cmp_ne_u32 vcc, 0, v0')
        a(f's_cbranch_vccnz XR{k}')
    def acc(k, first):
        for i in range(8):
            d = rreg(k, i // 3) + i % 3
            if first:
                a(f'v_lshlrev_b32 v{O+2*i}, 16, v{d}')
                a(f'v_and_b32 v{O+2*i+1}, s{S_TMP+4}, v{d}')
            else:
                a(f'v_lshlrev_b32 v{XT+(2*i)%4}, 16, v{d}')
                a(f'v_and_b32 v{XT+(2*i+1)%4}, s{S_TMP+4}, v{d}')
                a(f'v_add_f32 v{O+2*i}, v{O+2*i}, v{XT+(2*i)%4}')
                a(f'v_add_f32 v{O+2*i+1}, v{O+2*i+1}, v{XT+(2*i+1)%4}')
    check(0, 6); acc(0, True)
    check(1, 3); acc(1, False)
    for r in range(16):
        a(f'v_accvgpr_read_b32 v{XT+r%4}, a{AO+r}')
        a(f'v_add_f32 v{O+r}, v{O+r}, v{XT+r%4}')
    check(2, 0)
    stamp(9)
    acc(2, False)
    F = ACCB[0]
    for e in range(2):
        for qi in range(2):
            for x in range(2):
                r = O + 8*e + 4*qi + 2*x
                a(f'v_cvt_pk_bf16_f32 v{F+4*qi+2*e+x}, v{r}, v{r+1}')
    a('s_nop 1')
    for qi in range(2):
        for x in range(2):
            a(f'v_permlane16_swap_b32 v{F+4*qi+x}, v{F+4*qi+2+x}')
    a('s_nop 1')
    a(f'buffer_store_dwordx4 {vr(F,4)}, v{VO}, s[{SRD_OUT}:{SRD_OUT+3}], s{S_OUTO} offen {c.ost}')
    a(f'buffer_store_dwordx4 {vr(F+4,4)}, v{VO}, s[{SRD_OUT}:{SRD_OUT+3}], s{S_TMP+5} offen {c.ost}')

DOC = """;
; One fused kernel, 256 workgroups (one per CU), 8 waves each: waves 0-3 compute, waves 4-7 stream tiles into LDS.
; Workgroup (branch, head group hg, 4-batch block mt, j8):
;   phase 1: q^T = Wq^T x^T for head hg*8+j8 (128 rows x 128 cols, K=1024), S^T = K q^T, softmax (true row max),
;            P^T (bf16) -> workspace, published with a per-launch tag.
;   end    : 4-way reduce-scatter over the head groups through the workspace (bf16 partials, tagged 16-byte granules).
; The tag is chosen per launch by workgroup 0 and handed out through d_debug; all waits are bounded.
; s_barrier n certifies LDS group n and releases the ring slot of stage n-2.  (generated by a script of mine)
"""
def build(c, out):
    P2POS[:] = [int(x) for x in c.p2pos]
    pp = c.p1pos.split('_')
    if len(pp) == 1: pp = pp * 3
    P1POS[:] = [[int(x) for x in p] for p in pp]
    hdr = open('header.txt').read().splitlines()
    t = '\n'.join(hdr) + '\n'
    t += '; @launch grid=(256,1,1) block=(512,1,1) lds=163840\n'
    t += DOC
    t += '.amdgcn_target "amdgcn-amd-amdhsa--gfx950"\n.text\n'
    t += f'.globl {NAME}_kernel\n'
    out_l = []
    for l in gen(c).split('\n'):
        if c.nodma and ' lds' in l and 'sc1' not in l: continue
        if c.noread and ('ds_read_b128' in l or 'ds_read_b64_tr' in l): continue
        if c.nomfma and 'v_mfma' in l: continue
        if c.same and f's_and_b32 s{S_IDX}, s{S_IDX},' in l: l = f'    s_and_b32 s{S_IDX}, s{S_IDX}, 1'
        out_l.append(l)
    t += '\n'.join(out_l)
    t += kd(f'{NAME}_kernel', 256, 102, ACCUM_OFF)
    open(out, 'w').write(t)

if __name__ == '__main__':
    c = Cfg()
    out = sys.argv[1]
    for kv in sys.argv[2:]:
        k, v = kv.split('=', 1)
        old = getattr(c, k)
        if v == 'None': v = None
        elif isinstance(old, bool): v = v in ('1', 'True')
        elif isinstance(old, int): v = int(v)
        setattr(c, k, v)
    build(c, out)
```

```python
import sys, math, struct, re
from asmlib import *

NAME = 'concat_heads__mha_block_cached__gqa_block_cached__near_ridge'
MF = 'v_mfma_f32_16x16x32_bf16'

class Cfg:
    stamps = False; cyc = False; trace = False
    fx = ''; fw = ''; fk = ''; fv = ''; fo = ''
    xst = 'sc1'; xld = 'sc1'
    spin = 1 << 16
    lspin = 1 << 20
    cprio = 1
    early = 16
    psleep = 8
    pfirst = 22
    budget = 320
    pfv = -1
    pfo = -1
    pfo2 = -1
    xsleep = 0
    leak = -1
    fdepth = 10
    rcv_at = 61
    fdepth2 = 3
    jobs = 'b'
    frate = 3
    tlbw = -1
    tlbws = True
    p2pos = '2344'
    p1pos = '4444_4444_1234'
    vslots = 2
    lsat = 1
    kearly = False
    calign = 0
    cpad = 0
    lfirst = True
    ra = 0
    rb = 4
    d0 = 0
    dn = 0
    p1last = 13
    b16 = 'end'
    pg = 23
    gsw = 99
    gmode = 'static'
    leakj = -1
    rhg = 0
    rbr = 0
    jrot = 0
    fine = -1
    ost = ''
    vwith = 1
    urgent = 7
    minage = 5
    flead = 5
    pubat = 22
    rcv_k4 = 2
    depth = 12
    same = False
    vthr = 8
    pprog = 18
    slowpath = True
    nodma = False; noread = False; nomfma = False
    padto = 0
    lsleep = 1
    ctrace = False
    nofree = False
    noprog = False
    noflag = False
    lpace = 0
    fewflags = False
    progop = ''
    ex1 = True

S_XCD, S_MT, S_BR, S_HG, S_J8, S_W, S_B, S_NT, S_HEAD, S_WID = 3, 4, 5, 6, 7, 8, 9, 15, 12, 14
SRD_X, SRD_K, SRD_V, SRD_WQ, SRD_WO, SRD_WS, SRD_OUT, SRD_DBG = 44, 48, 52, 56, 60, 64, 68, 72
S_SA, S_SW, S_IDX, S_LW = 24, 25, 26, 27
S_2HD = 28; S_PD = 29
S_TMP = 30
S_T0 = 16
S_LW2 = 18
S_CNT = 20
S_NB = 21
S_TB = 22
S_TAB = 36
S_NOW = 38
V_FL = 0; V_T3 = 1
V_LANE = 2; V_CB = 3
V_RA = 4; V_RT = 6; V_L16 = 10; V_SP = 11
ACC = 12; VWB = 76
ACCUM_OFF = 140
AW = 0; AA = 32; AP = 44; AO = 52
AK = AO
L_DX, L_DWQ, L_DV, L_DWO = 16, 20, 24, 28
L_POLLA, L_POLL, L_TAG, L_THR, L_WA, L_WV, L_FA, L_TMP, L_THR2 = 32, 34, 36, 38, 39, 40, 41, 42, 43
L_PFV, L_PFO, L_JUNK = 44, 45, 46

WS_FLAG = 2 << 20
WS_X = 4 << 20
WS_BYTES = 16 << 20
WT0 = 65536; WSLOT = 16512; WBLK = 4128
WOFF = [0, 1024, 2080, 3104]
AUX = WT0 + 4*WSLOT
CB = 163840 - 2048
CB_FULL = CB + 1024; CB_PRDY = CB + 1040; CB_TAG = CB + 1056
OFFR = [0, 2, 1, 3]
NG = 32

P1POS = [[1, 2, 3, 4]] * 3
def p1_sched(mt):
    own = {0: 0}
    def ftime(r, q): return 0 if r == 0 else P1POS[r-1][q] + 4*(r-1)
    for r in (1, 2, 3): own[ftime(r, mt)] = r
    fol = sorted([(ftime(r, q), r, q) for r in range(4) for q in range(4) if q != mt], key=lambda x: (x[1], x[0]))
    L = []
    for tau in range(16):
        if tau in own: L.append((own[tau], mt, True))
        else:
            ft, r, q = fol.pop(0)
            assert ft < tau, (mt, tau, ft)
            assert r < 2 or ftime(2, mt) < tau, (mt, tau, r)
            L.append((r, q, False))
    return L
P2POS = [1, 2, 3, 4]
def p2_sched(mt):
    fol0 = [(0, q, False) for q in range(4) if q != mt]
    p = P2POS[mt]
    L = [(0, mt, True)] + fol0[:p-1] + [(1, mt, True)] + fol0[p-1:]
    L += [(1, q, False) for q in sorted(range(4), key=lambda q: P2POS[q]) if q != mt]
    return L

def gen(c):
    a = Asm()
    def stamp(i, fine=False):
        if c.fine >= 0 and not fine and 0 < i < 10: return
        if c.leak == i: a('s_memrealtime s[80:81]')
        if c.stamps: a(f'{"s_memtime" if (c.cyc and i > 0) else "s_memrealtime"} s[{80+2*i}:{81+2*i}]')
    a.raw('.p2align 8')
    a.raw(f'.type {NAME}_kernel,@function')
    a.label(f'{NAME}_kernel')
    a('s_cmp_ge_u32 s2, 256')
    a('s_cbranch_scc1 K_END')
    stamp(0)
    a('s_load_dwordx16 s[16:31], s[0:1], 0')
    a('s_load_dwordx8 s[32:39], s[0:1], 64')
    a('s_load_dwordx2 s[40:41], s[0:1], 96')
    a(f's_and_b32 s{S_XCD}, s2, 7')
    a(f's_lshr_b32 s{S_MT}, s2, 3')
    a(f's_lshr_b32 s{S_BR}, s{S_XCD}, 2')
    a(f's_and_b32 s{S_HG}, s{S_XCD}, 3')
    if c.jrot: a(f's_add_u32 s{S_J8}, s{S_MT}, {c.jrot}')
    a(f's_and_b32 s{S_J8}, s{S_J8 if c.jrot else S_MT}, 7')
    a(f's_lshr_b32 s{S_MT}, s{S_MT}, 3')
    a('v_lshrrev_b32 v1, 6, v0')
    a(f'v_and_b32 v{V_LANE}, 63, v0')
    a(f's_sub_u32 s{S_NT}, s{S_J8}, s{S_MT}')
    a(f'v_readfirstlane_b32 s{S_WID}, v1')
    a(f's_and_b32 s{S_NT}, s{S_NT}, 7')
    a(f's_lshl_b32 s{S_HEAD}, s{S_HG}, 3')
    a(f's_add_u32 s{S_HEAD}, s{S_HEAD}, s{S_J8}')
    a(f'v_lshlrev_b32 v{V_L16}, 4, v2')
    def srd_sel(d, pa, pb, nbytes):
        a(f's_cselect_b32 s{d}, s{pb}, s{pa}')
        a(f's_cselect_b32 s{d+1}, s{pb+1}, s{pa+1}')
        a(f's_mov_b32 s{d+2}, {hex(nbytes)}')
        a(f's_mov_b32 s{d+3}, 0x00020000')
    def srd(d, p, nbytes):
        a(f's_mov_b32 s{d}, s{p}')
        a(f's_mov_b32 s{d+1}, s{p+1}')
        a(f's_mov_b32 s{d+2}, {hex(nbytes)}')
        a(f's_mov_b32 s{d+3}, 0x00020000')
    if c.lfirst: a(f's_xor_b32 s{S_WID}, s{S_WID}, 4')
    a(f's_cmp_lt_u32 s{S_WID}, 4')
    a('s_cbranch_scc1 COMPUTE')

    a(f's_and_b32 s{S_W}, s{S_WID}, 3')
    a(f's_lshl_b32 s{S_B}, s{S_MT}, 2')
    a(f's_add_u32 s{S_B}, s{S_B}, s{S_W}')
    a(f's_mov_b32 s44, {8*2048-1024}')
    a('v_lshrrev_b32 v3, 3, v2')
    a('v_and_b32 v4, 7, v2')
    a('v_lshrrev_b32 v5, 4, v2')
    a(f's_lshl_b32 s10, s{S_B}, 16')
    a('v_xor_b32 v6, v5, v4')
    a('v_lshlrev_b32 v8, 4, v6')
    a('v_xor_b32 v9, 64, v8')
    a('v_lshl_add_u32 v6, v3, 11, s10')
    a(f'v_add_u32 v{L_DX}, v6, v8')
    a(f'v_add3_u32 v{L_DX+1}, v6, v9, s44')
    a(f'v_add_u32 v{L_DX+2}, {16*2048-2048}, v{L_DX}')
    a(f'v_add_u32 v{L_DX+3}, {16*2048-2048}, v{L_DX+1}')
    a('v_and_b32 v6, 15, v2')
    a('v_lshlrev_b32 v7, 2, v5')
    a('v_xor_b32 v6, v6, v7')
    a('v_lshlrev_b32 v12, 4, v6')
    a(f's_lshl_b32 s10, s{S_W}, 17')
    a(f's_lshl_b32 s13, s{S_HEAD}, 8')
    a('s_add_u32 s10, s10, s13')
    a('v_lshl_add_u32 v6, v5, 13, v12')
    a(f'v_add_u32 v{L_DWQ}, s10, v6')
    for i in range(1, 4):
        a(f'v_add_u32 v{L_DWQ+i}, {i*4*8192-WOFF[i]}, v{L_DWQ}')
    a(f's_lshl_b32 s78, s{S_MT}, 1')
    a(f's_add_u32 s78, s78, s{S_J8}')
    a('s_and_b32 s78, s78, 7')
    a('s_lshl_b32 s79, s78, 20')
    a('s_lshl_b32 s78, s78, 8')
    a(f's_mul_i32 s77, s{S_W}, {WBLK}')
    a(f's_lshl_b32 m0, s{S_W}, 12')
    a(f's_mov_b32 s{SRD_X+2}, {1 << 20}')
    a(f's_mov_b32 s{SRD_X+3}, 0x00020000')
    a(f's_mov_b32 s{SRD_WQ+2}, {8 << 20}')
    a(f's_mov_b32 s{SRD_WQ+3}, 0x00020000')
    a(f's_cmp_eq_u32 s{S_BR}, 1')
    a('s_waitcnt lgkmcnt(0)')
    a(f's_cselect_b64 s[{SRD_X}:{SRD_X+1}], s[26:27], s[16:17]')
    a(f's_cselect_b64 s[{SRD_WQ}:{SRD_WQ+1}], s[32:33], s[22:23]')
    for i in range(4):
        a(f'buffer_load_dwordx4 v{L_DX+i}, s[{SRD_X}:{SRD_X+3}], s78 offen offset:{1024*i} {c.fx} lds')
    srd_sel(SRD_K, 18, 28, 4 << 20)
    srd_sel(SRD_V, 20, 30, 4 << 20)
    srd_sel(SRD_WO, 24, 34, 8 << 20)
    a(f's_add_u32 m0, s77, {WT0}')
    a('s_nop 0')
    for i in range(4):
        a(f'buffer_load_dwordx4 v{L_DWQ+i}, s[{SRD_WQ}:{SRD_WQ+3}], s79 offen offset:{WOFF[i]} {c.fw} lds')
    srd(SRD_WS, 40, WS_BYTES)
    srd(SRD_DBG, 38, 256)
    a(f's_lshl_b32 s{S_LW}, s{S_W}, 12')
    a(f's_mov_b32 s{S_LW2}, s77')
    a(f's_lshl_b32 s{S_2HD}, s{S_J8}, 1')
    a(f's_lshl_b32 s11, s{S_B}, 5')
    a(f's_lshl_b32 s13, s{S_HG}, 3')
    a('s_add_u32 s11, s11, s13')
    a('s_lshl_b32 s11, s11, 13')
    for i in range(4):
        a(f'v_add_u32 v7, {8*i}, v3')
        a(f'v_lshl_add_u32 v6, v7, 8, v{8+i%2}')
        a(f'v_add_u32 v6, s11, v6')
        a(f'v_subrev_u32 v{L_DV+i}, {1024*i}, v6')

    def late_setup():
        a(f's_lshl_b32 s10, s{S_W}, 15')
        a(f's_lshl_b32 s13, s{S_NT}, 8')
        a('s_add_u32 s10, s10, s13')
        a(f's_lshl_b32 s13, s{S_HG}, 21')
        a('s_add_u32 s10, s10, s13')
        a('v_lshl_add_u32 v6, v5, 11, v12')
        a(f'v_add_u32 v{L_DWO}, s10, v6')
        for i in range(1, 4):
            a(f'v_add_u32 v{L_DWO+i}, {i*4*2048-WOFF[i]}, v{L_DWO}')
        a(f'v_and_b32 v6, 7, v2')
        a(f'v_lshlrev_b32 v{L_POLLA}, 3, v6')
        a(f's_lshl_b32 s{S_TMP}, s{S_BR}, 4')
        a(f's_add_u32 s{S_TMP}, s{S_TMP}, s{S_B}')
        a(f's_lshl_b32 s{S_TMP}, s{S_TMP}, 2')
        a(f's_add_u32 s{S_TMP}, s{S_TMP}, s{S_HG}')
        a(f's_lshl_b32 s{S_TMP+2}, s{S_TMP}, 7')
        a(f's_add_u32 s{S_TMP+2}, s{S_TMP+2}, {WS_FLAG}')
        a(f's_lshl_b32 s{S_TMP+4}, s{S_TMP}, 14')
        a(f's_mul_i32 s{S_TMP+5}, s{S_W}, 6144')
        a(f's_add_u32 s{S_TMP+5}, s{S_TMP+5}, {AUX}')
        a(f'v_lshlrev_b32 v{L_WA}, 2, v2')

    if c.lsat == 0: late_setup()
    for v in range(1, 4):
        a(f's_cmp_eq_u32 s{S_MT}, {v}')
        a(f's_cbranch_scc1 LOADER{v}')

    def loader(mt):
        tagn = f'{mt}'
        s1, s2 = p1_sched(mt), p2_sched(mt)
        nops = [0]; endpos = {}
        def tile(kind, slot):
            if kind in ('x', 'v', 'k'):
                base = slot*16384 if kind != 'k' else AUX
                v, s, f = {'x': (L_DX, SRD_X, c.fx), 'v': (L_DV, SRD_V, c.fv), 'k': (L_DV, SRD_K, c.fk)}[kind]
                so = S_SA
            else:
                base = WT0 + slot*WSLOT
                v, s, f = (L_DWQ, SRD_WQ, c.fw) if kind == 'wq' else (L_DWO, SRD_WO, c.fo)
                so = S_SW
            wt = kind in ('wq', 'wo')
            a(f's_add_u32 m0, s{S_LW2 if wt else S_LW}, {base}')
            a('s_nop 0')
            for i in range(4):
                a(f'buffer_load_dwordx4 v{v+i}, s[{s}:{s+3}], s{so} offen offset:{WOFF[i] if wt else 1024*i} {f} lds')
                nops[0] += 1
        def wflag(off, val):
            a(f's_add_u32 m0, s{S_TMP+3}, {off}')
            a(f'v_mov_b32 v{L_WV}, {4*val}')
            a('s_mov_b64 exec, 1')
            a(f'global_load_lds_dword v{L_WV}, s[{S_TAB}:{S_TAB+1}]')
            a('s_mov_b64 exec, -1')
        def pload(u, count):
            r, i, own = s2[u]
            a(f's_add_u32 s10, s{S_NT}, {4*r+i}')
            a(f's_and_b32 s10, s10, 7')
            a(f's_lshl_b32 s10, s10, 11')
            a(f's_add_u32 m0, s{S_TMP+5}, {((u-1)%3)*2048}')
            a(f's_add_u32 s10, s10, s{S_TMP+4}')
            for G in range(2):
                a(f'buffer_load_dwordx4 v{V_L16}, s[{SRD_WS}:{SRD_WS+3}], s10 offen offset:{1024*G} sc1 lds')
                if count: nops[0] += 1
        def poll():
            a(f'buffer_load_dwordx2 v[{L_POLL}:{L_POLL+1}], v{L_POLLA}, s[{SRD_WS}:{SRD_WS+3}], s{S_TMP+2} offen sc1')
        def bar():
            a('s_barrier')
            if c.gmode == 'dyn': a(f's_memtime s[{S_TB}:{S_TB+1}]')
            a(f's_add_u32 s{S_NB}, s{S_NB}, 1')
        def gate(n):
            nm = f'{tagn}_{n}'
            if n < 3: return
            a.label(f'GA{nm}')
            if n >= 4:
                a(f's_cmp_ge_u32 s{S_NB}, {n-3}')
                a(f's_cbranch_scc1 GB{nm}')
                bar()
                a.label(f'GB{nm}')
            if n >= 30 or c.gmode == 'static' or n >= c.gsw: return
            if c.gmode == 'once':
                if n == 3: return
                a(f's_cmp_ge_u32 s{S_NB}, {n-2}')
                a(f's_cbranch_scc1 GO{nm}')
                a(f's_getreg_b32 s10, hwreg(HW_REG_IB_STS)')
                a('s_and_b32 s10, s10, 0xc0000f')
                a(f's_cmp_le_u32 s10, {c.vthr}')
                a(f's_cbranch_scc1 GO{nm}')
                bar()
                a.label(f'GO{nm}')
                return
            a(f's_cmp_ge_u32 s{S_NB}, {n-2}')
            a(f's_cbranch_scc1 GO{nm}')
            a.label(f'GP{nm}')
            a(f's_getreg_b32 s10, hwreg(HW_REG_IB_STS)')
            a(f's_memtime s[{S_NOW}:{S_NOW+1}]')
            a('s_and_b32 s10, s10, 0xc0000f')
            a(f's_cmp_le_u32 s10, {c.vthr}')
            a(f's_cbranch_scc1 GO{nm}')
            a('s_waitcnt lgkmcnt(0)')
            a(f's_sub_u32 s10, s{S_NOW}, s{S_TB}')
            nb = n - 3
            bud = c.budget + (1100 if nb == 16 else 0) + (256 if (nb == 18 or (nb >= 22 and nb % 2 == 0)) else 0)
            a(f's_cmp_lt_u32 s10, {bud if n > 3 else 1 << 20}')
            a(f's_cbranch_scc1 GP{nm}')
            bar()
            a.label(f'GO{nm}')
        def tr(lane, reg):
            if c.trace:
                a('s_memrealtime s[76:77]')
                a('s_waitcnt lgkmcnt(0)')
                a(f'v_writelane_b32 v{reg}, s76, {lane}')
        for g in range(1, NG + 1):
            slot = g % 4
            start = nops[0]
            if g < NG:
                if g == c.pg - 1: poll()
                if g == 6:
                    a(f'buffer_load_dwordx2 v[{L_TAG}:{L_TAG+1}], off, s[{SRD_DBG}:{SRD_DBG+3}], 0 sc1')
                if g == c.pg:
                    a(f's_mov_b32 s{S_CNT}, {c.spin}')
                    a.label(f'PC{tagn}')
                    a(f'v_cmp_ne_u64 vcc, v[{L_POLL}:{L_POLL+1}], v[{L_TAG}:{L_TAG+1}]')
                    a(f's_cbranch_vccz PG{tagn}')
                    a(f's_sub_u32 s{S_CNT}, s{S_CNT}, 1')
                    a(f's_cbranch_scc1 PG{tagn}')
                    poll()
                    a('s_waitcnt vmcnt(0)')
                    a(f's_branch PC{tagn}')
                    a.label(f'PG{tagn}')
                    for u in (1, 2, 3): pload(u, False)
                if g in (25, 27, 29, 31): pload((g - 25) // 2 + 4, True)
                if g < 16:
                    r, i, own = s1[g]
                    a(f's_add_u32 s{S_IDX}, s{S_2HD}, {4*i+OFFR[r]}')
                    a(f's_and_b32 s{S_IDX}, s{S_IDX}, 15')
                    a(f's_lshl_b32 s{S_SA}, s{S_IDX}, 7')
                    a(f's_lshl_b32 s{S_SW}, s{S_IDX}, 19')
                    tile('x', slot); tile('wq', slot)
                    if c.kearly: hf = 0 if g == 1 else (1 if (own and r == 1) else None)
                    else: hf = {1: 0, 3: 1}.get(r) if own else None
                    if hf is not None:
                        assert not (c.kearly and hf == 1 and g < 4)
                        a(f's_lshl_b32 s{S_SA}, s{S_J8}, 13')
                        if hf: a(f's_add_u32 s{S_SA}, s{S_SA}, 128')
                        tile('k', 0)
                else:
                    u, half = divmod(g - 16, 2)
                    r, i, own = s2[u]
                    a(f's_add_u32 s{S_IDX}, s{S_NT}, {4*r+i}')
                    a(f's_and_b32 s{S_IDX}, s{S_IDX}, 7')
                    a(f's_lshl_b32 s{S_SA}, s{S_IDX}, 13')
                    a(f's_lshl_b32 s{S_SW}, s{S_IDX}, 18')
                    if half:
                        a(f's_add_u32 s{S_SA}, s{S_SA}, 128')
                        a(f's_add_u32 s{S_SW}, s{S_SW}, {64*2048}')
                    if half and own and r == 1: tile('wo', slot); tile('v', slot)
                    else: tile('v', slot); tile('wo', slot)
            n_this = nops[0] - start
            if g == c.lsat: late_setup()
            a(f's_waitcnt vmcnt({n_this})')
            if g == 6:
                a(f's_mov_b32 s{S_CNT}, {c.spin}')
                a.label(f'TG{tagn}')
                a(f'v_cmp_eq_u64 vcc, 0, v[{L_TAG}:{L_TAG+1}]')
                a(f's_cbranch_vccz TGOK{tagn}')
                a(f's_sub_u32 s{S_CNT}, s{S_CNT}, 1')
                a(f's_cbranch_scc1 TGOK{tagn}')
                a('s_sleep 1')
                a(f'buffer_load_dwordx2 v[{L_TAG}:{L_TAG+1}], off, s[{SRD_DBG}:{SRD_DBG+3}], 0 sc1')
                a('s_waitcnt vmcnt(0)')
                a(f's_branch TG{tagn}')
                a.label(f'TGOK{tagn}')
                a(f's_mov_b32 m0, {CB_TAG}')
                a('s_mov_b64 exec, 3')
                a(f'buffer_load_dword v{L_WA}, s[{SRD_DBG}:{SRD_DBG+3}], 0 offen sc1 lds')
                a('s_mov_b64 exec, -1')
            a('s_barrier')
        if c.trace:
            a(f'v_writelane_b32 v51, s42, 63')
            a('s_mov_b32 s76, s40')
            a('s_mov_b32 s77, s41')
            a('s_mov_b32 s78, 0x10000000')
            a('s_mov_b32 s79, 0x00020000')
            a('s_lshl_b32 s75, s2, 2')
            a(f's_add_u32 s75, s75, s{S_W}')
            a('s_lshl_b32 s75, s75, 9')
            a(f's_add_u32 s75, s75, {(130<<20)}')
            a('v_lshlrev_b32 v3, 2, v2')
            a('buffer_store_dword v50, v3, s[76:79], s75 offen')
            a('buffer_store_dword v51, v3, s[76:79], s75 offen offset:256')
        a('s_endpgm')
    for v in range(4):
        if v: a.label(f'LOADER{v}')
        loader(v)

    if c.calign: a.raw(f'.p2align {c.calign}')
    a.label('COMPUTE')
    for _ in range(c.cpad): a('s_nop 0')
    a('s_memrealtime s[42:43]')
    if c.cprio: a(f's_setprio {c.cprio}')
    a(f's_mov_b32 s{S_W}, s{S_WID}')
    a(f's_lshl_b32 s{S_B}, s{S_MT}, 2')
    a(f's_add_u32 s{S_B}, s{S_B}, s{S_W}')
    T = ACC
    a('s_waitcnt lgkmcnt(0)')
    a(f's_lshl_b32 s{S_LW}, s{S_W}, 12')
    a(f'v_and_b32 v{T}, 15, v2')
    a(f'v_lshrrev_b32 v{T+1}, 4, v2')
    a(f'v_lshrrev_b32 v{T+2}, 1, v{T}')
    a(f'v_lshlrev_b32 v{T+3}, 7, v{T}')
    a(f'v_add_u32 v{T+3}, s{S_LW}, v{T+3}')
    a(f'v_xor_b32 v{T+4}, v{T+2}, v{T+1}')
    a(f'v_lshl_add_u32 v{V_RA}, v{T+4}, 4, v{T+3}')
    a(f'v_xor_b32 v{V_RA+1}, 64, v{V_RA}')
    a(f'v_lshrrev_b32 v{T+4}, 1, v{T+1}')
    a(f'v_xor_b32 v{T+4}, v{T+4}, v{T+2}')
    a(f'v_lshl_add_u32 v{T+4}, v{T+4}, 4, v{T+3}')
    a(f'v_and_b32 v{T+5}, 1, v{T+1}')
    a(f'v_lshl_add_u32 v{T+4}, v{T+5}, 3, v{T+4}')
    a(f'v_add_u32 v{V_SP}, {AUX}, v{T+4}')
    def rt_setup(phase, T):
        L = []
        L.append(f'v_bfe_u32 v{T}, v2, 2, 2')
        L.append(f'v_bfe_u32 v{T+1}, v2, 4, 1')
        L.append(f'v_lshrrev_b32 v{T+2}, 5, v2')
        L.append(f'v_and_b32 v{T+3}, 3, v2')
        L.append(f'v_mul_u32_u24 v{T+1}, 2080, v{T+1}')
        L.append(f'v_mul_u32_u24 v{T+2}, {WBLK}, v{T+2}')
        L.append(f'v_add3_u32 v{T+4}, v{T+1}, v{T+2}, 0')
        L.append(f'v_lshl_add_u32 v{T+4}, v{T}, 8, v{T+4}')
        L.append(f'v_lshl_add_u32 v{T+4}, v{T+3}, 3, v{T+4}')
        L.append(f'v_add_u32 v{T+4}, {WT0}, v{T+4}')
        for t in range(4):
            if phase == 1:
                L.append(f'v_xor_b32 v{T+5}, {t}, v{T}')
            else:
                L.append(f's_add_u32 s10, s{S_HG}, {t}')
                L.append('s_and_b32 s10, s10, 3')
                L.append(f'v_xor_b32 v{T+5}, s10, v{T}')
            L.append(f'v_lshl_add_u32 v{V_RT+t}, v{T+5}, 6, v{T+4}')
        return L
    for l in rt_setup(1, T): a(l)
    srd(SRD_WS, 40, WS_BYTES)
    srd(SRD_OUT, 36, 2 << 20)
    srd(SRD_DBG, 38, 256)
    a(f's_or_b32 s13, s2, s{S_W}')
    a('s_cmp_lg_u32 s13, 0')
    a('s_cbranch_scc1 NOTAG')
    a(f'v_mov_b32 v{T}, s42')
    a(f'v_mov_b32 v{T+1}, s43')
    a(f'buffer_store_dwordx2 v[{T}:{T+1}], off, s[{SRD_DBG}:{SRD_DBG+3}], 0 sc0 sc1')
    a.label('NOTAG')
    cc = (128 ** -0.5) * math.log2(math.e)
    cbits = struct.unpack('<I', struct.pack('<f', cc))[0]
    a(f's_mov_b32 s{S_TMP+4}, {hex(cbits)}')
    a(f's_lshl_b32 s{S_TMP}, s{S_BR}, 4')
    a(f's_add_u32 s{S_TMP}, s{S_TMP}, s{S_B}')
    a(f's_lshl_b32 s{S_TMP+1}, s{S_TMP}, 2')
    a(f's_add_u32 s{S_TMP+1}, s{S_TMP+1}, s{S_HG}')
    a(f's_lshl_b32 s{S_TMP+1}, s{S_TMP+1}, 4')
    a(f's_add_u32 s{S_TMP+1}, s{S_TMP+1}, s{S_J8}')
    a(f's_lshl_b32 s{S_TMP+1}, s{S_TMP+1}, 3')
    a(f's_add_u32 s{S_TMP+1}, s{S_TMP+1}, {WS_FLAG}')
    a(f's_lshl_b32 s{S_TMP}, s{S_TMP}, 5')
    a(f's_add_u32 s{S_TMP}, s{S_TMP}, s{S_HEAD}')
    a(f's_lshl_b32 s{S_TMP}, s{S_TMP}, 11')
    a(f's_mul_i32 s{S_TMP+2}, s{S_W}, 6144')
    a(f's_add_u32 s{S_TMP+2}, s{S_TMP+2}, {AUX}')
    tail_salu(a)
    stamp(1)
    phase1(a, c, stamp)
    softmax(a, c, stamp, rt_setup)
    phase2(a, c, stamp)
    if c.leak >= 0:
        if c.leakj >= 0:
            a(f's_and_b32 s76, s{S_J8}, 3')
            a(f's_cmp_lg_u32 s76, {c.leakj}')
            a('s_cbranch_scc1 K_END')
        a.label('LEAKL')
        a('s_memrealtime s[76:77]')
        a('s_waitcnt lgkmcnt(0)')
        a('s_sub_u32 s76, s76, s80')
        a('s_cmp_lt_u32 s76, 3000')
        a('s_cbranch_scc1 LEAKL')
    if c.padto:
        a.label('PADL')
        a('s_memrealtime s[76:77]')
        a('s_waitcnt lgkmcnt(0)')
        a(f's_sub_u32 s76, s76, s{S_T0}')
        a(f's_cmp_lt_u32 s76, {c.padto}')
        a('s_cbranch_scc1 PADL')
    if c.stamps:
        n = 11
        a('s_waitcnt vmcnt(0) lgkmcnt(0)')
        stamp(n - 1)
        a('s_waitcnt lgkmcnt(0)')
        a(f's_cmp_lg_u32 s{S_WID}, 0')
        a('s_cbranch_scc1 K_END')
        a('s_mov_b32 s76, s40')
        a('s_mov_b32 s77, s41')
        a('s_mov_b32 s78, 0x10000000')
        a('s_mov_b32 s79, 0x00020000')
        a('s_lshl_b32 s75, s2, 7')
        a(f's_add_u32 s75, s75, {128<<20}')
        a('v_mov_b32 v3, 0')
        for i in range(n):
            a(f'v_mov_b32 v4, s{80+2*i}')
            a(f'v_mov_b32 v5, s{81+2*i}')
            a(f'buffer_store_dwordx2 v[4:5], v3, s[76:79], s75 offen offset:{8*i}')
            a('s_nop 1')
    a.label('K_END')
    a('s_endpgm')
    return a.text()

PF = VWB + 48
ACC_TAGT = VWB + 32

def spin(a, c, name, rd, test):
    a(f's_mov_b32 s{S_CNT}, {c.lspin}')
    a.label(name)
    a(rd)
    a(f's_sub_u32 s{S_CNT}, s{S_CNT}, 1')
    a('s_cbranch_scc1 K_END')
    a('s_waitcnt lgkmcnt(0)')
    a(test)
    a(f's_cbranch_vccnz {name}')
def flagread(kind):
    return f'ds_read_b32 v{V_FL}, v{V_CB}' + ('' if kind == 'F' else f' offset:{CB_PRDY-CB_FULL}')
def flagtest(kind, g):
    return f'v_cmp_ge_u32 vcc, {g}, v{V_FL}' if kind == 'F' else f'v_cmp_eq_u32 vcc, 0, v{V_FL}'

NBAR = [0]
class Sched:
    def __init__(s, a, c):
        s.a, s.c = a, c
        s.M = []; s.L = []; s.V = []
        s.lastuse = {}
        s.wn = 0; s.an = 0
    def m(s, ins, needs=(), uses=(), vneed=(), post=None):
        for r in uses: s.lastuse[r] = len(s.M)
        s.M.append(dict(ins=ins, needs=list(needs), vneed=list(vneed), post=post))
        return len(s.M) - 1
    def load(s, instrs, tag, reg, first, gate=None, rel=None, vreq=None, depth=None):
        after = -1
        for r in (reg if isinstance(reg, (list, tuple)) else [reg]):
            after = max(after, s.lastuse.get(r, -1))
        d = s.c.depth if depth is None else depth
        for it in instrs:
            s.L.append(dict(it=it, tag=tag, after=max(after + 1, first - d), first=first, gate=gate, rel=rel, vreq=vreq))
    def valu(s, instrs, after, group=None):
        for i in instrs: s.V.append(dict(ins=i, after=after, group=group))
    def run(s, nbar, pure, last_bar, stamps={}):
        a, c = s.a, s.c
        s.L.sort(key=lambda e: e['first'])
        s.V.sort(key=lambda e: e['after'])
        Q = list(s.L)
        issued = []; done = [0]; itime = []
        relcount = {}
        for e in Q:
            if e['rel'] is not None: relcount[e['rel']] = relcount.get(e['rel'], 0) + 1
        relpos = {}
        nm = [0]
        V = s.V
        def need(tags):
            if not tags: return
            for t in tags:
                if any(e['tag'] == t for e in Q):
                    while any(e['tag'] == t for e in Q):
                        assert pump(1, True), ('stuck', t, Q[0])
            idx = max(i for i, t in enumerate(issued) if t in tags) + 1
            if idx > done[0]:
                while idx < len(issued) and nm[0] - itime[idx] >= c.minage: idx += 1
                n = min(14, len(issued) - idx)
                a(f's_waitcnt lgkmcnt({n})')
                done[0] = len(issued) - n
        def pump(k, force=False):
            n = 0
            while n < k and Q:
                e = Q[0]
                if e['after'] > nm[0]:
                    if not (force and e['after'] - nm[0] <= 0): break
                if e['vreq'] is not None and any(v['group'] == e['vreq'] for v in V): break
                if e['gate'] is not None and e['gate'][1] >= nbar[0]:
                    b = nbar[0] - 2
                    if b in pure:
                        a('s_barrier'); nbar[0] += 1
                        continue
                    assert not force, ('gate', e, nbar)
                    break
                Q.pop(0)
                for l in e['it']: a(l)
                issued.append(e['tag']); itime.append(nm[0])
                if e['rel'] is not None:
                    relcount[e['rel']] -= 1; relpos[e['rel']] = len(issued)
                n += len(e['it'])
            return n
        def fill(k):
            n = 0
            while n < k and V and V[0]['after'] <= nm[0]:
                a(V.pop(0)['ins']); n += 1
            return n
        pump(99)
        for i, m in enumerate(s.M):
            flushed = False
            for g in m['vneed']:
                while any(v['group'] == g for v in V):
                    assert V[0]['after'] <= nm[0], ('valu not ready', i, g, V[0])
                    a(V.pop(0)['ins']); flushed = True
            need(m['needs'])
            src = set()
            for lo, hi in re.findall(r'v\[(\d+):(\d+)\]', m['ins'].split(',', 1)[1]): src |= set(range(int(lo), int(hi) + 1))
            for back, l in enumerate(reversed(a.lines[-2:])):
                mm = re.match(r'\s*v_(?!mfma)\w+ v(\d+),', l)
                if mm and int(mm.group(1)) in src:
                    a(f's_nop {1 - back}'); break
            a(m['ins']); nm[0] += 1
            if i in stamps: stamps[i]()
            b = nbar[0] - 2
            if b not in pure and b <= last_bar and relcount.get(b, 0) == 0 and relpos.get(b, 0) <= done[0]:
                a('s_barrier'); nbar[0] += 1
            urgent = Q and Q[0]['first'] - nm[0] <= c.urgent
            if last_bar < 16 and c.ra * 32 <= i < c.rb * 32: urgent = True
            n = pump(2 if urgent else 1)
            fill((m['post'] or c.vslots) - (c.vslots - c.vwith) * min(n, 1))
        assert not Q, Q[0]
        assert nbar[0] - 2 > last_bar, nbar
        return V

def wt_items(j, kk, t, e, d):
    return [[f'ds_read_b64_tr_b16 {ar(d+2*u,2)}, v{V_RT+t} offset:{(j%4)*WSLOT+kk*2*WBLK+u*1024+e*32}'] for u in range(2)]
def act_item(j, kk, ai, dst):
    return [[f'ds_read_b128 {dst}, v{V_RA+kk} offset:{(j%4)*16384+ai*2048}']]
def p_items(u, d):
    return [[f'ds_read_b128 {ar(d+4*G,4)}, v{V_SP} offset:{((u-1)%3)*2048+1024*G}'] for G in range(2)]

def gemm_stage(S, j, gate):
    lastw = {}
    dd = S.c.d0 if j < S.c.dn else None
    for kk in range(2):
        aslot = [AA + 4*((S.an + x) % 3) for x in range(2)]; S.an += 2
        for h in range(2):
            base = len(S.M)
            if h == 0:
                for ai in range(2):
                    S.load(act_item(j, kk, ai, ar(aslot[ai], 4)), f'A{j}_{kk}_{ai}', aslot[ai], base + 4*ai - 0.5, gate, j, depth=dd)
            fr = []
            for w4 in range(4):
                t, e = 2*h + w4 // 2, w4 % 2
                d = AW + 4*(S.wn % 8); S.wn += 1
                S.load(wt_items(j, kk, t, e, d), f'W{j}_{kk}_{t}_{e}', d, base + w4, gate, j, depth=dd)
                fr.append((t, e, d))
            for ai in range(2):
                for (t, e, d) in fr:
                    r = ACC + 16*t + 8*e + 4*ai
                    first = kk == 0 and (j == 0 or (j >= 16 and j % 2 == 0))
                    ops = f'{ar(d,4)}, {ar(aslot[ai],4)}' if j < 16 else f'{ar(aslot[ai],4)}, {ar(d,4)}'
                    vn = [f'cv{(j-16)//2-1}_{t}_{e}'] if (first and j >= 18) else []
                    lastw[(t, e, ai)] = S.m(f'{MF} {vr(r,4)}, {ops}, ' + ('0' if first else vr(r, 4)),
                                            needs=[f'W{j}_{kk}_{t}_{e}', f'A{j}_{kk}_{ai}'], uses=[d, aslot[ai]], vneed=vn)
    return lastw

def phase1(a, c, stamp):
    a('s_barrier'); NBAR[0] = 1
    stamp(2)
    S = Sched(a, c)
    st = {}
    for j in range(16):
        kj = (0, 6) if c.kearly else (5, 13)
        if j in kj:
            hf = kj.index(j)
            base = len(S.M) + (12 if j == 0 else 0)
            n = 0
            for Tp in range(2):
                for e in range(2):
                    it = []
                    for ki in range(2):
                        x = [f'v_xor_b32 v{V_T3}, {(4*Tp+2*e)<<4}, v{V_SP}'] if ki == 0 else []
                        it.append(x + [f'ds_read_b64 {ar(AK+8*(2*hf+Tp)+4*ki+2*e,2)}, v{V_T3} offset:{2048*ki}'])
                    S.load(it, f'K{hf}_{Tp}_{e}', 'none', base + 12.7 + (1 if j == 0 else 4)*n, ('F', max(j, 1)), j, depth=8)
                    n += 1
        if j == 8: st[len(S.M)] = lambda: stamp(3)
        if c.fine >= 0 and 0 <= j - c.fine < 9: st[len(S.M)] = (lambda jj: lambda: stamp(jj - c.fine + 1, True))(j)
        gemm_stage(S, j, ('F', j))
    V = S.run(NBAR, {-1}, c.p1last, st)
    assert not V

def red2(a, op, x0, x1, t0, t1):
    for sw in ('v_permlane32_swap_b32', 'v_permlane16_swap_b32'):
        a(f'v_mov_b32 v{t0}, v{x0}')
        a(f'v_mov_b32 v{t1}, v{x1}')
        a('s_nop 0')
        a(f'{sw} v{x0}, v{t0}')
        a(f'{sw} v{x1}, v{t1}')
        a('s_nop 0')
        a(f'{op} v{x0}, v{x0}, v{t0}')
        a(f'{op} v{x1}, v{x1}, v{t1}')

def softmax(a, c, stamp, rt_setup):
    QF = VWB; S = VWB + 32
    stamp(4)
    a(f'v_mov_b32 v{V_T3}, {CB_TAG}')
    a(f'ds_read_b64 v[{VWB+56}:{VWB+57}], v{V_T3}')
    def qcv(t):
        L = []
        for ai in range(2):
            for e in range(2):
                for x in range(2):
                    r = ACC + 16*t + 8*e + 4*ai + 2*x
                    L.append(f'v_cvt_pk_bf16_f32 v{QF+8*t+4*ai+2*e+x}, v{r}, v{r+1}')
        return L
    for l in qcv(0) + qcv(1): a(l)
    for t in range(4):
        rest = qcv(t + 2) if t < 2 else []
        for mi in range(2):
            for ki in range(2):
                d = vr(S + 8*mi + 4*ki, 4)
                a(f'{MF} {d}, {ar(AK+8*t+4*ki,4)}, {vr(QF+8*t+4*mi,4)}, ' + ('0' if t == 0 else d))
                for l in rest[:2]: a(l)
                rest = rest[2:]
    a('s_waitcnt lgkmcnt(0)')
    if NBAR[0] == 16 and c.b16 == 'mid':
        a('s_barrier'); NBAR[0] += 1
    a(f'v_readfirstlane_b32 s{S_T0}, v{VWB+56}')
    a(f'v_readfirstlane_b32 s{S_T0+1}, v{VWB+57}')
    a(f's_bitcmp1_b32 s{S_HG}, 0')
    a('s_cbranch_scc0 RS0')
    a(f'v_swap_b32 v{V_RT}, v{V_RT+1}')
    a(f'v_swap_b32 v{V_RT+2}, v{V_RT+3}')
    a.label('RS0')
    a(f's_bitcmp1_b32 s{S_HG}, 1')
    a('s_cbranch_scc0 RS1')
    a(f'v_swap_b32 v{V_RT}, v{V_RT+2}')
    a(f'v_swap_b32 v{V_RT+1}, v{V_RT+3}')
    a.label('RS1')
    a('s_nop 1')
    x = [ACC, ACC + 1]; t0, t1 = ACC + 2, ACC + 3
    for mi in range(2): a(f'v_max3_f32 v{x[mi]}, v{S+8*mi}, v{S+8*mi+1}, v{S+8*mi+2}')
    for mi in range(2): a(f'v_max3_f32 v{x[mi]}, v{x[mi]}, v{S+8*mi+3}, v{S+8*mi+4}')
    for mi in range(2): a(f'v_max3_f32 v{x[mi]}, v{x[mi]}, v{S+8*mi+5}, v{S+8*mi+6}')
    for mi in range(2): a(f'v_max_f32 v{x[mi]}, v{x[mi]}, v{S+8*mi+7}')
    red2(a, 'v_max_f32', x[0], x[1], t0, t1)
    for mi in range(2): a(f'v_mul_f32 v{x[mi]}, s{S_TMP+4}, v{x[mi]}')
    for i in range(16):
        a(f'v_fma_f32 v{S+i}, v{S+i}, s{S_TMP+4}, -v{x[i//8]}')
    for i in range(16):
        a(f'v_exp_f32 v{S+i}, v{S+i}')
    for mi in range(2): a(f'v_add_f32 v{x[mi]}, v{S+8*mi}, v{S+8*mi+1}')
    for i in range(2, 8):
        for mi in range(2): a(f'v_add_f32 v{x[mi]}, v{x[mi]}, v{S+8*mi+i}')
    red2(a, 'v_add_f32', x[0], x[1], t0, t1)
    for mi in range(2): a(f'v_rcp_f32 v{x[mi]}, v{x[mi]}')
    a('s_nop 0')
    for i in range(16):
        a(f'v_mul_f32 v{S+i}, v{S+i}, v{x[i//8]}')
    for i in range(8):
        a(f'v_cvt_pk_bf16_f32 v{PF+i}, v{S+2*i}, v{S+2*i+1}')
    for G in range(2):
        a(f'buffer_store_dwordx4 {vr(PF+4*G,4)}, v{V_L16}, s[{SRD_WS}:{SRD_WS+3}], s{S_TMP} offen offset:{1024*G} sc0 sc1')
    a(f'v_add_u32 v{V_SP}, s{S_TMP+2}, v{V_L16}')
    a(f's_mul_i32 s{S_TG2}, s{S_T0}, 0x9e3779b1')
    a(f's_xor_b32 s{S_TG2}, s{S_TG2}, s{S_T0+1}')
    while NBAR[0] < (17 if c.b16 != 'late' else 17):
        a('s_barrier'); NBAR[0] += 1

S_SEND = 21
S_RCV = 25
S_OUTO = 29
S_TG2 = 18
def tail_salu(a):
    B = 19
    a(f's_lshl_b32 s{B}, s{S_BR}, 2')
    a(f's_add_u32 s{B}, s{B}, s{S_MT}')
    a(f's_lshl_b32 s{B}, s{B}, 3')
    a(f's_add_u32 s{B}, s{B}, s{S_NT}')
    a(f's_mul_i32 s{B}, s{B}, {4*3*4*4096}')
    a(f's_add_u32 s{B}, s{B}, s{S_LW}')
    a(f's_add_u32 s{B}, s{B}, {WS_X}')
    for t in (1, 2, 3):
        d = S_SEND + t
        a(f's_xor_b32 s{d}, s{S_HG}, {t}')
        a(f's_mul_i32 s{d}, s{d}, {3*16384}')
        a(f's_add_u32 s{d}, s{d}, s{B}')
        a(f's_add_u32 s{d}, s{d}, {(t-1)*16384}')
    a(f's_mul_i32 s{S_RCV}, s{S_HG}, {3*16384}')
    a(f's_add_u32 s{S_RCV}, s{S_RCV}, s{B}')
    a(f's_add_u32 s{S_RCV+1}, s{S_RCV}, 16384')
    a(f's_add_u32 s28, s{S_RCV}, 32768')
    a(f's_lshl_b32 s{S_OUTO}, s{S_B}, 17')
    a(f's_lshl_b32 s11, s{S_BR}, 11')
    a(f's_add_u32 s{S_OUTO}, s{S_OUTO}, s11')
    a(f's_lshl_b32 s11, s{S_NT}, 8')
    a(f's_add_u32 s{S_OUTO}, s{S_OUTO}, s11')
    a(f's_lshl_b32 s11, s{S_HG}, 6')
    a(f's_add_u32 s{S_OUTO}, s{S_OUTO}, s11')

JOBS = [(1, 6), (2, 6), (1, 7), (2, 7), (3, 6), (3, 7), (0, 6), (0, 7)]
HZ = 6

def phase2(a, c, stamp):
    stamp(5)
    S = Sched(a, c)
    st = {}
    def pstage(u, preg, ptag, tiles=(1, 2, 3, 0)):
        last = {}
        for t in tiles:
            for e in range(2):
                for qi in range(2):
                    o = ar(AO + 16*t + 8*e + 4*qi, 4)
                    p = vr(PF + 4*qi, 4) if u == 0 else ar(preg + 4*qi, 4)
                    last[t] = S.m(f'{MF} {o}, {vr(VWB+32*(u%2)+8*t+4*e,4)}, {p}, ' + ('0' if u == 0 else o),
                                  needs=[ptag] if ptag else [], uses=[preg, preg + 4] if u else [], vneed=[f'cv{u}_{t}_{e}'])
        return last
    for j in range(16, 28):
        u = (j - 16) // 2
        base = len(S.M)
        if j == 24: st[base] = lambda: stamp(6)
        if c.fine >= 0 and 0 <= j - c.fine < 9: st[base] = (lambda jj: lambda: stamp(jj - c.fine + 1, True))(j)
        if j >= 21 and j % 2 == 1:
            S.load(p_items(u - 1, AP), f'P{u-1}', [AP, AP + 4], base + 12.7, ('F', c.pg - 1) if j == 21 else ('F', j), j, depth=6)
        if j == 16:
            S.valu(['s_waitcnt vmcnt(0)', f'v_mov_b32 v{ACC_TAGT}, s{S_T0}', f'v_mov_b32 v{ACC_TAGT+1}, s{S_T0+1}',
                    f'buffer_store_dwordx2 v[{ACC_TAGT}:{ACC_TAGT+1}], off, s[{SRD_WS}:{SRD_WS+3}], s{S_TMP+1} sc0 sc1'], base + c.pubat)
        lw = gemm_stage(S, j, ('F', j))
        if j % 2 == 1:
            for t in range(4):
                for e in range(2):
                    r = ACC + 16*t + 8*e; d = VWB + 32*(u % 2) + 8*t + 4*e
                    S.valu([f'v_cvt_pk_bf16_f32 v{d+i}, v{r+2*i}, v{r+2*i+1}' for i in range(4)], lw[(t, e, 1)] + HZ, f'cv{u}_{t}_{e}')
            if u >= 2: pstage(u - 1, AP, f'P{u-1}')
        if j == 18: pstage(0, None, None)
    st[len(S.M)] = lambda: stamp(7)
    ACCB = [VWB, VWB + 16, VWB + 32]
    SB = VWB + 48; TMP = VWB + 60
    TGV = V_CB
    PB = AA
    S.load(p_items(5, PB), 'P5', [AA, AA + 4, AA + 8], len(S.M), ('F', 27), None)
    pstage(5, PB, 'P5')
    p5end = len(S.M)
    PFR = {6: AP, 7: PB}
    seenv = set(); seenp = set()
    pend = None
    def send(t):
        L = []
        for i in range(8):
            x, y = TMP + (2*i) % 4, TMP + (2*i+1) % 4
            L.append(f'v_accvgpr_read_b32 v{x}, a{AO+16*t+2*i}')
            L.append(f'v_accvgpr_read_b32 v{y}, a{AO+16*t+2*i+1}')
            L.append(f'v_cvt_pk_bf16_f32 v{SB+4*(i//3)+i%3}, v{x}, v{y}')
            if i in (2, 5, 7):
                L.append(f'buffer_store_dwordx4 {vr(SB+4*(i//3),4)}, v{V_L16}, s[{SRD_WS}:{SRD_WS+3}], s{S_SEND+t} offen offset:{1024*(i//3)} {c.xst}')
        return L
    def cvj(k, e):
        b = ACCB[k % 3] + 8*e
        return [f'v_cvt_pk_bf16_f32 v{b+i}, v{b+2*i}, v{b+2*i+1}' for i in range(4)]
    def pmf_ins(k):
        t, u = JOBS[k]; L = []
        for e in range(2):
            for qi in range(2):
                o = ar(AO + 16*t + 8*e + 4*qi, 4)
                L.append((e, f'{MF} {o}, {vr(ACCB[k%3]+8*e,4)}, {ar(PFR[u]+4*qi,4)}, {o}'))
        return L
    def pmf(k):
        t, u = JOBS[k]
        for e, ins in pmf_ins(k):
            i = S.m(ins, needs=[f'P{u}'], uses=[PFR[u], PFR[u] + 4], vneed=[f'cj{k}_{e}'], post=c.frate)
        if u == 7: S.valu(send(t), i + HZ, f'send{t}')
    R = [ACC, ACC + 12, ACC + 24]
    def rreg(k, qx):
        if k == 2 and qx == 2: return SB
        return R[k] + 4*qx
    RCV = [S_RCV, S_RCV + 1, 28]
    def rloads(ks):
        return [f'buffer_load_dwordx4 {vr(rreg(k,qx),4)}, v{V_L16}, s[{SRD_WS}:{SRD_WS+3}], s{RCV[k]} offen offset:{1024*qx} {c.xld}' for k in ks for qx in range(3)]
    tagset = False
    for k, (t, u) in enumerate(JOBS):
        lw = {}
        for k4 in range(4):
            j = 16 + 2*u + k4 // 2; kk = k4 % 2
            base = len(S.M)
            vreg = [ACC + 32*(u-6) + 8*k4 + 4*ki for ki in range(2)]
            if (u, k4) not in seenv:
                seenv.add((u, k4))
                for ki in range(2):
                    tt, ee = divmod((vreg[ki] - ACC) // 8, 2)
                    S.load(act_item(j, kk, ki, vr(vreg[ki], 4)), f'V{u}_{k4}_{ki}', 'none', base + ki - 0.5, ('F', j), None, vreq=f'cv5_{tt}_{ee}', depth=c.fdepth)
            fr = []
            for e in range(2):
                d = AW + 4*(S.wn % 8); S.wn += 1
                S.load(wt_items(j, kk, t, e, d), f'X{k}_{k4}_{e}', d, base + 2*e, ('F', j), None, depth=c.fdepth)
                fr.append(d)
            if k4 == 3 and u not in seenp:
                seenp.add(u)
                S.load(p_items(u, PFR[u]), f'P{u}', [PFR[u], PFR[u] + 4], base + 3.5, ('F', j), None, depth=c.fdepth)
            for e in range(2):
                for ki in range(2):
                    r = vr(ACCB[k % 3] + 8*e + 4*ki, 4)
                    lw[e] = S.m(f'{MF} {r}, {vr(vreg[ki],4)}, {ar(fr[e],4)}, ' + ('0' if k4 == 0 else r),
                                needs=[f'X{k}_{k4}_{e}', f'V{u}_{k4}_{ki}'], uses=[fr[e]], post=c.frate)
            if k4 == 1 and k > 0: pmf(k - 1)
            if u == 7 and k4 == 3 and not tagset:
                tagset = True
                S.valu([f'v_and_b32 v{V_T3}, 1, v{V_LANE}', f'v_cmp_eq_u32 vcc, 0, v{V_T3}', f'v_mov_b32 v{V_T3}, s{S_TG2}',
                        f'v_mov_b32 v{V_FL}, s{S_T0}', f'v_cndmask_b32 v{TGV}, v{V_T3}, v{V_FL}, vcc'] +
                       [f'v_mov_b32 v{SB+4*x+3}, v{TGV}' for x in range(3)], len(S.M) - 3)
            if k == 7 and k4 == c.rcv_k4:
                S.valu(rloads((0, 1)), len(S.M) - 2)
        if k < 7:
            for e in range(2): S.valu(cvj(k, e), lw[e] + HZ - 0.5, f'cj{k}_{e}')
    V = S.run(NBAR, {28, 29}, 27, st)
    assert NBAR[0] == 32, NBAR
    for v in V: a(v['ins'])
    VO = V_RA
    a(f'v_and_b32 v{VO}, 15, v{V_LANE}')
    a(f'v_lshlrev_b32 v{VO}, 12, v{VO}')
    a(f'v_bfe_u32 v{V_T3}, v{V_LANE}, 4, 1')
    a(f'v_lshl_add_u32 v{VO}, v{V_T3}, 5, v{VO}')
    a(f'v_lshrrev_b32 v{V_T3}, 5, v{V_LANE}')
    a(f'v_lshl_add_u32 v{VO}, v{V_T3}, 4, v{VO}')
    a(f's_mov_b32 s{S_TMP+3}, {c.spin}')
    a(f's_mov_b32 s{S_TMP+4}, 0xffff0000')
    a(f's_add_u32 s{S_TMP+5}, s{S_OUTO}, 65536')
    for e in range(2):
        for l in cvj(7, e): a(l)
    for l in rloads((2,)): a(l)
    for e, ins in pmf_ins(7): a(ins)
    stamp(8)
    O = ACCB[2]
    XT = V_RT
    def check(k, first_wait):
        a(f's_waitcnt vmcnt({first_wait})')
        a(f's_branch XC{k}')
        a.label(f'XR{k}')
        a(f's_sub_u32 s{S_TMP+3}, s{S_TMP+3}, 1')
        a('s_cbranch_scc1 K_END')
        if c.xsleep: a(f's_sleep {c.xsleep}')
        for l in rloads((k,)): a(l)
        a('s_waitcnt vmcnt(0)')
        a.label(f'XC{k}')
        tg = [rreg(k, qx) + 3 for qx in range(3)]
        for i, r in enumerate(tg):
            a(f'v_xor_b32 v{XT+i}, v{r}, v{TGV}')
        a(f'v_or3_b32 v0, v{XT}, v{XT+1}, v{XT+2}')
        a('v_cmp_ne_u32 vcc, 0, v0')
        a(f's_cbranch_vccnz XR{k}')
    def acc(k, first):
        for i in range(8):
            d = rreg(k, i // 3) + i % 3
            if first:
                a(f'v_lshlrev_b32 v{O+2*i}, 16, v{d}')
                a(f'v_and_b32 v{O+2*i+1}, s{S_TMP+4}, v{d}')
            else:
                a(f'v_lshlrev_b32 v{XT+(2*i)%4}, 16, v{d}')
                a(f'v_and_b32 v{XT+(2*i+1)%4}, s{S_TMP+4}, v{d}')
                a(f'v_add_f32 v{O+2*i}, v{O+2*i}, v{XT+(2*i)%4}')
                a(f'v_add_f32 v{O+2*i+1}, v{O+2*i+1}, v{XT+(2*i+1)%4}')
    check(0, 6); acc(0, True)
    check(1, 3); acc(1, False)
    for r in range(16):
        a(f'v_accvgpr_read_b32 v{XT+r%4}, a{AO+r}')
        a(f'v_add_f32 v{O+r}, v{O+r}, v{XT+r%4}')
    check(2, 0)
    stamp(9)
    acc(2, False)
    F = ACCB[0]
    for e in range(2):
        for qi in range(2):
            for x in range(2):
                r = O + 8*e + 4*qi + 2*x
                a(f'v_cvt_pk_bf16_f32 v{F+4*qi+2*e+x}, v{r}, v{r+1}')
    a('s_nop 1')
    for qi in range(2):
        for x in range(2):
            a(f'v_permlane16_swap_b32 v{F+4*qi+x}, v{F+4*qi+2+x}')
    a('s_nop 1')
    a(f'buffer_store_dwordx4 {vr(F,4)}, v{VO}, s[{SRD_OUT}:{SRD_OUT+3}], s{S_OUTO} offen {c.ost}')
    a(f'buffer_store_dwordx4 {vr(F+4,4)}, v{VO}, s[{SRD_OUT}:{SRD_OUT+3}], s{S_TMP+5} offen {c.ost}')

def build(c, out):
    P2POS[:] = [int(x) for x in c.p2pos]
    pp = c.p1pos.split('_')
    if len(pp) == 1: pp = pp * 3
    P1POS[:] = [[int(x) for x in p] for p in pp]
    hdr = open('header.txt').read().splitlines()
    t = '\n'.join(hdr) + '\n'
    t += '; @launch grid=(256,1,1) block=(512,1,1) lds=163840\n'
    t += '.amdgcn_target "amdgcn-amd-amdhsa--gfx950"\n.text\n'
    t += f'.globl {NAME}_kernel\n'
    out_l = []
    for l in gen(c).split('\n'):
        if c.nodma and ' lds' in l and 'sc1' not in l: continue
        if c.noread and ('ds_read_b128' in l or 'ds_read_b64_tr' in l): continue
        if c.nomfma and 'v_mfma' in l: continue
        if c.same and f's_and_b32 s{S_IDX}, s{S_IDX},' in l: l = f'    s_and_b32 s{S_IDX}, s{S_IDX}, 1'
        out_l.append(l)
    t += '\n'.join(out_l)
    t += kd(f'{NAME}_kernel', 256, 102, ACCUM_OFF)
    open(out, 'w').write(t)

if __name__ == '__main__':
    c = Cfg()
    out = sys.argv[1]
    for kv in sys.argv[2:]:
        k, v = kv.split('=', 1)
        old = getattr(c, k)
        if v == 'None': v = None
        elif isinstance(old, bool): v = v in ('1', 'True')
        elif isinstance(old, int): v = int(v)
        setattr(c, k, v)
    build(c, out)
```

```python
import sys, math, struct, re
from asmlib import *

NAME = 'concat_heads__mha_block_cached__gqa_block_cached__near_ridge'
MF = 'v_mfma_f32_16x16x32_bf16'

class Cfg:
    stamps = False; cyc = False; trace = False
    fx = ''; fw = ''; fk = ''; fv = ''; fo = ''
    xst = 'sc1'; xld = 'sc1'
    spin = 1 << 16
    lspin = 1 << 20
    cprio = 1
    early = 16
    psleep = 8
    pfirst = 22
    budget = 320
    pfv = -1
    pfo = -1
    pfo2 = -1
    xsleep = 0
    leak = -1
    fdepth = 10
    rcv_at = 61
    fdepth2 = 3
    jobs = 'b'
    frate = 3
    tlbw = -1
    tlbws = True
    p2pos = '2344'
    p1pos = '4444_4444_1234'
    vslots = 2
    bd1 = 0
    bd2 = 0
    hz2 = 5
    hwait = 4
    lsend = False
    lsat = 0
    kearly = False
    calign = 0
    cpad = 0
    lfirst = False
    ra = 0
    rb = 8
    d0 = 0
    dn = 0
    p1last = 13
    b16 = 'end'
    pg = 25
    gsw = 99
    gmode = 'static'
    leakj = -1
    rhg = 0
    rbr = 0
    jrot = 0
    fine = -1
    ost = ''
    vwith = 1
    urgent = 7
    minage = 5
    flead = 5
    pubat = 22
    rcv_k4 = 2
    depth = 12
    same = False
    vthr = 8
    pprog = 18
    slowpath = True
    nodma = False; noread = False; nomfma = False
    padto = 0
    lsleep = 1
    ctrace = False
    nofree = False
    noprog = False
    noflag = False
    lpace = 0
    fewflags = False
    progop = ''
    ex1 = True

S_XCD, S_MT, S_BR, S_HG, S_J8, S_W, S_B, S_NT, S_HEAD, S_WID = 3, 4, 5, 6, 7, 8, 9, 15, 12, 14
SRD_X, SRD_K, SRD_V, SRD_WQ, SRD_WO, SRD_WS, SRD_OUT, SRD_DBG = 44, 48, 52, 56, 60, 64, 68, 72
S_SA, S_SW, S_IDX, S_LW = 24, 25, 26, 27
S_2HD = 28; S_PD = 29
S_TMP = 30
S_T0 = 16
S_LW2 = 18
S_CNT = 20
S_NB = 21
S_TB = 22
S_TAB = 36
S_NOW = 38
V_FL = 0; V_T3 = 1
V_LANE = 2; V_CB = 3
V_RA = 4; V_RT = 6; V_L16 = 10; V_SP = 11
ACC = 12; VWB = 76
ACCUM_OFF = 140
AW = 0; AA = 32; AP = 44; AO = 52
AK = AO
L_DX, L_DWQ, L_DV, L_DWO = 16, 20, 24, 28
L_POLLA, L_POLL, L_TAG, L_THR, L_WA, L_WV, L_FA, L_TMP, L_THR2 = 32, 34, 36, 38, 39, 40, 41, 42, 43
L_PFV, L_PFO, L_JUNK = 44, 45, 46

WS_FLAG = 2 << 20
WS_X = 4 << 20
WS_BYTES = 16 << 20
WT0 = 65536; WSLOT = 16512; WBLK = 4128
WOFF = [0, 1024, 2080, 3104]
AUX = WT0 + 4*WSLOT
CB = 163840 - 2048
CB_FULL = CB + 1024; CB_PRDY = CB + 1040; CB_TAG = CB + 1056
OFFR = [0, 2, 1, 3]
NG = 32

P1POS = [[1, 2, 3, 4]] * 3
def p1_sched(mt):
    own = {0: 0}
    def ftime(r, q): return 0 if r == 0 else P1POS[r-1][q] + 4*(r-1)
    for r in (1, 2, 3): own[ftime(r, mt)] = r
    fol = sorted([(ftime(r, q), r, q) for r in range(4) for q in range(4) if q != mt], key=lambda x: (x[1], x[0]))
    L = []
    for tau in range(16):
        if tau in own: L.append((own[tau], mt, True))
        else:
            ft, r, q = fol.pop(0)
            assert ft < tau, (mt, tau, ft)
            assert r < 2 or ftime(2, mt) < tau, (mt, tau, r)
            L.append((r, q, False))
    return L
P2POS = [1, 2, 3, 4]
def p2_sched(mt):
    fol0 = [(0, q, False) for q in range(4) if q != mt]
    p = P2POS[mt]
    L = [(0, mt, True)] + fol0[:p-1] + [(1, mt, True)] + fol0[p-1:]
    L += [(1, q, False) for q in sorted(range(4), key=lambda q: P2POS[q]) if q != mt]
    return L

def gen(c):
    a = Asm()
    def stamp(i, fine=False):
        if c.fine >= 0 and not fine and 0 < i < 10: return
        if c.leak == i: a('s_memrealtime s[80:81]')
        if c.stamps: a(f'{"s_memtime" if (c.cyc and i > 0) else "s_memrealtime"} s[{80+2*i}:{81+2*i}]')
    a.raw('.p2align 8')
    a.raw(f'.type {NAME}_kernel,@function')
    a.label(f'{NAME}_kernel')
    a('s_cmp_ge_u32 s2, 256')
    a('s_cbranch_scc1 K_END')
    stamp(0)
    a('s_load_dwordx16 s[16:31], s[0:1], 0')
    a('s_load_dwordx8 s[32:39], s[0:1], 64')
    a('s_load_dwordx2 s[40:41], s[0:1], 96')
    a(f's_and_b32 s{S_XCD}, s2, 7')
    a(f's_lshr_b32 s{S_MT}, s2, 3')
    a(f's_lshr_b32 s{S_BR}, s{S_XCD}, 2')
    a(f's_and_b32 s{S_HG}, s{S_XCD}, 3')
    if c.jrot: a(f's_add_u32 s{S_J8}, s{S_MT}, {c.jrot}')
    a(f's_and_b32 s{S_J8}, s{S_J8 if c.jrot else S_MT}, 7')
    a(f's_lshr_b32 s{S_MT}, s{S_MT}, 3')
    a('v_lshrrev_b32 v1, 6, v0')
    a(f'v_and_b32 v{V_LANE}, 63, v0')
    a(f's_sub_u32 s{S_NT}, s{S_J8}, s{S_MT}')
    a(f'v_readfirstlane_b32 s{S_WID}, v1')
    a(f's_and_b32 s{S_NT}, s{S_NT}, 7')
    a(f's_lshl_b32 s{S_HEAD}, s{S_HG}, 3')
    a(f's_add_u32 s{S_HEAD}, s{S_HEAD}, s{S_J8}')
    a(f'v_lshlrev_b32 v{V_L16}, 4, v2')
    def srd_sel(d, pa, pb, nbytes):
        a(f's_cselect_b32 s{d}, s{pb}, s{pa}')
        a(f's_cselect_b32 s{d+1}, s{pb+1}, s{pa+1}')
        a(f's_mov_b32 s{d+2}, {hex(nbytes)}')
        a(f's_mov_b32 s{d+3}, 0x00020000')
    def srd(d, p, nbytes):
        a(f's_mov_b32 s{d}, s{p}')
        a(f's_mov_b32 s{d+1}, s{p+1}')
        a(f's_mov_b32 s{d+2}, {hex(nbytes)}')
        a(f's_mov_b32 s{d+3}, 0x00020000')
    if c.lfirst: a(f's_xor_b32 s{S_WID}, s{S_WID}, 4')
    a(f's_cmp_lt_u32 s{S_WID}, 4')
    a('s_cbranch_scc1 COMPUTE')

    a(f's_and_b32 s{S_W}, s{S_WID}, 3')
    a(f's_lshl_b32 s{S_B}, s{S_MT}, 2')
    a(f's_add_u32 s{S_B}, s{S_B}, s{S_W}')
    a(f's_mov_b32 s44, {8*2048-1024}')
    a('v_lshrrev_b32 v3, 3, v2')
    a('v_and_b32 v4, 7, v2')
    a('v_lshrrev_b32 v5, 4, v2')
    a(f's_lshl_b32 s10, s{S_B}, 16')
    a('v_xor_b32 v6, v5, v4')
    a('v_lshlrev_b32 v8, 4, v6')
    a('v_xor_b32 v9, 64, v8')
    a('v_lshl_add_u32 v6, v3, 11, s10')
    a(f'v_add_u32 v{L_DX}, v6, v8')
    a(f'v_add3_u32 v{L_DX+1}, v6, v9, s44')
    a(f'v_add_u32 v{L_DX+2}, {16*2048-2048}, v{L_DX}')
    a(f'v_add_u32 v{L_DX+3}, {16*2048-2048}, v{L_DX+1}')
    a('v_and_b32 v6, 15, v2')
    a('v_lshlrev_b32 v7, 2, v5')
    a('v_xor_b32 v6, v6, v7')
    a('v_lshlrev_b32 v12, 4, v6')
    a(f's_lshl_b32 s10, s{S_W}, 17')
    a(f's_lshl_b32 s13, s{S_HEAD}, 8')
    a('s_add_u32 s10, s10, s13')
    a('v_lshl_add_u32 v6, v5, 13, v12')
    a(f'v_add_u32 v{L_DWQ}, s10, v6')
    for i in range(1, 4):
        a(f'v_add_u32 v{L_DWQ+i}, {i*4*8192-WOFF[i]}, v{L_DWQ}')
    a(f's_lshl_b32 s78, s{S_MT}, 1')
    a(f's_add_u32 s78, s78, s{S_J8}')
    a('s_and_b32 s78, s78, 7')
    a('s_lshl_b32 s79, s78, 20')
    a('s_lshl_b32 s78, s78, 8')
    a(f's_mul_i32 s77, s{S_W}, {WBLK}')
    a(f's_lshl_b32 m0, s{S_W}, 12')
    a(f's_mov_b32 s{SRD_X+2}, {1 << 20}')
    a(f's_mov_b32 s{SRD_X+3}, 0x00020000')
    a(f's_mov_b32 s{SRD_WQ+2}, {8 << 20}')
    a(f's_mov_b32 s{SRD_WQ+3}, 0x00020000')
    a(f's_cmp_eq_u32 s{S_BR}, 1')
    a('s_waitcnt lgkmcnt(0)')
    a(f's_cselect_b64 s[{SRD_X}:{SRD_X+1}], s[26:27], s[16:17]')
    a(f's_cselect_b64 s[{SRD_WQ}:{SRD_WQ+1}], s[32:33], s[22:23]')
    for i in range(4):
        a(f'buffer_load_dwordx4 v{L_DX+i}, s[{SRD_X}:{SRD_X+3}], s78 offen offset:{1024*i} {c.fx} lds')
    srd_sel(SRD_K, 18, 28, 4 << 20)
    srd_sel(SRD_V, 20, 30, 4 << 20)
    srd_sel(SRD_WO, 24, 34, 8 << 20)
    a(f's_add_u32 m0, s77, {WT0}')
    a('s_nop 0')
    for i in range(4):
        a(f'buffer_load_dwordx4 v{L_DWQ+i}, s[{SRD_WQ}:{SRD_WQ+3}], s79 offen offset:{WOFF[i]} {c.fw} lds')
    srd(SRD_WS, 40, WS_BYTES)
    srd(SRD_DBG, 38, 256)
    a(f's_lshl_b32 s{S_LW}, s{S_W}, 12')
    a(f's_mov_b32 s{S_LW2}, s77')
    a(f's_lshl_b32 s{S_2HD}, s{S_J8}, 1')
    a(f's_lshl_b32 s11, s{S_B}, 5')
    a(f's_lshl_b32 s13, s{S_HG}, 3')
    a('s_add_u32 s11, s11, s13')
    a('s_lshl_b32 s11, s11, 13')
    for i in range(4):
        a(f'v_add_u32 v7, {8*i}, v3')
        a(f'v_lshl_add_u32 v6, v7, 8, v{8+i%2}')
        a(f'v_add_u32 v6, s11, v6')
        a(f'v_subrev_u32 v{L_DV+i}, {1024*i}, v6')

    def late_setup():
        a(f's_lshl_b32 s10, s{S_W}, 15')
        a(f's_lshl_b32 s13, s{S_NT}, 8')
        a('s_add_u32 s10, s10, s13')
        a(f's_lshl_b32 s13, s{S_HG}, 21')
        a('s_add_u32 s10, s10, s13')
        a('v_lshl_add_u32 v6, v5, 11, v12')
        a(f'v_add_u32 v{L_DWO}, s10, v6')
        for i in range(1, 4):
            a(f'v_add_u32 v{L_DWO+i}, {i*4*2048-WOFF[i]}, v{L_DWO}')
        a(f'v_and_b32 v6, 7, v2')
        a(f'v_lshlrev_b32 v{L_POLLA}, 3, v6')
        a(f's_lshl_b32 s{S_TMP}, s{S_BR}, 4')
        a(f's_add_u32 s{S_TMP}, s{S_TMP}, s{S_B}')
        a(f's_lshl_b32 s{S_TMP}, s{S_TMP}, 2')
        a(f's_add_u32 s{S_TMP}, s{S_TMP}, s{S_HG}')
        a(f's_lshl_b32 s{S_TMP+2}, s{S_TMP}, 7')
        a(f's_add_u32 s{S_TMP+2}, s{S_TMP+2}, {WS_FLAG}')
        a(f's_lshl_b32 s{S_TMP+4}, s{S_TMP}, 14')
        a(f's_mul_i32 s{S_TMP+5}, s{S_W}, 6144')
        a(f's_add_u32 s{S_TMP+5}, s{S_TMP+5}, {AUX}')
        a(f'v_lshlrev_b32 v{L_WA}, 2, v2')

    if c.lsat == 0: late_setup()
    for v in range(1, 4):
        a(f's_cmp_eq_u32 s{S_MT}, {v}')
        a(f's_cbranch_scc1 LOADER{v}')

    def loader(mt):
        tagn = f'{mt}'
        s1, s2 = p1_sched(mt), p2_sched(mt)
        nops = [0]; endpos = {}
        def tile(kind, slot):
            if kind in ('x', 'v', 'k'):
                base = slot*16384 if kind != 'k' else AUX
                v, s, f = {'x': (L_DX, SRD_X, c.fx), 'v': (L_DV, SRD_V, c.fv), 'k': (L_DV, SRD_K, c.fk)}[kind]
                so = S_SA
            else:
                base = WT0 + slot*WSLOT
                v, s, f = (L_DWQ, SRD_WQ, c.fw) if kind == 'wq' else (L_DWO, SRD_WO, c.fo)
                so = S_SW
            wt = kind in ('wq', 'wo')
            a(f's_add_u32 m0, s{S_LW2 if wt else S_LW}, {base}')
            a('s_nop 0')
            for i in range(4):
                a(f'buffer_load_dwordx4 v{v+i}, s[{s}:{s+3}], s{so} offen offset:{WOFF[i] if wt else 1024*i} {f} lds')
                nops[0] += 1
        def wflag(off, val):
            a(f's_add_u32 m0, s{S_TMP+3}, {off}')
            a(f'v_mov_b32 v{L_WV}, {4*val}')
            a('s_mov_b64 exec, 1')
            a(f'global_load_lds_dword v{L_WV}, s[{S_TAB}:{S_TAB+1}]')
            a('s_mov_b64 exec, -1')
        def pload(u, count):
            r, i, own = s2[u]
            a(f's_add_u32 s10, s{S_NT}, {4*r+i}')
            a(f's_and_b32 s10, s10, 7')
            a(f's_lshl_b32 s10, s10, 11')
            a(f's_add_u32 m0, s{S_TMP+5}, {((u-1)%3)*2048}')
            a(f's_add_u32 s10, s10, s{S_TMP+4}')
            for G in range(2):
                a(f'buffer_load_dwordx4 v{V_L16}, s[{SRD_WS}:{SRD_WS+3}], s10 offen offset:{1024*G} sc1 lds')
                if count: nops[0] += 1
        def poll():
            a(f'buffer_load_dwordx2 v[{L_POLL}:{L_POLL+1}], v{L_POLLA}, s[{SRD_WS}:{SRD_WS+3}], s{S_TMP+2} offen sc1')
        def bar():
            a('s_barrier')
            if c.gmode == 'dyn': a(f's_memtime s[{S_TB}:{S_TB+1}]')
            a(f's_add_u32 s{S_NB}, s{S_NB}, 1')
        def gate(n):
            nm = f'{tagn}_{n}'
            if n < 3: return
            a.label(f'GA{nm}')
            if n >= 4:
                a(f's_cmp_ge_u32 s{S_NB}, {n-3}')
                a(f's_cbranch_scc1 GB{nm}')
                bar()
                a.label(f'GB{nm}')
            if n >= 30 or c.gmode == 'static' or n >= c.gsw: return
            if c.gmode == 'once':
                if n == 3: return
                a(f's_cmp_ge_u32 s{S_NB}, {n-2}')
                a(f's_cbranch_scc1 GO{nm}')
                a(f's_getreg_b32 s10, hwreg(HW_REG_IB_STS)')
                a('s_and_b32 s10, s10, 0xc0000f')
                a(f's_cmp_le_u32 s10, {c.vthr}')
                a(f's_cbranch_scc1 GO{nm}')
                bar()
                a.label(f'GO{nm}')
                return
            a(f's_cmp_ge_u32 s{S_NB}, {n-2}')
            a(f's_cbranch_scc1 GO{nm}')
            a.label(f'GP{nm}')
            a(f's_getreg_b32 s10, hwreg(HW_REG_IB_STS)')
            a(f's_memtime s[{S_NOW}:{S_NOW+1}]')
            a('s_and_b32 s10, s10, 0xc0000f')
            a(f's_cmp_le_u32 s10, {c.vthr}')
            a(f's_cbranch_scc1 GO{nm}')
            a('s_waitcnt lgkmcnt(0)')
            a(f's_sub_u32 s10, s{S_NOW}, s{S_TB}')
            nb = n - 3
            bud = c.budget + (1100 if nb == 16 else 0) + (256 if (nb == 18 or (nb >= 22 and nb % 2 == 0)) else 0)
            a(f's_cmp_lt_u32 s10, {bud if n > 3 else 1 << 20}')
            a(f's_cbranch_scc1 GP{nm}')
            bar()
            a.label(f'GO{nm}')
        def tr(lane, reg):
            if c.trace:
                a('s_memrealtime s[76:77]')
                a('s_waitcnt lgkmcnt(0)')
                a(f'v_writelane_b32 v{reg}, s76, {lane}')
        for g in range(1, NG + 1):
            slot = g % 4
            start = nops[0]
            if g < NG:
                if g == c.pg - 1: poll()
                if g == 6:
                    a(f'buffer_load_dwordx2 v[{L_TAG}:{L_TAG+1}], off, s[{SRD_DBG}:{SRD_DBG+3}], 0 sc1')
                if g == c.pg:
                    a(f's_mov_b32 s{S_CNT}, {c.spin}')
                    a.label(f'PC{tagn}')
                    a(f'v_cmp_ne_u64 vcc, v[{L_POLL}:{L_POLL+1}], v[{L_TAG}:{L_TAG+1}]')
                    a(f's_cbranch_vccz PG{tagn}')
                    a(f's_sub_u32 s{S_CNT}, s{S_CNT}, 1')
                    a(f's_cbranch_scc1 PG{tagn}')
                    poll()
                    a('s_waitcnt vmcnt(0)')
                    a(f's_branch PC{tagn}')
                    a.label(f'PG{tagn}')
                    for u in (1, 2, 3): pload(u, False)
                for gg, uu in ((max(25, c.pg + 2), 4), (27, 5), (29, 6), (31, 7)):
                    if g == gg: pload(uu, True)
                if g < 16:
                    r, i, own = s1[g]
                    a(f's_add_u32 s{S_IDX}, s{S_2HD}, {4*i+OFFR[r]}')
                    a(f's_and_b32 s{S_IDX}, s{S_IDX}, 15')
                    a(f's_lshl_b32 s{S_SA}, s{S_IDX}, 7')
                    a(f's_lshl_b32 s{S_SW}, s{S_IDX}, 19')
                    tile('x', slot); tile('wq', slot)
                    if c.kearly: hf = 0 if g == 1 else (1 if (own and r == 1) else None)
                    else: hf = {1: 0, 3: 1}.get(r) if own else None
                    if hf is not None:
                        assert not (c.kearly and hf == 1 and g < 4)
                        a(f's_lshl_b32 s{S_SA}, s{S_J8}, 13')
                        if hf: a(f's_add_u32 s{S_SA}, s{S_SA}, 128')
                        tile('k', 0)
                else:
                    u, half = divmod(g - 16, 2)
                    r, i, own = s2[u]
                    a(f's_add_u32 s{S_IDX}, s{S_NT}, {4*r+i}')
                    a(f's_and_b32 s{S_IDX}, s{S_IDX}, 7')
                    a(f's_lshl_b32 s{S_SA}, s{S_IDX}, 13')
                    a(f's_lshl_b32 s{S_SW}, s{S_IDX}, 18')
                    if half:
                        a(f's_add_u32 s{S_SA}, s{S_SA}, 128')
                        a(f's_add_u32 s{S_SW}, s{S_SW}, {64*2048}')
                    if half and own and r == 1: tile('wo', slot); tile('v', slot)
                    else: tile('v', slot); tile('wo', slot)
            n_this = nops[0] - start
            if g == c.lsat: late_setup()
            a(f's_waitcnt vmcnt({n_this})')
            if g == 6:
                a(f's_mov_b32 s{S_CNT}, {c.spin}')
                a.label(f'TG{tagn}')
                a(f'v_cmp_eq_u64 vcc, 0, v[{L_TAG}:{L_TAG+1}]')
                a(f's_cbranch_vccz TGOK{tagn}')
                a(f's_sub_u32 s{S_CNT}, s{S_CNT}, 1')
                a(f's_cbranch_scc1 TGOK{tagn}')
                a('s_sleep 1')
                a(f'buffer_load_dwordx2 v[{L_TAG}:{L_TAG+1}], off, s[{SRD_DBG}:{SRD_DBG+3}], 0 sc1')
                a('s_waitcnt vmcnt(0)')
                a(f's_branch TG{tagn}')
                a.label(f'TGOK{tagn}')
                a(f's_mov_b32 m0, {CB_TAG}')
                a('s_mov_b64 exec, 3')
                a(f'buffer_load_dword v{L_WA}, s[{SRD_DBG}:{SRD_DBG+3}], 0 offen sc1 lds')
                a('s_mov_b64 exec, -1')
            a('s_barrier')
        if c.lsend: a('s_branch LTAIL')
        if c.trace:
            a(f'v_writelane_b32 v51, s42, 63')
            a('s_mov_b32 s76, s40')
            a('s_mov_b32 s77, s41')
            a('s_mov_b32 s78, 0x10000000')
            a('s_mov_b32 s79, 0x00020000')
            a('s_lshl_b32 s75, s2, 2')
            a(f's_add_u32 s75, s75, s{S_W}')
            a('s_lshl_b32 s75, s75, 9')
            a(f's_add_u32 s75, s75, {(130<<20)}')
            a('v_lshlrev_b32 v3, 2, v2')
            a('buffer_store_dword v50, v3, s[76:79], s75 offen')
            a('buffer_store_dword v51, v3, s[76:79], s75 offen offset:256')
        a('s_endpgm')
    for v in range(4):
        if v: a.label(f'LOADER{v}')
        loader(v)

    if c.lsend:
        a.label('LTAIL')
        B = 19
        a(f's_lshl_b32 s{B}, s{S_BR}, 2')
        a(f's_add_u32 s{B}, s{B}, s{S_MT}')
        a(f's_lshl_b32 s{B}, s{B}, 3')
        a(f's_add_u32 s{B}, s{B}, s{S_NT}')
        a(f's_mul_i32 s{B}, s{B}, {4*3*4*4096}')
        a(f's_add_u32 s{B}, s{B}, s{S_LW}')
        a(f's_add_u32 s{B}, s{B}, {WS_X}')
        for t in (1, 2, 3):
            d = S_SEND + t
            a(f's_xor_b32 s{d}, s{S_HG}, {t}')
            a(f's_mul_i32 s{d}, s{d}, {3*16384}')
            a(f's_add_u32 s{d}, s{d}, s{B}')
            a(f's_add_u32 s{d}, s{d}, {(t-1)*16384}')
        a('s_mov_b32 s10, 0x9e3779b1')
        a(f'v_mul_lo_u32 v3, v{L_TAG}, s10')
        a(f'v_xor_b32 v3, v3, v{L_TAG+1}')
        a('v_and_b32 v4, 1, v2')
        a('v_cmp_eq_u32 vcc, 0, v4')
        a(f'v_add_u32 v5, s{S_LW}, v{V_L16}')
        a('s_nop 0')
        a(f'v_cndmask_b32 v3, v3, v{L_TAG}, vcc')
        for t in (1, 2, 3):
            for x in range(3): a(f'v_mov_b32 v{64+12*t+4*x+3}, v3')
        for t in (1, 2, 3):
            a('s_barrier')
            for q in range(4):
                a(f'ds_read_b128 {vr(48+4*q,4)}, v5 offset:{(t-1)*16384+1024*q}')
            b = 64 + 12*t
            for i in range(8):
                if i % 2 == 0: a(f's_waitcnt lgkmcnt({3-i//2})')
                a(f'v_cvt_pk_bf16_f32 v{b+4*(i//3)+i%3}, v{48+2*i}, v{48+2*i+1}')
                if i in (2, 5, 7):
                    a(f'buffer_store_dwordx4 {vr(b+4*(i//3),4)}, v{V_L16}, s[{SRD_WS}:{SRD_WS+3}], s{S_SEND+t} offen offset:{1024*(i//3)} {c.xst}')
        a('s_endpgm')

    if c.calign: a.raw(f'.p2align {c.calign}')
    a.label('COMPUTE')
    for _ in range(c.cpad): a('s_nop 0')
    a('s_memrealtime s[42:43]')
    if c.cprio: a(f's_setprio {c.cprio}')
    a(f's_mov_b32 s{S_W}, s{S_WID}')
    a(f's_lshl_b32 s{S_B}, s{S_MT}, 2')
    a(f's_add_u32 s{S_B}, s{S_B}, s{S_W}')
    T = ACC
    a('s_waitcnt lgkmcnt(0)')
    a(f's_lshl_b32 s{S_LW}, s{S_W}, 12')
    a(f'v_and_b32 v{T}, 15, v2')
    a(f'v_lshrrev_b32 v{T+1}, 4, v2')
    a(f'v_lshrrev_b32 v{T+2}, 1, v{T}')
    a(f'v_lshlrev_b32 v{T+3}, 7, v{T}')
    a(f'v_add_u32 v{T+3}, s{S_LW}, v{T+3}')
    a(f'v_xor_b32 v{T+4}, v{T+2}, v{T+1}')
    a(f'v_lshl_add_u32 v{V_RA}, v{T+4}, 4, v{T+3}')
    a(f'v_xor_b32 v{V_RA+1}, 64, v{V_RA}')
    a(f'v_lshrrev_b32 v{T+4}, 1, v{T+1}')
    a(f'v_xor_b32 v{T+4}, v{T+4}, v{T+2}')
    a(f'v_lshl_add_u32 v{T+4}, v{T+4}, 4, v{T+3}')
    a(f'v_and_b32 v{T+5}, 1, v{T+1}')
    a(f'v_lshl_add_u32 v{T+4}, v{T+5}, 3, v{T+4}')
    a(f'v_add_u32 v{V_SP}, {AUX}, v{T+4}')
    def rt_setup(phase, T):
        L = []
        L.append(f'v_bfe_u32 v{T}, v2, 2, 2')
        L.append(f'v_bfe_u32 v{T+1}, v2, 4, 1')
        L.append(f'v_lshrrev_b32 v{T+2}, 5, v2')
        L.append(f'v_and_b32 v{T+3}, 3, v2')
        L.append(f'v_mul_u32_u24 v{T+1}, 2080, v{T+1}')
        L.append(f'v_mul_u32_u24 v{T+2}, {WBLK}, v{T+2}')
        L.append(f'v_add3_u32 v{T+4}, v{T+1}, v{T+2}, 0')
        L.append(f'v_lshl_add_u32 v{T+4}, v{T}, 8, v{T+4}')
        L.append(f'v_lshl_add_u32 v{T+4}, v{T+3}, 3, v{T+4}')
        L.append(f'v_add_u32 v{T+4}, {WT0}, v{T+4}')
        for t in range(4):
            if phase == 1:
                L.append(f'v_xor_b32 v{T+5}, {t}, v{T}')
            else:
                L.append(f's_add_u32 s10, s{S_HG}, {t}')
                L.append('s_and_b32 s10, s10, 3')
                L.append(f'v_xor_b32 v{T+5}, s10, v{T}')
            L.append(f'v_lshl_add_u32 v{V_RT+t}, v{T+5}, 6, v{T+4}')
        return L
    for l in rt_setup(1, T): a(l)
    srd(SRD_WS, 40, WS_BYTES)
    srd(SRD_OUT, 36, 2 << 20)
    srd(SRD_DBG, 38, 256)
    a(f's_or_b32 s13, s2, s{S_W}')
    a('s_cmp_lg_u32 s13, 0')
    a('s_cbranch_scc1 NOTAG')
    a(f'v_mov_b32 v{T}, s42')
    a(f'v_mov_b32 v{T+1}, s43')
    a(f'buffer_store_dwordx2 v[{T}:{T+1}], off, s[{SRD_DBG}:{SRD_DBG+3}], 0 sc0 sc1')
    a.label('NOTAG')
    cc = (128 ** -0.5) * math.log2(math.e)
    cbits = struct.unpack('<I', struct.pack('<f', cc))[0]
    a(f's_mov_b32 s{S_TMP+4}, {hex(cbits)}')
    a(f's_lshl_b32 s{S_TMP}, s{S_BR}, 4')
    a(f's_add_u32 s{S_TMP}, s{S_TMP}, s{S_B}')
    a(f's_lshl_b32 s{S_TMP+1}, s{S_TMP}, 2')
    a(f's_add_u32 s{S_TMP+1}, s{S_TMP+1}, s{S_HG}')
    a(f's_lshl_b32 s{S_TMP+1}, s{S_TMP+1}, 4')
    a(f's_add_u32 s{S_TMP+1}, s{S_TMP+1}, s{S_J8}')
    a(f's_lshl_b32 s{S_TMP+1}, s{S_TMP+1}, 3')
    a(f's_add_u32 s{S_TMP+1}, s{S_TMP+1}, {WS_FLAG}')
    a(f's_lshl_b32 s{S_TMP}, s{S_TMP}, 5')
    a(f's_add_u32 s{S_TMP}, s{S_TMP}, s{S_HEAD}')
    a(f's_lshl_b32 s{S_TMP}, s{S_TMP}, 11')
    a(f's_mul_i32 s{S_TMP+2}, s{S_W}, 6144')
    a(f's_add_u32 s{S_TMP+2}, s{S_TMP+2}, {AUX}')
    tail_salu(a)
    stamp(1)
    phase1(a, c, stamp)
    softmax(a, c, stamp, rt_setup)
    phase2(a, c, stamp)
    if c.leak >= 0:
        if c.leakj >= 0:
            a(f's_and_b32 s76, s{S_J8}, 3')
            a(f's_cmp_lg_u32 s76, {c.leakj}')
            a('s_cbranch_scc1 K_END')
        a.label('LEAKL')
        a('s_memrealtime s[76:77]')
        a('s_waitcnt lgkmcnt(0)')
        a('s_sub_u32 s76, s76, s80')
        a('s_cmp_lt_u32 s76, 3000')
        a('s_cbranch_scc1 LEAKL')
    if c.padto:
        a.label('PADL')
        a('s_memrealtime s[76:77]')
        a('s_waitcnt lgkmcnt(0)')
        a(f's_sub_u32 s76, s76, s{S_T0}')
        a(f's_cmp_lt_u32 s76, {c.padto}')
        a('s_cbranch_scc1 PADL')
    if c.stamps:
        n = 11
        a('s_waitcnt vmcnt(0) lgkmcnt(0)')
        stamp(n - 1)
        a('s_waitcnt lgkmcnt(0)')
        a(f's_cmp_lg_u32 s{S_WID}, 0')
        a('s_cbranch_scc1 K_END')
        a('s_mov_b32 s76, s40')
        a('s_mov_b32 s77, s41')
        a('s_mov_b32 s78, 0x10000000')
        a('s_mov_b32 s79, 0x00020000')
        a('s_lshl_b32 s75, s2, 7')
        a(f's_add_u32 s75, s75, {128<<20}')
        a('v_mov_b32 v3, 0')
        for i in range(n):
            a(f'v_mov_b32 v4, s{80+2*i}')
            a(f'v_mov_b32 v5, s{81+2*i}')
            a(f'buffer_store_dwordx2 v[4:5], v3, s[76:79], s75 offen offset:{8*i}')
            a('s_nop 1')
    a.label('K_END')
    a('s_endpgm')
    return a.text()

PF = VWB + 48
ACC_TAGT = VWB + 32

def spin(a, c, name, rd, test):
    a(f's_mov_b32 s{S_CNT}, {c.lspin}')
    a.label(name)
    a(rd)
    a(f's_sub_u32 s{S_CNT}, s{S_CNT}, 1')
    a('s_cbranch_scc1 K_END')
    a('s_waitcnt lgkmcnt(0)')
    a(test)
    a(f's_cbranch_vccnz {name}')
def flagread(kind):
    return f'ds_read_b32 v{V_FL}, v{V_CB}' + ('' if kind == 'F' else f' offset:{CB_PRDY-CB_FULL}')
def flagtest(kind, g):
    return f'v_cmp_ge_u32 vcc, {g}, v{V_FL}' if kind == 'F' else f'v_cmp_eq_u32 vcc, 0, v{V_FL}'

NBAR = [0]
class Sched:
    def __init__(s, a, c):
        s.a, s.c = a, c
        s.M = []; s.L = []; s.V = []
        s.lastuse = {}
        s.wn = 0; s.an = 0
    def m(s, ins, needs=(), uses=(), vneed=(), post=None):
        for r in uses: s.lastuse[r] = len(s.M)
        s.M.append(dict(ins=ins, needs=list(needs), vneed=list(vneed), post=post))
        return len(s.M) - 1
    def load(s, instrs, tag, reg, first, gate=None, rel=None, vreq=None, depth=None):
        after = -1
        for r in (reg if isinstance(reg, (list, tuple)) else [reg]):
            after = max(after, s.lastuse.get(r, -1))
        d = s.c.depth if depth is None else depth
        for it in instrs:
            s.L.append(dict(it=it, tag=tag, after=max(after + 1, first - d), first=first, gate=gate, rel=rel, vreq=vreq))
    def valu(s, instrs, after, group=None):
        for i in instrs: s.V.append(dict(ins=i, after=after, group=group))
    def run(s, nbar, pure, last_bar, stamps={}):
        a, c = s.a, s.c
        s.L.sort(key=lambda e: e['first'])
        s.V.sort(key=lambda e: e['after'])
        Q = list(s.L)
        issued = []; done = [0]; itime = []
        relcount = {}
        for e in Q:
            if e['rel'] is not None: relcount[e['rel']] = relcount.get(e['rel'], 0) + 1
        relpos = {}; rdy = {}
        nm = [0]
        V = s.V
        def need(tags):
            if not tags: return
            for t in tags:
                if any(e['tag'] == t for e in Q):
                    while any(e['tag'] == t for e in Q):
                        assert pump(1, True), ('stuck', t, Q[0])
            idx = max(i for i, t in enumerate(issued) if t in tags) + 1
            if idx > done[0]:
                while idx < len(issued) and nm[0] - itime[idx] >= c.minage: idx += 1
                n = min(14, len(issued) - idx)
                a(f's_waitcnt lgkmcnt({n})')
                done[0] = len(issued) - n
        def pump(k, force=False):
            n = 0
            while n < k and Q:
                e = Q[0]
                if e['after'] > nm[0]:
                    if not (force and e['after'] - nm[0] <= 0): break
                if e['vreq'] is not None and any(v['group'] == e['vreq'] for v in V): break
                if e['gate'] is not None and e['gate'][1] >= nbar[0]:
                    b = nbar[0] - 2
                    if b in pure:
                        a('s_barrier'); nbar[0] += 1
                        continue
                    assert not force, ('gate', e, nbar)
                    break
                Q.pop(0)
                for l in e['it']: a(l)
                issued.append(e['tag']); itime.append(nm[0])
                if e['rel'] is not None:
                    relcount[e['rel']] -= 1; relpos[e['rel']] = len(issued)
                n += len(e['it'])
            return n
        def fill(k):
            n = 0
            while n < k and V and V[0]['after'] <= nm[0]:
                a(V.pop(0)['ins']); n += 1
            return n
        pump(99)
        for i, m in enumerate(s.M):
            flushed = False
            for g in m['vneed']:
                while any(v['group'] == g for v in V):
                    assert V[0]['after'] <= nm[0], ('valu not ready', i, g, V[0])
                    a(V.pop(0)['ins']); flushed = True
            need(m['needs'])
            src = set()
            for lo, hi in re.findall(r'v\[(\d+):(\d+)\]', m['ins'].split(',', 1)[1]): src |= set(range(int(lo), int(hi) + 1))
            for back, l in enumerate(reversed(a.lines[-2:])):
                mm = re.match(r'\s*v_(?!mfma)\w+ v(\d+),', l)
                if mm and int(mm.group(1)) in src:
                    a(f's_nop {1 - back}'); break
            a(m['ins']); nm[0] += 1
            if i in stamps: stamps[i]()
            b = nbar[0] - 2
            if 30 <= b <= last_bar and relcount.get(b, 0) == 0 and nm[0] - itime[relpos[b] - 1] >= c.hwait: need([f'H{b-29}'])
            if b not in pure and b <= last_bar and relcount.get(b, 0) == 0 and relpos.get(b, 0) <= done[0]:
                rdy.setdefault(b, nm[0])
                bd = c.bd1 if b < 14 else (c.bd2 if (16 <= b < 26 and b != 20) else 0)
                if nm[0] >= rdy[b] + bd:
                    a('s_barrier'); nbar[0] += 1
            urgent = Q and Q[0]['first'] - nm[0] <= c.urgent
            if last_bar < 16 and c.ra * 32 <= i < c.rb * 32: urgent = True
            n = pump(2 if urgent else 1)
            fill((m['post'] or c.vslots) - (c.vslots - c.vwith) * min(n, 1))
        assert not Q, Q[0]
        assert nbar[0] - 2 > last_bar, nbar
        return V

def wt_items(j, kk, t, e, d):
    return [[f'ds_read_b64_tr_b16 {ar(d+2*u,2)}, v{V_RT+t} offset:{(j%4)*WSLOT+kk*2*WBLK+u*1024+e*32}'] for u in range(2)]
def act_item(j, kk, ai, dst):
    return [[f'ds_read_b128 {dst}, v{V_RA+kk} offset:{(j%4)*16384+ai*2048}']]
def p_items(u, d):
    return [[f'ds_read_b128 {ar(d+4*G,4)}, v{V_SP} offset:{((u-1)%3)*2048+1024*G}'] for G in range(2)]

def gemm_stage(S, j, gate):
    lastw = {}
    dd = S.c.d0 if j < S.c.dn else None
    for kk in range(2):
        aslot = [AA + 4*((S.an + x) % 3) for x in range(2)]; S.an += 2
        for h in range(2):
            base = len(S.M)
            if h == 0:
                for ai in range(2):
                    S.load(act_item(j, kk, ai, ar(aslot[ai], 4)), f'A{j}_{kk}_{ai}', aslot[ai], base + 4*ai - 0.5, gate, j, depth=dd)
            fr = []
            for w4 in range(4):
                t, e = 2*h + w4 // 2, w4 % 2
                d = AW + 4*(S.wn % 8); S.wn += 1
                S.load(wt_items(j, kk, t, e, d), f'W{j}_{kk}_{t}_{e}', d, base + w4, gate, j, depth=dd)
                fr.append((t, e, d))
            for ai in range(2):
                for (t, e, d) in fr:
                    r = ACC + 16*t + 8*e + 4*ai
                    first = kk == 0 and (j == 0 or (j >= 16 and j % 2 == 0))
                    ops = f'{ar(d,4)}, {ar(aslot[ai],4)}' if j < 16 else f'{ar(aslot[ai],4)}, {ar(d,4)}'
                    vn = [f'cv{(j-16)//2-1}_{t}_{e}'] if (first and j >= 18) else []
                    lastw[(t, e, ai)] = S.m(f'{MF} {vr(r,4)}, {ops}, ' + ('0' if first else vr(r, 4)),
                                            needs=[f'W{j}_{kk}_{t}_{e}', f'A{j}_{kk}_{ai}'], uses=[d, aslot[ai]], vneed=vn)
    return lastw

def phase1(a, c, stamp):
    a('s_barrier'); NBAR[0] = 1
    stamp(2)
    S = Sched(a, c)
    st = {}
    for j in range(16):
        kj = (0, 6) if c.kearly else (5, 13)
        if j in kj:
            hf = kj.index(j)
            base = len(S.M) + (12 if j == 0 else 0)
            n = 0
            for Tp in range(2):
                for e in range(2):
                    it = []
                    for ki in range(2):
                        x = [f'v_xor_b32 v{V_T3}, {(4*Tp+2*e)<<4}, v{V_SP}'] if ki == 0 else []
                        it.append(x + [f'ds_read_b64 {ar(AK+8*(2*hf+Tp)+4*ki+2*e,2)}, v{V_T3} offset:{2048*ki}'])
                    S.load(it, f'K{hf}_{Tp}_{e}', 'none', base + 12.7 + (1 if j == 0 else 4)*n, ('F', max(j, 1)), j, depth=8)
                    n += 1
        if j == 8: st[len(S.M)] = lambda: stamp(3)
        if c.fine >= 0 and 0 <= j - c.fine < 9: st[len(S.M)] = (lambda jj: lambda: stamp(jj - c.fine + 1, True))(j)
        gemm_stage(S, j, ('F', j))
    V = S.run(NBAR, {-1}, c.p1last, st)
    assert not V

def red2(a, op, x0, x1, t0, t1):
    for sw in ('v_permlane32_swap_b32', 'v_permlane16_swap_b32'):
        a(f'v_mov_b32 v{t0}, v{x0}')
        a(f'v_mov_b32 v{t1}, v{x1}')
        a('s_nop 0')
        a(f'{sw} v{x0}, v{t0}')
        a(f'{sw} v{x1}, v{t1}')
        a('s_nop 0')
        a(f'{op} v{x0}, v{x0}, v{t0}')
        a(f'{op} v{x1}, v{x1}, v{t1}')

def softmax(a, c, stamp, rt_setup):
    QF = VWB; S = VWB + 32
    stamp(4)
    a(f'v_mov_b32 v{V_T3}, {CB_TAG}')
    a(f'ds_read_b64 v[{VWB+56}:{VWB+57}], v{V_T3}')
    def qcv(t):
        L = []
        for ai in range(2):
            for e in range(2):
                for x in range(2):
                    r = ACC + 16*t + 8*e + 4*ai + 2*x
                    L.append(f'v_cvt_pk_bf16_f32 v{QF+8*t+4*ai+2*e+x}, v{r}, v{r+1}')
        return L
    for l in qcv(0) + qcv(1): a(l)
    for t in range(4):
        rest = qcv(t + 2) if t < 2 else []
        for mi in range(2):
            for ki in range(2):
                d = vr(S + 8*mi + 4*ki, 4)
                a(f'{MF} {d}, {ar(AK+8*t+4*ki,4)}, {vr(QF+8*t+4*mi,4)}, ' + ('0' if t == 0 else d))
                for l in rest[:2]: a(l)
                rest = rest[2:]
    a('s_waitcnt lgkmcnt(0)')
    if NBAR[0] == 16 and c.b16 == 'mid':
        a('s_barrier'); NBAR[0] += 1
    a(f'v_readfirstlane_b32 s{S_T0}, v{VWB+56}')
    a(f'v_readfirstlane_b32 s{S_T0+1}, v{VWB+57}')
    a(f's_bitcmp1_b32 s{S_HG}, 0')
    a('s_cbranch_scc0 RS0')
    a(f'v_swap_b32 v{V_RT}, v{V_RT+1}')
    a(f'v_swap_b32 v{V_RT+2}, v{V_RT+3}')
    a.label('RS0')
    a(f's_bitcmp1_b32 s{S_HG}, 1')
    a('s_cbranch_scc0 RS1')
    a(f'v_swap_b32 v{V_RT}, v{V_RT+2}')
    a(f'v_swap_b32 v{V_RT+1}, v{V_RT+3}')
    a.label('RS1')
    a('s_nop 1')
    x = [ACC, ACC + 1]; t0, t1 = ACC + 2, ACC + 3
    for mi in range(2): a(f'v_max3_f32 v{x[mi]}, v{S+8*mi}, v{S+8*mi+1}, v{S+8*mi+2}')
    for mi in range(2): a(f'v_max3_f32 v{x[mi]}, v{x[mi]}, v{S+8*mi+3}, v{S+8*mi+4}')
    for mi in range(2): a(f'v_max3_f32 v{x[mi]}, v{x[mi]}, v{S+8*mi+5}, v{S+8*mi+6}')
    for mi in range(2): a(f'v_max_f32 v{x[mi]}, v{x[mi]}, v{S+8*mi+7}')
    red2(a, 'v_max_f32', x[0], x[1], t0, t1)
    for mi in range(2): a(f'v_mul_f32 v{x[mi]}, s{S_TMP+4}, v{x[mi]}')
    for i in range(16):
        a(f'v_fma_f32 v{S+i}, v{S+i}, s{S_TMP+4}, -v{x[i//8]}')
    for i in range(16):
        a(f'v_exp_f32 v{S+i}, v{S+i}')
    for mi in range(2): a(f'v_add_f32 v{x[mi]}, v{S+8*mi}, v{S+8*mi+1}')
    for i in range(2, 8):
        for mi in range(2): a(f'v_add_f32 v{x[mi]}, v{x[mi]}, v{S+8*mi+i}')
    red2(a, 'v_add_f32', x[0], x[1], t0, t1)
    for mi in range(2): a(f'v_rcp_f32 v{x[mi]}, v{x[mi]}')
    a('s_nop 0')
    for i in range(16):
        a(f'v_mul_f32 v{S+i}, v{S+i}, v{x[i//8]}')
    for i in range(8):
        a(f'v_cvt_pk_bf16_f32 v{PF+i}, v{S+2*i}, v{S+2*i+1}')
    for G in range(2):
        a(f'buffer_store_dwordx4 {vr(PF+4*G,4)}, v{V_L16}, s[{SRD_WS}:{SRD_WS+3}], s{S_TMP} offen offset:{1024*G} sc0 sc1')
    a(f'v_add_u32 v{V_SP}, s{S_TMP+2}, v{V_L16}')
    a(f's_mul_i32 s{S_TG2}, s{S_T0}, 0x9e3779b1')
    a(f's_xor_b32 s{S_TG2}, s{S_TG2}, s{S_T0+1}')
    while NBAR[0] < (17 if c.b16 != 'late' else 17):
        a('s_barrier'); NBAR[0] += 1

S_SEND = 21
S_RCV = 25
S_OUTO = 29
S_TG2 = 18
def tail_salu(a):
    B = 19
    a(f's_lshl_b32 s{B}, s{S_BR}, 2')
    a(f's_add_u32 s{B}, s{B}, s{S_MT}')
    a(f's_lshl_b32 s{B}, s{B}, 3')
    a(f's_add_u32 s{B}, s{B}, s{S_NT}')
    a(f's_mul_i32 s{B}, s{B}, {4*3*4*4096}')
    a(f's_add_u32 s{B}, s{B}, s{S_LW}')
    a(f's_add_u32 s{B}, s{B}, {WS_X}')
    for t in (1, 2, 3):
        d = S_SEND + t
        a(f's_xor_b32 s{d}, s{S_HG}, {t}')
        a(f's_mul_i32 s{d}, s{d}, {3*16384}')
        a(f's_add_u32 s{d}, s{d}, s{B}')
        a(f's_add_u32 s{d}, s{d}, {(t-1)*16384}')
    a(f's_mul_i32 s{S_RCV}, s{S_HG}, {3*16384}')
    a(f's_add_u32 s{S_RCV}, s{S_RCV}, s{B}')
    a(f's_add_u32 s{S_RCV+1}, s{S_RCV}, 16384')
    a(f's_add_u32 s28, s{S_RCV}, 32768')
    a(f's_lshl_b32 s{S_OUTO}, s{S_B}, 17')
    a(f's_lshl_b32 s11, s{S_BR}, 11')
    a(f's_add_u32 s{S_OUTO}, s{S_OUTO}, s11')
    a(f's_lshl_b32 s11, s{S_NT}, 8')
    a(f's_add_u32 s{S_OUTO}, s{S_OUTO}, s11')
    a(f's_lshl_b32 s11, s{S_HG}, 6')
    a(f's_add_u32 s{S_OUTO}, s{S_OUTO}, s11')

JOBS = [(1, 6), (2, 6), (1, 7), (2, 7), (3, 6), (3, 7), (0, 6), (0, 7)]
HZ = 6

def phase2(a, c, stamp):
    stamp(5)
    S = Sched(a, c)
    st = {}
    def pstage(u, preg, ptag, tiles=(1, 2, 3, 0)):
        last = {}
        for t in tiles:
            for e in range(2):
                for qi in range(2):
                    o = ar(AO + 16*t + 8*e + 4*qi, 4)
                    p = vr(PF + 4*qi, 4) if u == 0 else ar(preg + 4*qi, 4)
                    last[t] = S.m(f'{MF} {o}, {vr(VWB+32*(u%2)+8*t+4*e,4)}, {p}, ' + ('0' if u == 0 else o),
                                  needs=[ptag] if ptag else [], uses=[preg, preg + 4] if u else [], vneed=[f'cv{u}_{t}_{e}'])
        return last
    for j in range(16, 28):
        u = (j - 16) // 2
        base = len(S.M)
        if j == 24: st[base] = lambda: stamp(6)
        if c.fine >= 0 and 0 <= j - c.fine < 9: st[base] = (lambda jj: lambda: stamp(jj - c.fine + 1, True))(j)
        if j == 22 and c.pg == 25:
            S.load(p_items(1, AP), 'P1', [AP, AP + 4], base + 31.5, ('F', 24), 23, depth=6)
        if j >= 21 and j % 2 == 1 and not (j == 21 and c.pg == 25):
            if j == 21 and c.pg == 24:
                S.load(p_items(u - 1, AP), f'P{u-1}', [AP, AP + 4], base + 31.5, ('F', 23), 22, depth=6)
            else:
                S.load(p_items(u - 1, AP), f'P{u-1}', [AP, AP + 4], base + 12.7, ('F', c.pg - 1) if j == 21 else ('F', j), j, depth=6)
        if j == 16:
            S.valu(['s_waitcnt vmcnt(0)', f'v_mov_b32 v{ACC_TAGT}, s{S_T0}', f'v_mov_b32 v{ACC_TAGT+1}, s{S_T0+1}',
                    f'buffer_store_dwordx2 v[{ACC_TAGT}:{ACC_TAGT+1}], off, s[{SRD_WS}:{SRD_WS+3}], s{S_TMP+1} sc0 sc1'], base + c.pubat)
        lw = gemm_stage(S, j, ('F', j))
        if j % 2 == 1:
            for t in range(4):
                for e in range(2):
                    r = ACC + 16*t + 8*e; d = VWB + 32*(u % 2) + 8*t + 4*e
                    S.valu([f'v_cvt_pk_bf16_f32 v{d+i}, v{r+2*i}, v{r+2*i+1}' for i in range(4)], lw[(t, e, 1)] + HZ, f'cv{u}_{t}_{e}')
            if u >= 2 and not (u == 2 and c.pg == 25): pstage(u - 1, AP, f'P{u-1}')
        if j == 18: pstage(0, None, None)
        if j == 22 and c.pg == 25: pstage(1, AP, 'P1')
    st[len(S.M)] = lambda: stamp(7)
    ACCB = [VWB, VWB + 16, VWB + 32]
    SB = VWB + 48; TMP = VWB + 60
    TGV = V_CB
    PB = AA
    S.load(p_items(5, PB), 'P5', [AA, AA + 4, AA + 8], len(S.M), ('F', 27), None)
    pstage(5, PB, 'P5')
    p5end = len(S.M)
    PFR = {6: AP, 7: PB}
    seenv = set(); seenp = set()
    pend = None
    def send(t):
        L = []
        for i in range(8):
            x, y = TMP + (2*i) % 4, TMP + (2*i+1) % 4
            L.append(f'v_accvgpr_read_b32 v{x}, a{AO+16*t+2*i}')
            L.append(f'v_accvgpr_read_b32 v{y}, a{AO+16*t+2*i+1}')
            L.append(f'v_cvt_pk_bf16_f32 v{SB+4*(i//3)+i%3}, v{x}, v{y}')
            if i in (2, 5, 7):
                L.append(f'buffer_store_dwordx4 {vr(SB+4*(i//3),4)}, v{V_L16}, s[{SRD_WS}:{SRD_WS+3}], s{S_SEND+t} offen offset:{1024*(i//3)} {c.xst}')
        return L
    def cvj(k, e):
        b = ACCB[k % 3] + 8*e
        return [f'v_cvt_pk_bf16_f32 v{b+i}, v{b+2*i}, v{b+2*i+1}' for i in range(4)]
    def pmf_ins(k):
        t, u = JOBS[k]; L = []
        for e in range(2):
            for qi in range(2):
                o = ar(AO + 16*t + 8*e + 4*qi, 4)
                L.append((e, f'{MF} {o}, {vr(ACCB[k%3]+8*e,4)}, {ar(PFR[u]+4*qi,4)}, {o}'))
        return L
    def pmf(k):
        t, u = JOBS[k]
        for e, ins in pmf_ins(k):
            i = S.m(ins, needs=[f'P{u}'], uses=[PFR[u], PFR[u] + 4], vneed=[f'cj{k}_{e}'], post=c.frate)
        if u == 7:
            if c.lsend:
                it = [[f'ds_write_b128 v{V_FL}, {ar(AO+16*t+4*q,4)} offset:{(t-1)*16384+1024*q}'] for q in range(4)]
                for q, x in enumerate(it):
                    S.L.append(dict(it=x, tag=f'H{t}', after=i - 3 + q + c.hz2, first=i - 3 + c.hz2 + c.fdepth - 0.3, gate=None, rel=29 + t, vreq=None))
            else: S.valu(send(t), i + HZ, f'send{t}')
    R = [ACC, ACC + 12, ACC + 24]
    def rreg(k, qx):
        if k == 2 and qx == 2: return SB
        return R[k] + 4*qx
    RCV = [S_RCV, S_RCV + 1, 28]
    def rloads(ks):
        return [f'buffer_load_dwordx4 {vr(rreg(k,qx),4)}, v{V_L16}, s[{SRD_WS}:{SRD_WS+3}], s{RCV[k]} offen offset:{1024*qx} {c.xld}' for k in ks for qx in range(3)]
    tagset = False
    for k, (t, u) in enumerate(JOBS):
        lw = {}
        if c.fine == 99: st[len(S.M)] = (lambda kk: lambda: stamp(kk + 1, True))(k)
        for k4 in range(4):
            j = 16 + 2*u + k4 // 2; kk = k4 % 2
            base = len(S.M)
            vreg = [ACC + 32*(u-6) + 8*k4 + 4*ki for ki in range(2)]
            if (u, k4) not in seenv:
                seenv.add((u, k4))
                for ki in range(2):
                    tt, ee = divmod((vreg[ki] - ACC) // 8, 2)
                    S.load(act_item(j, kk, ki, vr(vreg[ki], 4)), f'V{u}_{k4}_{ki}', 'none', base + ki - 0.5, ('F', j), None, vreq=f'cv5_{tt}_{ee}', depth=c.fdepth)
            fr = []
            for e in range(2):
                d = AW + 4*(S.wn % 8); S.wn += 1
                S.load(wt_items(j, kk, t, e, d), f'X{k}_{k4}_{e}', d, base + 2*e, ('F', j), None, depth=c.fdepth)
                fr.append(d)
            if k4 == 3 and u not in seenp:
                seenp.add(u)
                S.load(p_items(u, PFR[u]), f'P{u}', [PFR[u], PFR[u] + 4], base + 3.5, ('F', j), None, depth=c.fdepth)
            for e in range(2):
                for ki in range(2):
                    r = vr(ACCB[k % 3] + 8*e + 4*ki, 4)
                    lw[e] = S.m(f'{MF} {r}, {vr(vreg[ki],4)}, {ar(fr[e],4)}, ' + ('0' if k4 == 0 else r),
                                needs=[f'X{k}_{k4}_{e}', f'V{u}_{k4}_{ki}'], uses=[fr[e]], post=c.frate)
            if k4 == 1 and k > 0: pmf(k - 1)
            if u == 7 and k4 == 3 and not tagset:
                tagset = True
                S.valu([f'v_and_b32 v{V_T3}, 1, v{V_LANE}', f'v_cmp_eq_u32 vcc, 0, v{V_T3}', f'v_mov_b32 v{V_T3}, s{S_TG2}',
                        f'v_mov_b32 v{V_FL}, s{S_T0}', f'v_cndmask_b32 v{TGV}, v{V_T3}, v{V_FL}, vcc'] +
                       ([f'v_add_u32 v{V_FL}, s{S_LW}, v{V_L16}'] if c.lsend else [f'v_mov_b32 v{SB+4*x+3}, v{TGV}' for x in range(3)]), len(S.M) - 3)
            if k == 7 and k4 == c.rcv_k4:
                S.valu(rloads((0, 1)), len(S.M) - 2)
        if k < 7:
            for e in range(2): S.valu(cvj(k, e), lw[e] + HZ - 0.5, f'cj{k}_{e}')
    V = S.run(NBAR, {28, 29}, 32 if c.lsend else 27, st)
    assert NBAR[0] == (35 if c.lsend else 32), NBAR
    for v in V: a(v['ins'])
    VO = V_RA
    a(f'v_and_b32 v{VO}, 15, v{V_LANE}')
    a(f'v_lshlrev_b32 v{VO}, 12, v{VO}')
    a(f'v_bfe_u32 v{V_T3}, v{V_LANE}, 4, 1')
    a(f'v_lshl_add_u32 v{VO}, v{V_T3}, 5, v{VO}')
    a(f'v_lshrrev_b32 v{V_T3}, 5, v{V_LANE}')
    a(f'v_lshl_add_u32 v{VO}, v{V_T3}, 4, v{VO}')
    a(f's_mov_b32 s{S_TMP+3}, {c.spin}')
    a(f's_mov_b32 s{S_TMP+4}, 0xffff0000')
    a(f's_add_u32 s{S_TMP+5}, s{S_OUTO}, 65536')
    for e in range(2):
        for l in cvj(7, e): a(l)
    for l in rloads((2,)): a(l)
    for e, ins in pmf_ins(7): a(ins)
    stamp(8)
    if c.fine == 99: stamp(9, True)
    O = ACCB[2]
    XT = V_RT
    def check(k, first_wait):
        a(f's_waitcnt vmcnt({first_wait})')
        a(f's_branch XC{k}')
        a.label(f'XR{k}')
        a(f's_sub_u32 s{S_TMP+3}, s{S_TMP+3}, 1')
        a('s_cbranch_scc1 K_END')
        if c.xsleep: a(f's_sleep {c.xsleep}')
        for l in rloads((k,)): a(l)
        a('s_waitcnt vmcnt(0)')
        a.label(f'XC{k}')
        tg = [rreg(k, qx) + 3 for qx in range(3)]
        for i, r in enumerate(tg):
            a(f'v_xor_b32 v{XT+i}, v{r}, v{TGV}')
        a(f'v_or3_b32 v0, v{XT}, v{XT+1}, v{XT+2}')
        a('v_cmp_ne_u32 vcc, 0, v0')
        a(f's_cbranch_vccnz XR{k}')
    def acc(k, first):
        for i in range(8):
            d = rreg(k, i // 3) + i % 3
            if first:
                a(f'v_lshlrev_b32 v{O+2*i}, 16, v{d}')
                a(f'v_and_b32 v{O+2*i+1}, s{S_TMP+4}, v{d}')
            else:
                a(f'v_lshlrev_b32 v{XT+(2*i)%4}, 16, v{d}')
                a(f'v_and_b32 v{XT+(2*i+1)%4}, s{S_TMP+4}, v{d}')
                a(f'v_add_f32 v{O+2*i}, v{O+2*i}, v{XT+(2*i)%4}')
                a(f'v_add_f32 v{O+2*i+1}, v{O+2*i+1}, v{XT+(2*i+1)%4}')
    check(0, 6); acc(0, True)
    check(1, 3); acc(1, False)
    for r in range(16):
        a(f'v_accvgpr_read_b32 v{XT+r%4}, a{AO+r}')
        a(f'v_add_f32 v{O+r}, v{O+r}, v{XT+r%4}')
    check(2, 0)
    stamp(9)
    acc(2, False)
    F = ACCB[0]
    for e in range(2):
        for qi in range(2):
            for x in range(2):
                r = O + 8*e + 4*qi + 2*x
                a(f'v_cvt_pk_bf16_f32 v{F+4*qi+2*e+x}, v{r}, v{r+1}')
    a('s_nop 1')
    for qi in range(2):
        for x in range(2):
            a(f'v_permlane16_swap_b32 v{F+4*qi+x}, v{F+4*qi+2+x}')
    a('s_nop 1')
    a(f'buffer_store_dwordx4 {vr(F,4)}, v{VO}, s[{SRD_OUT}:{SRD_OUT+3}], s{S_OUTO} offen {c.ost}')
    a(f'buffer_store_dwordx4 {vr(F+4,4)}, v{VO}, s[{SRD_OUT}:{SRD_OUT+3}], s{S_TMP+5} offen {c.ost}')

DOC = """;
; One fused kernel, 256 workgroups (one per CU), 8 waves each: waves 0-3 compute, waves 4-7 stream tiles into LDS.
; Workgroup (branch, head group hg, 4-batch block mt, j8):
;   phase 1: q^T = Wq^T x^T for head hg*8+j8 (128 rows x 128 cols, K=1024), S^T = K q^T, softmax (true row max),
;            P^T (bf16) -> workspace, published with a per-launch tag.
;   end    : 4-way reduce-scatter over the head groups through the workspace (bf16 partials, tagged 16-byte granules).
; The tag is chosen per launch by workgroup 0 and handed out through d_debug; all waits are bounded.
; s_barrier n certifies LDS group n and releases the ring slot of stage n-2.  (generated by a script of mine)
"""
def build(c, out):
    P2POS[:] = [int(x) for x in c.p2pos]
    pp = c.p1pos.split('_')
    if len(pp) == 1: pp = pp * 3
    P1POS[:] = [[int(x) for x in p] for p in pp]
    hdr = open('header.txt').read().splitlines()
    t = '\n'.join(hdr) + '\n'
    t += '; @launch grid=(256,1,1) block=(512,1,1) lds=163840\n'
    t += DOC
    t += '.amdgcn_target "amdgcn-amd-amdhsa--gfx950"\n.text\n'
    t += f'.globl {NAME}_kernel\n'
    out_l = []
    for l in gen(c).split('\n'):
        if c.nodma and ' lds' in l and 'sc1' not in l: continue
        if c.noread and ('ds_read_b128' in l or 'ds_read_b64_tr' in l): continue
        if c.nomfma and 'v_mfma' in l: continue
        if c.same and f's_and_b32 s{S_IDX}, s{S_IDX},' in l: l = f'    s_and_b32 s{S_IDX}, s{S_IDX}, 1'
        out_l.append(l)
    t += '\n'.join(out_l)
    t += kd(f'{NAME}_kernel', 256, 102, ACCUM_OFF)
    open(out, 'w').write(t)

if __name__ == '__main__':
    c = Cfg()
    out = sys.argv[1]
    for kv in sys.argv[2:]:
        k, v = kv.split('=', 1)
        old = getattr(c, k)
        if v == 'None': v = None
        elif isinstance(old, bool): v = v in ('1', 'True')
        elif isinstance(old, int): v = int(v)
        setattr(c, k, v)
    build(c, out)
```

```python
import sys, math, struct, re
from asmlib import *

NAME = 'concat_heads__mha_block_cached__gqa_block_cached__near_ridge'
MF = 'v_mfma_f32_16x16x32_bf16'

class Cfg:
    stamps = False; cyc = False; trace = False
    fx = ''; fw = ''; fk = ''; fv = ''; fo = ''
    xst = 'sc1'; xld = 'sc1'
    spin = 1 << 16
    lspin = 1 << 20
    cprio = 1
    early = 16
    psleep = 8
    pfirst = 22
    budget = 320
    pfv = -1
    pfo = -1
    pfo2 = -1
    xsleep = 0
    leak = -1
    fdepth = 10
    rcv_at = 61
    fdepth2 = 3
    jobs = 'b'
    frate = 3
    tlbw = -1
    tlbws = True
    p2pos = '2344'
    p1pos = '4444_4444_1234'
    vslots = 2
    mf2 = True
    mf1 = False
    d0map = '0123'
    d1map = '4567'
    bd1 = 0
    bd2 = 0
    hz2 = 5
    hwait = 4
    lsend = False
    lsat = 0
    kearly = False
    calign = 0
    cpad = 0
    lfirst = False
    ra = 0
    rb = 8
    d0 = 0
    dn = 0
    p1last = 13
    b16 = 'end'
    pg = 25
    gsw = 99
    gmode = 'static'
    leakj = -1
    rhg = 0
    rbr = 0
    jrot = 0
    fine = -1
    ost = ''
    vwith = 1
    urgent = 7
    minage = 5
    flead = 5
    pubat = 22
    rcv_k4 = 2
    depth = 12
    same = False
    vthr = 8
    pprog = 18
    slowpath = True
    nodma = False; noread = False; nomfma = False
    padto = 0
    lsleep = 1
    ctrace = False
    nofree = False
    noprog = False
    noflag = False
    lpace = 0
    fewflags = False
    progop = ''
    ex1 = True

S_XCD, S_MT, S_BR, S_HG, S_J8, S_W, S_B, S_NT, S_HEAD, S_WID = 3, 4, 5, 6, 7, 8, 9, 15, 12, 14
SRD_X, SRD_K, SRD_V, SRD_WQ, SRD_WO, SRD_WS, SRD_OUT, SRD_DBG = 44, 48, 52, 56, 60, 64, 68, 72
S_SA, S_SW, S_IDX, S_LW = 24, 25, 26, 27
S_2HD = 28; S_PD = 29
S_TMP = 30
S_T0 = 16
S_LW2 = 18
S_CNT = 20
S_NB = 21
S_TB = 22
S_TAB = 36
S_NOW = 38
V_FL = 0; V_T3 = 1
V_LANE = 2; V_CB = 3
V_RA = 4; V_RT = 6; V_L16 = 10; V_SP = 11
ACC = 12; VWB = 76
ACCUM_OFF = 140
AW = 0; AA = 32; AP = 44; AO = 52
AK = AO
L_DX, L_DWQ, L_DV, L_DWO = 16, 20, 24, 28
L_POLLA, L_POLL, L_TAG, L_THR, L_WA, L_WV, L_FA, L_TMP, L_THR2 = 32, 34, 36, 38, 39, 40, 41, 42, 43
L_PFV, L_PFO, L_JUNK = 44, 45, 46

WS_FLAG = 2 << 20
WS_X = 4 << 20
WS_BYTES = 16 << 20
WT0 = 65536; WSLOT = 16512; WBLK = 4128
WOFF = [0, 1024, 2080, 3104]
AUX = WT0 + 4*WSLOT
CB = 163840 - 2048
CB_FULL = CB + 1024; CB_PRDY = CB + 1040; CB_TAG = CB + 1056
OFFR = [0, 2, 1, 3]
NG = 32

P1POS = [[1, 2, 3, 4]] * 3
def p1_sched(mt):
    own = {0: 0}
    def ftime(r, q): return 0 if r == 0 else P1POS[r-1][q] + 4*(r-1)
    for r in (1, 2, 3): own[ftime(r, mt)] = r
    fol = sorted([(ftime(r, q), r, q) for r in range(4) for q in range(4) if q != mt], key=lambda x: (x[1], x[0]))
    L = []
    for tau in range(16):
        if tau in own: L.append((own[tau], mt, True))
        else:
            ft, r, q = fol.pop(0)
            assert ft < tau, (mt, tau, ft)
            assert r < 2 or ftime(2, mt) < tau, (mt, tau, r)
            L.append((r, q, False))
    return L
P2POS = [1, 2, 3, 4]
def p2_sched(mt):
    fol0 = [(0, q, False) for q in range(4) if q != mt]
    p = P2POS[mt]
    L = [(0, mt, True)] + fol0[:p-1] + [(1, mt, True)] + fol0[p-1:]
    L += [(1, q, False) for q in sorted(range(4), key=lambda q: P2POS[q]) if q != mt]
    return L

def gen(c):
    a = Asm()
    def stamp(i, fine=False):
        if c.fine >= 0 and not fine and 0 < i < 10: return
        if c.leak == i: a('s_memrealtime s[80:81]')
        if c.stamps: a(f'{"s_memtime" if (c.cyc and i > 0) else "s_memrealtime"} s[{80+2*i}:{81+2*i}]')
    a.raw('.p2align 8')
    a.raw(f'.type {NAME}_kernel,@function')
    a.label(f'{NAME}_kernel')
    a('s_cmp_ge_u32 s2, 256')
    a('s_cbranch_scc1 K_END')
    stamp(0)
    a('s_load_dwordx16 s[16:31], s[0:1], 0')
    a('s_load_dwordx8 s[32:39], s[0:1], 64')
    a('s_load_dwordx2 s[40:41], s[0:1], 96')
    a(f's_and_b32 s{S_XCD}, s2, 7')
    a(f's_lshr_b32 s{S_MT}, s2, 3')
    a(f's_lshr_b32 s{S_BR}, s{S_XCD}, 2')
    a(f's_and_b32 s{S_HG}, s{S_XCD}, 3')
    if c.jrot: a(f's_add_u32 s{S_J8}, s{S_MT}, {c.jrot}')
    a(f's_and_b32 s{S_J8}, s{S_J8 if c.jrot else S_MT}, 7')
    a(f's_lshr_b32 s{S_MT}, s{S_MT}, 3')
    a('v_lshrrev_b32 v1, 6, v0')
    a(f'v_and_b32 v{V_LANE}, 63, v0')
    if c.d0map == '0123':
        a(f's_sub_u32 s{S_NT}, s{S_J8}, s{S_MT}')
    else:
        pk = sum(int(x) << (4*i) for i, x in enumerate(c.d0map))
        a(f's_lshl_b32 s{S_NT}, s{S_MT}, 2')
        a(f's_lshr_b32 s{S_NT}, {hex(pk)}, s{S_NT}')
        a(f's_sub_u32 s{S_NT}, s{S_J8}, s{S_NT}')
    a(f'v_readfirstlane_b32 s{S_WID}, v1')
    a(f's_and_b32 s{S_NT}, s{S_NT}, 7')
    a(f's_lshl_b32 s{S_HEAD}, s{S_HG}, 3')
    a(f's_add_u32 s{S_HEAD}, s{S_HEAD}, s{S_J8}')
    a(f'v_lshlrev_b32 v{V_L16}, 4, v2')
    def srd_sel(d, pa, pb, nbytes):
        a(f's_cselect_b32 s{d}, s{pb}, s{pa}')
        a(f's_cselect_b32 s{d+1}, s{pb+1}, s{pa+1}')
        a(f's_mov_b32 s{d+2}, {hex(nbytes)}')
        a(f's_mov_b32 s{d+3}, 0x00020000')
    def srd(d, p, nbytes):
        a(f's_mov_b32 s{d}, s{p}')
        a(f's_mov_b32 s{d+1}, s{p+1}')
        a(f's_mov_b32 s{d+2}, {hex(nbytes)}')
        a(f's_mov_b32 s{d+3}, 0x00020000')
    if c.lfirst: a(f's_xor_b32 s{S_WID}, s{S_WID}, 4')
    a(f's_cmp_lt_u32 s{S_WID}, 4')
    a('s_cbranch_scc1 COMPUTE')

    a(f's_and_b32 s{S_W}, s{S_WID}, 3')
    a(f's_lshl_b32 s{S_B}, s{S_MT}, 2')
    a(f's_add_u32 s{S_B}, s{S_B}, s{S_W}')
    a(f's_mov_b32 s44, {8*2048-1024}')
    a('v_lshrrev_b32 v3, 3, v2')
    a('v_and_b32 v4, 7, v2')
    a('v_lshrrev_b32 v5, 4, v2')
    a(f's_lshl_b32 s10, s{S_B}, 16')
    a('v_xor_b32 v6, v5, v4')
    a('v_lshlrev_b32 v8, 4, v6')
    a('v_xor_b32 v9, 64, v8')
    a('v_lshl_add_u32 v6, v3, 11, s10')
    a(f'v_add_u32 v{L_DX}, v6, v8')
    a(f'v_add3_u32 v{L_DX+1}, v6, v9, s44')
    a(f'v_add_u32 v{L_DX+2}, {16*2048-2048}, v{L_DX}')
    a(f'v_add_u32 v{L_DX+3}, {16*2048-2048}, v{L_DX+1}')
    a('v_and_b32 v6, 15, v2')
    a('v_lshlrev_b32 v7, 2, v5')
    a('v_xor_b32 v6, v6, v7')
    a('v_lshlrev_b32 v12, 4, v6')
    a(f's_lshl_b32 s10, s{S_W}, 17')
    a(f's_lshl_b32 s13, s{S_HEAD}, 8')
    a('s_add_u32 s10, s10, s13')
    a('v_lshl_add_u32 v6, v5, 13, v12')
    a(f'v_add_u32 v{L_DWQ}, s10, v6')
    for i in range(1, 4):
        a(f'v_add_u32 v{L_DWQ+i}, {i*4*8192-WOFF[i]}, v{L_DWQ}')
    a(f's_lshl_b32 s78, s{S_MT}, 1')
    a(f's_add_u32 s78, s78, s{S_J8}')
    a('s_and_b32 s78, s78, 7')
    a('s_lshl_b32 s79, s78, 20')
    a('s_lshl_b32 s78, s78, 8')
    a(f's_mul_i32 s77, s{S_W}, {WBLK}')
    a(f's_lshl_b32 m0, s{S_W}, 12')
    a(f's_mov_b32 s{SRD_X+2}, {1 << 20}')
    a(f's_mov_b32 s{SRD_X+3}, 0x00020000')
    a(f's_mov_b32 s{SRD_WQ+2}, {8 << 20}')
    a(f's_mov_b32 s{SRD_WQ+3}, 0x00020000')
    a(f's_cmp_eq_u32 s{S_BR}, 1')
    a('s_waitcnt lgkmcnt(0)')
    a(f's_cselect_b64 s[{SRD_X}:{SRD_X+1}], s[26:27], s[16:17]')
    a(f's_cselect_b64 s[{SRD_WQ}:{SRD_WQ+1}], s[32:33], s[22:23]')
    for i in range(4):
        a(f'buffer_load_dwordx4 v{L_DX+i}, s[{SRD_X}:{SRD_X+3}], s78 offen offset:{1024*i} {c.fx} lds')
    srd_sel(SRD_K, 18, 28, 4 << 20)
    srd_sel(SRD_V, 20, 30, 4 << 20)
    srd_sel(SRD_WO, 24, 34, 8 << 20)
    a(f's_add_u32 m0, s77, {WT0}')
    a('s_nop 0')
    for i in range(4):
        a(f'buffer_load_dwordx4 v{L_DWQ+i}, s[{SRD_WQ}:{SRD_WQ+3}], s79 offen offset:{WOFF[i]} {c.fw} lds')
    srd(SRD_WS, 40, WS_BYTES)
    srd(SRD_DBG, 38, 256)
    a(f's_lshl_b32 s{S_LW}, s{S_W}, 12')
    a(f's_mov_b32 s{S_LW2}, s77')
    a(f's_lshl_b32 s{S_2HD}, s{S_J8}, 1')
    a(f's_lshl_b32 s11, s{S_B}, 5')
    a(f's_lshl_b32 s13, s{S_HG}, 3')
    a('s_add_u32 s11, s11, s13')
    a('s_lshl_b32 s11, s11, 13')
    for i in range(4):
        a(f'v_add_u32 v7, {8*i}, v3')
        a(f'v_lshl_add_u32 v6, v7, 8, v{8+i%2}')
        a(f'v_add_u32 v6, s11, v6')
        a(f'v_subrev_u32 v{L_DV+i}, {1024*i}, v6')

    def late_setup():
        a(f's_lshl_b32 s10, s{S_W}, 15')
        a(f's_lshl_b32 s13, s{S_NT}, 8')
        a('s_add_u32 s10, s10, s13')
        a(f's_lshl_b32 s13, s{S_HG}, 21')
        a('s_add_u32 s10, s10, s13')
        a('v_lshl_add_u32 v6, v5, 11, v12')
        a(f'v_add_u32 v{L_DWO}, s10, v6')
        for i in range(1, 4):
            a(f'v_add_u32 v{L_DWO+i}, {i*4*2048-WOFF[i]}, v{L_DWO}')
        a(f'v_and_b32 v6, 7, v2')
        a(f'v_lshlrev_b32 v{L_POLLA}, 3, v6')
        a(f's_lshl_b32 s{S_TMP}, s{S_BR}, 4')
        a(f's_add_u32 s{S_TMP}, s{S_TMP}, s{S_B}')
        a(f's_lshl_b32 s{S_TMP}, s{S_TMP}, 2')
        a(f's_add_u32 s{S_TMP}, s{S_TMP}, s{S_HG}')
        a(f's_lshl_b32 s{S_TMP+2}, s{S_TMP}, 7')
        a(f's_add_u32 s{S_TMP+2}, s{S_TMP+2}, {WS_FLAG}')
        a(f's_lshl_b32 s{S_TMP+4}, s{S_TMP}, 14')
        a(f's_mul_i32 s{S_TMP+5}, s{S_W}, 6144')
        a(f's_add_u32 s{S_TMP+5}, s{S_TMP+5}, {AUX}')
        a(f'v_lshlrev_b32 v{L_WA}, 2, v2')

    if c.lsat == 0: late_setup()
    for v in range(1, 4):
        a(f's_cmp_eq_u32 s{S_MT}, {v}')
        a(f's_cbranch_scc1 LOADER{v}')

    def loader(mt):
        tagn = f'{mt}'
        s1, s2 = p1_sched(mt), p2_sched(mt)
        nops = [0]; endpos = {}
        def tile(kind, slot):
            if kind in ('x', 'v', 'k'):
                base = slot*16384 if kind != 'k' else AUX
                v, s, f = {'x': (L_DX, SRD_X, c.fx), 'v': (L_DV, SRD_V, c.fv), 'k': (L_DV, SRD_K, c.fk)}[kind]
                so = S_SA
            else:
                base = WT0 + slot*WSLOT
                v, s, f = (L_DWQ, SRD_WQ, c.fw) if kind == 'wq' else (L_DWO, SRD_WO, c.fo)
                so = S_SW
            wt = kind in ('wq', 'wo')
            a(f's_add_u32 m0, s{S_LW2 if wt else S_LW}, {base}')
            a('s_nop 0')
            for i in range(4):
                a(f'buffer_load_dwordx4 v{v+i}, s[{s}:{s+3}], s{so} offen offset:{WOFF[i] if wt else 1024*i} {f} lds')
                nops[0] += 1
        def wflag(off, val):
            a(f's_add_u32 m0, s{S_TMP+3}, {off}')
            a(f'v_mov_b32 v{L_WV}, {4*val}')
            a('s_mov_b64 exec, 1')
            a(f'global_load_lds_dword v{L_WV}, s[{S_TAB}:{S_TAB+1}]')
            a('s_mov_b64 exec, -1')
        def pload(u, count):
            r, i, own = s2[u]
            a(f's_add_u32 s10, s{S_NT}, {int((c.d0map, c.d1map)[r][i])}')
            a(f's_and_b32 s10, s10, 7')
            a(f's_lshl_b32 s10, s10, 11')
            a(f's_add_u32 m0, s{S_TMP+5}, {((u-1)%3)*2048}')
            a(f's_add_u32 s10, s10, s{S_TMP+4}')
            for G in range(2):
                a(f'buffer_load_dwordx4 v{V_L16}, s[{SRD_WS}:{SRD_WS+3}], s10 offen offset:{1024*G} sc1 lds')
                if count: nops[0] += 1
        def poll():
            a(f'buffer_load_dwordx2 v[{L_POLL}:{L_POLL+1}], v{L_POLLA}, s[{SRD_WS}:{SRD_WS+3}], s{S_TMP+2} offen sc1')
        def bar():
            a('s_barrier')
            if c.gmode == 'dyn': a(f's_memtime s[{S_TB}:{S_TB+1}]')
            a(f's_add_u32 s{S_NB}, s{S_NB}, 1')
        def gate(n):
            nm = f'{tagn}_{n}'
            if n < 3: return
            a.label(f'GA{nm}')
            if n >= 4:
                a(f's_cmp_ge_u32 s{S_NB}, {n-3}')
                a(f's_cbranch_scc1 GB{nm}')
                bar()
                a.label(f'GB{nm}')
            if n >= 30 or c.gmode == 'static' or n >= c.gsw: return
            if c.gmode == 'once':
                if n == 3: return
                a(f's_cmp_ge_u32 s{S_NB}, {n-2}')
                a(f's_cbranch_scc1 GO{nm}')
                a(f's_getreg_b32 s10, hwreg(HW_REG_IB_STS)')
                a('s_and_b32 s10, s10, 0xc0000f')
                a(f's_cmp_le_u32 s10, {c.vthr}')
                a(f's_cbranch_scc1 GO{nm}')
                bar()
                a.label(f'GO{nm}')
                return
            a(f's_cmp_ge_u32 s{S_NB}, {n-2}')
            a(f's_cbranch_scc1 GO{nm}')
            a.label(f'GP{nm}')
            a(f's_getreg_b32 s10, hwreg(HW_REG_IB_STS)')
            a(f's_memtime s[{S_NOW}:{S_NOW+1}]')
            a('s_and_b32 s10, s10, 0xc0000f')
            a(f's_cmp_le_u32 s10, {c.vthr}')
            a(f's_cbranch_scc1 GO{nm}')
            a('s_waitcnt lgkmcnt(0)')
            a(f's_sub_u32 s10, s{S_NOW}, s{S_TB}')
            nb = n - 3
            bud = c.budget + (1100 if nb == 16 else 0) + (256 if (nb == 18 or (nb >= 22 and nb % 2 == 0)) else 0)
            a(f's_cmp_lt_u32 s10, {bud if n > 3 else 1 << 20}')
            a(f's_cbranch_scc1 GP{nm}')
            bar()
            a.label(f'GO{nm}')
        def tr(lane, reg):
            if c.trace:
                a('s_memrealtime s[76:77]')
                a('s_waitcnt lgkmcnt(0)')
                a(f'v_writelane_b32 v{reg}, s76, {lane}')
        for g in range(1, NG + 1):
            slot = g % 4
            start = nops[0]
            if g < NG:
                if g == c.pg - 1: poll()
                if g == 6:
                    a(f'buffer_load_dwordx2 v[{L_TAG}:{L_TAG+1}], off, s[{SRD_DBG}:{SRD_DBG+3}], 0 sc1')
                if g == c.pg:
                    a(f's_mov_b32 s{S_CNT}, {c.spin}')
                    a.label(f'PC{tagn}')
                    a(f'v_cmp_ne_u64 vcc, v[{L_POLL}:{L_POLL+1}], v[{L_TAG}:{L_TAG+1}]')
                    a(f's_cbranch_vccz PG{tagn}')
                    a(f's_sub_u32 s{S_CNT}, s{S_CNT}, 1')
                    a(f's_cbranch_scc1 PG{tagn}')
                    poll()
                    a('s_waitcnt vmcnt(0)')
                    a(f's_branch PC{tagn}')
                    a.label(f'PG{tagn}')
                    for u in (1, 2, 3): pload(u, False)
                for gg, uu in ((max(25, c.pg + 2), 4), (27, 5), (29, 6), (31, 7)):
                    if g == gg: pload(uu, True)
                if g < 16:
                    r, i, own = s1[g]
                    a(f's_add_u32 s{S_IDX}, s{S_2HD}, {4*i+OFFR[r]}')
                    a(f's_and_b32 s{S_IDX}, s{S_IDX}, 15')
                    a(f's_lshl_b32 s{S_SA}, s{S_IDX}, 7')
                    a(f's_lshl_b32 s{S_SW}, s{S_IDX}, 19')
                    if c.kearly: hf = 0 if g == 1 else (1 if (own and r == 1) else None)
                    else: hf = {1: 0, 3: 1}.get(r) if own else None
                    def kt():
                        a(f's_lshl_b32 s{S_SA}, s{S_J8}, 13')
                        if hf: a(f's_add_u32 s{S_SA}, s{S_SA}, 128')
                        tile('k', 0)
                    if c.mf1 and hf is not None:
                        tile('wq', slot); kt()
                        a(f's_lshl_b32 s{S_SA}, s{S_IDX}, 7')
                        tile('x', slot)
                    else:
                        tile('x', slot); tile('wq', slot)
                        if hf is not None: kt()
                else:
                    u, half = divmod(g - 16, 2)
                    r, i, own = s2[u]
                    a(f's_add_u32 s{S_IDX}, s{S_NT}, {int((c.d0map, c.d1map)[r][i])}')
                    a(f's_and_b32 s{S_IDX}, s{S_IDX}, 7')
                    a(f's_lshl_b32 s{S_SA}, s{S_IDX}, 13')
                    a(f's_lshl_b32 s{S_SW}, s{S_IDX}, 18')
                    if half:
                        a(f's_add_u32 s{S_SA}, s{S_SA}, 128')
                        a(f's_add_u32 s{S_SW}, s{S_SW}, {64*2048}')
                    if (half or c.mf2) and own and r == 1: tile('wo', slot); tile('v', slot)
                    else: tile('v', slot); tile('wo', slot)
            n_this = nops[0] - start
            if g == c.lsat: late_setup()
            a(f's_waitcnt vmcnt({n_this})')
            if g == 6:
                a(f's_mov_b32 s{S_CNT}, {c.spin}')
                a.label(f'TG{tagn}')
                a(f'v_cmp_eq_u64 vcc, 0, v[{L_TAG}:{L_TAG+1}]')
                a(f's_cbranch_vccz TGOK{tagn}')
                a(f's_sub_u32 s{S_CNT}, s{S_CNT}, 1')
                a(f's_cbranch_scc1 TGOK{tagn}')
                a('s_sleep 1')
                a(f'buffer_load_dwordx2 v[{L_TAG}:{L_TAG+1}], off, s[{SRD_DBG}:{SRD_DBG+3}], 0 sc1')
                a('s_waitcnt vmcnt(0)')
                a(f's_branch TG{tagn}')
                a.label(f'TGOK{tagn}')
                a(f's_mov_b32 m0, {CB_TAG}')
                a('s_mov_b64 exec, 3')
                a(f'buffer_load_dword v{L_WA}, s[{SRD_DBG}:{SRD_DBG+3}], 0 offen sc1 lds')
                a('s_mov_b64 exec, -1')
            a('s_barrier')
        if c.lsend: a('s_branch LTAIL')
        if c.trace:
            a(f'v_writelane_b32 v51, s42, 63')
            a('s_mov_b32 s76, s40')
            a('s_mov_b32 s77, s41')
            a('s_mov_b32 s78, 0x10000000')
            a('s_mov_b32 s79, 0x00020000')
            a('s_lshl_b32 s75, s2, 2')
            a(f's_add_u32 s75, s75, s{S_W}')
            a('s_lshl_b32 s75, s75, 9')
            a(f's_add_u32 s75, s75, {(130<<20)}')
            a('v_lshlrev_b32 v3, 2, v2')
            a('buffer_store_dword v50, v3, s[76:79], s75 offen')
            a('buffer_store_dword v51, v3, s[76:79], s75 offen offset:256')
        a('s_endpgm')
    for v in range(4):
        if v: a.label(f'LOADER{v}')
        loader(v)

    if c.lsend:
        a.label('LTAIL')
        B = 19
        a(f's_lshl_b32 s{B}, s{S_BR}, 2')
        a(f's_add_u32 s{B}, s{B}, s{S_MT}')
        a(f's_lshl_b32 s{B}, s{B}, 3')
        a(f's_add_u32 s{B}, s{B}, s{S_NT}')
        a(f's_mul_i32 s{B}, s{B}, {4*3*4*4096}')
        a(f's_add_u32 s{B}, s{B}, s{S_LW}')
        a(f's_add_u32 s{B}, s{B}, {WS_X}')
        for t in (1, 2, 3):
            d = S_SEND + t
            a(f's_xor_b32 s{d}, s{S_HG}, {t}')
            a(f's_mul_i32 s{d}, s{d}, {3*16384}')
            a(f's_add_u32 s{d}, s{d}, s{B}')
            a(f's_add_u32 s{d}, s{d}, {(t-1)*16384}')
        a('s_mov_b32 s10, 0x9e3779b1')
        a(f'v_mul_lo_u32 v3, v{L_TAG}, s10')
        a(f'v_xor_b32 v3, v3, v{L_TAG+1}')
        a('v_and_b32 v4, 1, v2')
        a('v_cmp_eq_u32 vcc, 0, v4')
        a(f'v_add_u32 v5, s{S_LW}, v{V_L16}')
        a('s_nop 0')
        a(f'v_cndmask_b32 v3, v3, v{L_TAG}, vcc')
        for t in (1, 2, 3):
            for x in range(3): a(f'v_mov_b32 v{64+12*t+4*x+3}, v3')
        for t in (1, 2, 3):
            a('s_barrier')
            for q in range(4):
                a(f'ds_read_b128 {vr(48+4*q,4)}, v5 offset:{(t-1)*16384+1024*q}')
            b = 64 + 12*t
            for i in range(8):
                if i % 2 == 0: a(f's_waitcnt lgkmcnt({3-i//2})')
                a(f'v_cvt_pk_bf16_f32 v{b+4*(i//3)+i%3}, v{48+2*i}, v{48+2*i+1}')
                if i in (2, 5, 7):
                    a(f'buffer_store_dwordx4 {vr(b+4*(i//3),4)}, v{V_L16}, s[{SRD_WS}:{SRD_WS+3}], s{S_SEND+t} offen offset:{1024*(i//3)} {c.xst}')
        a('s_endpgm')

    if c.calign: a.raw(f'.p2align {c.calign}')
    a.label('COMPUTE')
    for _ in range(c.cpad): a('s_nop 0')
    a('s_memrealtime s[42:43]')
    if c.cprio: a(f's_setprio {c.cprio}')
    a(f's_mov_b32 s{S_W}, s{S_WID}')
    a(f's_lshl_b32 s{S_B}, s{S_MT}, 2')
    a(f's_add_u32 s{S_B}, s{S_B}, s{S_W}')
    T = ACC
    a('s_waitcnt lgkmcnt(0)')
    a(f's_lshl_b32 s{S_LW}, s{S_W}, 12')
    a(f'v_and_b32 v{T}, 15, v2')
    a(f'v_lshrrev_b32 v{T+1}, 4, v2')
    a(f'v_lshrrev_b32 v{T+2}, 1, v{T}')
    a(f'v_lshlrev_b32 v{T+3}, 7, v{T}')
    a(f'v_add_u32 v{T+3}, s{S_LW}, v{T+3}')
    a(f'v_xor_b32 v{T+4}, v{T+2}, v{T+1}')
    a(f'v_lshl_add_u32 v{V_RA}, v{T+4}, 4, v{T+3}')
    a(f'v_xor_b32 v{V_RA+1}, 64, v{V_RA}')
    a(f'v_lshrrev_b32 v{T+4}, 1, v{T+1}')
    a(f'v_xor_b32 v{T+4}, v{T+4}, v{T+2}')
    a(f'v_lshl_add_u32 v{T+4}, v{T+4}, 4, v{T+3}')
    a(f'v_and_b32 v{T+5}, 1, v{T+1}')
    a(f'v_lshl_add_u32 v{T+4}, v{T+5}, 3, v{T+4}')
    a(f'v_add_u32 v{V_SP}, {AUX}, v{T+4}')
    def rt_setup(phase, T):
        L = []
        L.append(f'v_bfe_u32 v{T}, v2, 2, 2')
        L.append(f'v_bfe_u32 v{T+1}, v2, 4, 1')
        L.append(f'v_lshrrev_b32 v{T+2}, 5, v2')
        L.append(f'v_and_b32 v{T+3}, 3, v2')
        L.append(f'v_mul_u32_u24 v{T+1}, 2080, v{T+1}')
        L.append(f'v_mul_u32_u24 v{T+2}, {WBLK}, v{T+2}')
        L.append(f'v_add3_u32 v{T+4}, v{T+1}, v{T+2}, 0')
        L.append(f'v_lshl_add_u32 v{T+4}, v{T}, 8, v{T+4}')
        L.append(f'v_lshl_add_u32 v{T+4}, v{T+3}, 3, v{T+4}')
        L.append(f'v_add_u32 v{T+4}, {WT0}, v{T+4}')
        for t in range(4):
            if phase == 1:
                L.append(f'v_xor_b32 v{T+5}, {t}, v{T}')
            else:
                L.append(f's_add_u32 s10, s{S_HG}, {t}')
                L.append('s_and_b32 s10, s10, 3')
                L.append(f'v_xor_b32 v{T+5}, s10, v{T}')
            L.append(f'v_lshl_add_u32 v{V_RT+t}, v{T+5}, 6, v{T+4}')
        return L
    for l in rt_setup(1, T): a(l)
    srd(SRD_WS, 40, WS_BYTES)
    srd(SRD_OUT, 36, 2 << 20)
    srd(SRD_DBG, 38, 256)
    a(f's_or_b32 s13, s2, s{S_W}')
    a('s_cmp_lg_u32 s13, 0')
    a('s_cbranch_scc1 NOTAG')
    a(f'v_mov_b32 v{T}, s42')
    a(f'v_mov_b32 v{T+1}, s43')
    a(f'buffer_store_dwordx2 v[{T}:{T+1}], off, s[{SRD_DBG}:{SRD_DBG+3}], 0 sc0 sc1')
    a.label('NOTAG')
    cc = (128 ** -0.5) * math.log2(math.e)
    cbits = struct.unpack('<I', struct.pack('<f', cc))[0]
    a(f's_mov_b32 s{S_TMP+4}, {hex(cbits)}')
    a(f's_lshl_b32 s{S_TMP}, s{S_BR}, 4')
    a(f's_add_u32 s{S_TMP}, s{S_TMP}, s{S_B}')
    a(f's_lshl_b32 s{S_TMP+1}, s{S_TMP}, 2')
    a(f's_add_u32 s{S_TMP+1}, s{S_TMP+1}, s{S_HG}')
    a(f's_lshl_b32 s{S_TMP+1}, s{S_TMP+1}, 4')
    a(f's_add_u32 s{S_TMP+1}, s{S_TMP+1}, s{S_J8}')
    a(f's_lshl_b32 s{S_TMP+1}, s{S_TMP+1}, 3')
    a(f's_add_u32 s{S_TMP+1}, s{S_TMP+1}, {WS_FLAG}')
    a(f's_lshl_b32 s{S_TMP}, s{S_TMP}, 5')
    a(f's_add_u32 s{S_TMP}, s{S_TMP}, s{S_HEAD}')
    a(f's_lshl_b32 s{S_TMP}, s{S_TMP}, 11')
    a(f's_mul_i32 s{S_TMP+2}, s{S_W}, 6144')
    a(f's_add_u32 s{S_TMP+2}, s{S_TMP+2}, {AUX}')
    tail_salu(a)
    stamp(1)
    phase1(a, c, stamp)
    softmax(a, c, stamp, rt_setup)
    phase2(a, c, stamp)
    if c.leak >= 0:
        if c.leakj >= 0:
            a(f's_and_b32 s76, s{S_J8}, 3')
            a(f's_cmp_lg_u32 s76, {c.leakj}')
            a('s_cbranch_scc1 K_END')
        a.label('LEAKL')
        a('s_memrealtime s[76:77]')
        a('s_waitcnt lgkmcnt(0)')
        a('s_sub_u32 s76, s76, s80')
        a('s_cmp_lt_u32 s76, 3000')
        a('s_cbranch_scc1 LEAKL')
    if c.padto:
        a.label('PADL')
        a('s_memrealtime s[76:77]')
        a('s_waitcnt lgkmcnt(0)')
        a(f's_sub_u32 s76, s76, s{S_T0}')
        a(f's_cmp_lt_u32 s76, {c.padto}')
        a('s_cbranch_scc1 PADL')
    if c.stamps:
        n = 11
        a('s_waitcnt vmcnt(0) lgkmcnt(0)')
        stamp(n - 1)
        a('s_waitcnt lgkmcnt(0)')
        a(f's_cmp_lg_u32 s{S_WID}, 0')
        a('s_cbranch_scc1 K_END')
        a('s_mov_b32 s76, s40')
        a('s_mov_b32 s77, s41')
        a('s_mov_b32 s78, 0x10000000')
        a('s_mov_b32 s79, 0x00020000')
        a('s_lshl_b32 s75, s2, 7')
        a(f's_add_u32 s75, s75, {128<<20}')
        a('v_mov_b32 v3, 0')
        for i in range(n):
            a(f'v_mov_b32 v4, s{80+2*i}')
            a(f'v_mov_b32 v5, s{81+2*i}')
            a(f'buffer_store_dwordx2 v[4:5], v3, s[76:79], s75 offen offset:{8*i}')
            a('s_nop 1')
    a.label('K_END')
    a('s_endpgm')
    return a.text()

PF = VWB + 48
ACC_TAGT = VWB + 32

def spin(a, c, name, rd, test):
    a(f's_mov_b32 s{S_CNT}, {c.lspin}')
    a.label(name)
    a(rd)
    a(f's_sub_u32 s{S_CNT}, s{S_CNT}, 1')
    a('s_cbranch_scc1 K_END')
    a('s_waitcnt lgkmcnt(0)')
    a(test)
    a(f's_cbranch_vccnz {name}')
def flagread(kind):
    return f'ds_read_b32 v{V_FL}, v{V_CB}' + ('' if kind == 'F' else f' offset:{CB_PRDY-CB_FULL}')
def flagtest(kind, g):
    return f'v_cmp_ge_u32 vcc, {g}, v{V_FL}' if kind == 'F' else f'v_cmp_eq_u32 vcc, 0, v{V_FL}'

NBAR = [0]
class Sched:
    def __init__(s, a, c):
        s.a, s.c = a, c
        s.M = []; s.L = []; s.V = []
        s.lastuse = {}
        s.wn = 0; s.an = 0
    def m(s, ins, needs=(), uses=(), vneed=(), post=None):
        for r in uses: s.lastuse[r] = len(s.M)
        s.M.append(dict(ins=ins, needs=list(needs), vneed=list(vneed), post=post))
        return len(s.M) - 1
    def load(s, instrs, tag, reg, first, gate=None, rel=None, vreq=None, depth=None):
        after = -1
        for r in (reg if isinstance(reg, (list, tuple)) else [reg]):
            after = max(after, s.lastuse.get(r, -1))
        d = s.c.depth if depth is None else depth
        for it in instrs:
            s.L.append(dict(it=it, tag=tag, after=max(after + 1, first - d), first=first, gate=gate, rel=rel, vreq=vreq))
    def valu(s, instrs, after, group=None):
        for i in instrs: s.V.append(dict(ins=i, after=after, group=group))
    def run(s, nbar, pure, last_bar, stamps={}):
        a, c = s.a, s.c
        s.L.sort(key=lambda e: e['first'])
        s.V.sort(key=lambda e: e['after'])
        Q = list(s.L)
        issued = []; done = [0]; itime = []
        relcount = {}
        for e in Q:
            if e['rel'] is not None: relcount[e['rel']] = relcount.get(e['rel'], 0) + 1
        relpos = {}; rdy = {}
        nm = [0]
        V = s.V
        def need(tags):
            if not tags: return
            for t in tags:
                if any(e['tag'] == t for e in Q):
                    while any(e['tag'] == t for e in Q):
                        assert pump(1, True), ('stuck', t, Q[0])
            idx = max(i for i, t in enumerate(issued) if t in tags) + 1
            if idx > done[0]:
                while idx < len(issued) and nm[0] - itime[idx] >= c.minage: idx += 1
                n = min(14, len(issued) - idx)
                a(f's_waitcnt lgkmcnt({n})')
                done[0] = len(issued) - n
        def pump(k, force=False):
            n = 0
            while n < k and Q:
                e = Q[0]
                if e['after'] > nm[0]:
                    if not (force and e['after'] - nm[0] <= 0): break
                if e['vreq'] is not None and any(v['group'] == e['vreq'] for v in V): break
                if e['gate'] is not None and e['gate'][1] >= nbar[0]:
                    b = nbar[0] - 2
                    if b in pure:
                        a('s_barrier'); nbar[0] += 1
                        continue
                    assert not force, ('gate', e, nbar)
                    break
                Q.pop(0)
                for l in e['it']: a(l)
                issued.append(e['tag']); itime.append(nm[0])
                if e['rel'] is not None:
                    relcount[e['rel']] -= 1; relpos[e['rel']] = len(issued)
                n += len(e['it'])
            return n
        def fill(k):
            n = 0
            while n < k and V and V[0]['after'] <= nm[0]:
                a(V.pop(0)['ins']); n += 1
            return n
        pump(99)
        for i, m in enumerate(s.M):
            flushed = False
            for g in m['vneed']:
                while any(v['group'] == g for v in V):
                    assert V[0]['after'] <= nm[0], ('valu not ready', i, g, V[0])
                    a(V.pop(0)['ins']); flushed = True
            need(m['needs'])
            src = set()
            for lo, hi in re.findall(r'v\[(\d+):(\d+)\]', m['ins'].split(',', 1)[1]): src |= set(range(int(lo), int(hi) + 1))
            for back, l in enumerate(reversed(a.lines[-2:])):
                mm = re.match(r'\s*v_(?!mfma)\w+ v(\d+),', l)
                if mm and int(mm.group(1)) in src:
                    a(f's_nop {1 - back}'); break
            a(m['ins']); nm[0] += 1
            if i in stamps: stamps[i]()
            b = nbar[0] - 2
            if 30 <= b <= last_bar and relcount.get(b, 0) == 0 and nm[0] - itime[relpos[b] - 1] >= c.hwait: need([f'H{b-29}'])
            if b not in pure and b <= last_bar and relcount.get(b, 0) == 0 and relpos.get(b, 0) <= done[0]:
                rdy.setdefault(b, nm[0])
                bd = c.bd1 if b < 14 else (c.bd2 if (16 <= b < 26 and b != 20) else 0)
                if nm[0] >= rdy[b] + bd:
                    a('s_barrier'); nbar[0] += 1
            urgent = Q and Q[0]['first'] - nm[0] <= c.urgent
            if last_bar < 16 and c.ra * 32 <= i < c.rb * 32: urgent = True
            n = pump(2 if urgent else 1)
            fill((m['post'] or c.vslots) - (c.vslots - c.vwith) * min(n, 1))
        assert not Q, Q[0]
        assert nbar[0] - 2 > last_bar, nbar
        return V

def wt_items(j, kk, t, e, d):
    return [[f'ds_read_b64_tr_b16 {ar(d+2*u,2)}, v{V_RT+t} offset:{(j%4)*WSLOT+kk*2*WBLK+u*1024+e*32}'] for u in range(2)]
def act_item(j, kk, ai, dst):
    return [[f'ds_read_b128 {dst}, v{V_RA+kk} offset:{(j%4)*16384+ai*2048}']]
def p_items(u, d):
    return [[f'ds_read_b128 {ar(d+4*G,4)}, v{V_SP} offset:{((u-1)%3)*2048+1024*G}'] for G in range(2)]

def gemm_stage(S, j, gate):
    lastw = {}
    dd = S.c.d0 if j < S.c.dn else None
    for kk in range(2):
        aslot = [AA + 4*((S.an + x) % 3) for x in range(2)]; S.an += 2
        for h in range(2):
            base = len(S.M)
            if h == 0:
                for ai in range(2):
                    S.load(act_item(j, kk, ai, ar(aslot[ai], 4)), f'A{j}_{kk}_{ai}', aslot[ai], base + 4*ai - 0.5, gate, j, depth=dd)
            fr = []
            for w4 in range(4):
                t, e = 2*h + w4 // 2, w4 % 2
                d = AW + 4*(S.wn % 8); S.wn += 1
                S.load(wt_items(j, kk, t, e, d), f'W{j}_{kk}_{t}_{e}', d, base + w4, gate, j, depth=dd)
                fr.append((t, e, d))
            for ai in range(2):
                for (t, e, d) in fr:
                    r = ACC + 16*t + 8*e + 4*ai
                    first = kk == 0 and (j == 0 or (j >= 16 and j % 2 == 0))
                    ops = f'{ar(d,4)}, {ar(aslot[ai],4)}' if j < 16 else f'{ar(aslot[ai],4)}, {ar(d,4)}'
                    vn = [f'cv{(j-16)//2-1}_{t}_{e}'] if (first and j >= 18) else []
                    lastw[(t, e, ai)] = S.m(f'{MF} {vr(r,4)}, {ops}, ' + ('0' if first else vr(r, 4)),
                                            needs=[f'W{j}_{kk}_{t}_{e}', f'A{j}_{kk}_{ai}'], uses=[d, aslot[ai]], vneed=vn)
    return lastw

def phase1(a, c, stamp):
    a('s_barrier'); NBAR[0] = 1
    stamp(2)
    S = Sched(a, c)
    st = {}
    for j in range(16):
        kj = (0, 6) if c.kearly else (5, 13)
        if j in kj:
            hf = kj.index(j)
            base = len(S.M) + (12 if j == 0 else 0)
            n = 0
            for Tp in range(2):
                for e in range(2):
                    it = []
                    for ki in range(2):
                        x = [f'v_xor_b32 v{V_T3}, {(4*Tp+2*e)<<4}, v{V_SP}'] if ki == 0 else []
                        it.append(x + [f'ds_read_b64 {ar(AK+8*(2*hf+Tp)+4*ki+2*e,2)}, v{V_T3} offset:{2048*ki}'])
                    S.load(it, f'K{hf}_{Tp}_{e}', 'none', base + 12.7 + (1 if j == 0 else 4)*n, ('F', max(j, 1)), j, depth=8)
                    n += 1
        if j == 8: st[len(S.M)] = lambda: stamp(3)
        if c.fine >= 0 and 0 <= j - c.fine < 9: st[len(S.M)] = (lambda jj: lambda: stamp(jj - c.fine + 1, True))(j)
        gemm_stage(S, j, ('F', j))
    V = S.run(NBAR, {-1}, c.p1last, st)
    assert not V

def red2(a, op, x0, x1, t0, t1):
    for sw in ('v_permlane32_swap_b32', 'v_permlane16_swap_b32'):
        a(f'v_mov_b32 v{t0}, v{x0}')
        a(f'v_mov_b32 v{t1}, v{x1}')
        a('s_nop 0')
        a(f'{sw} v{x0}, v{t0}')
        a(f'{sw} v{x1}, v{t1}')
        a('s_nop 0')
        a(f'{op} v{x0}, v{x0}, v{t0}')
        a(f'{op} v{x1}, v{x1}, v{t1}')

def softmax(a, c, stamp, rt_setup):
    QF = VWB; S = VWB + 32
    stamp(4)
    a(f'v_mov_b32 v{V_T3}, {CB_TAG}')
    a(f'ds_read_b64 v[{VWB+56}:{VWB+57}], v{V_T3}')
    def qcv(t):
        L = []
        for ai in range(2):
            for e in range(2):
                for x in range(2):
                    r = ACC + 16*t + 8*e + 4*ai + 2*x
                    L.append(f'v_cvt_pk_bf16_f32 v{QF+8*t+4*ai+2*e+x}, v{r}, v{r+1}')
        return L
    for l in qcv(0) + qcv(1): a(l)
    for t in range(4):
        rest = qcv(t + 2) if t < 2 else []
        for mi in range(2):
            for ki in range(2):
                d = vr(S + 8*mi + 4*ki, 4)
                a(f'{MF} {d}, {ar(AK+8*t+4*ki,4)}, {vr(QF+8*t+4*mi,4)}, ' + ('0' if t == 0 else d))
                for l in rest[:2]: a(l)
                rest = rest[2:]
    a('s_waitcnt lgkmcnt(0)')
    if NBAR[0] == 16 and c.b16 == 'mid':
        a('s_barrier'); NBAR[0] += 1
    a(f'v_readfirstlane_b32 s{S_T0}, v{VWB+56}')
    a(f'v_readfirstlane_b32 s{S_T0+1}, v{VWB+57}')
    a(f's_bitcmp1_b32 s{S_HG}, 0')
    a('s_cbranch_scc0 RS0')
    a(f'v_swap_b32 v{V_RT}, v{V_RT+1}')
    a(f'v_swap_b32 v{V_RT+2}, v{V_RT+3}')
    a.label('RS0')
    a(f's_bitcmp1_b32 s{S_HG}, 1')
    a('s_cbranch_scc0 RS1')
    a(f'v_swap_b32 v{V_RT}, v{V_RT+2}')
    a(f'v_swap_b32 v{V_RT+1}, v{V_RT+3}')
    a.label('RS1')
    a('s_nop 1')
    x = [ACC, ACC + 1]; t0, t1 = ACC + 2, ACC + 3
    for mi in range(2): a(f'v_max3_f32 v{x[mi]}, v{S+8*mi}, v{S+8*mi+1}, v{S+8*mi+2}')
    for mi in range(2): a(f'v_max3_f32 v{x[mi]}, v{x[mi]}, v{S+8*mi+3}, v{S+8*mi+4}')
    for mi in range(2): a(f'v_max3_f32 v{x[mi]}, v{x[mi]}, v{S+8*mi+5}, v{S+8*mi+6}')
    for mi in range(2): a(f'v_max_f32 v{x[mi]}, v{x[mi]}, v{S+8*mi+7}')
    red2(a, 'v_max_f32', x[0], x[1], t0, t1)
    for mi in range(2): a(f'v_mul_f32 v{x[mi]}, s{S_TMP+4}, v{x[mi]}')
    for i in range(16):
        a(f'v_fma_f32 v{S+i}, v{S+i}, s{S_TMP+4}, -v{x[i//8]}')
    for i in range(16):
        a(f'v_exp_f32 v{S+i}, v{S+i}')
    for mi in range(2): a(f'v_add_f32 v{x[mi]}, v{S+8*mi}, v{S+8*mi+1}')
    for i in range(2, 8):
        for mi in range(2): a(f'v_add_f32 v{x[mi]}, v{x[mi]}, v{S+8*mi+i}')
    red2(a, 'v_add_f32', x[0], x[1], t0, t1)
    for mi in range(2): a(f'v_rcp_f32 v{x[mi]}, v{x[mi]}')
    a('s_nop 0')
    for i in range(16):
        a(f'v_mul_f32 v{S+i}, v{S+i}, v{x[i//8]}')
    for i in range(8):
        a(f'v_cvt_pk_bf16_f32 v{PF+i}, v{S+2*i}, v{S+2*i+1}')
    for G in range(2):
        a(f'buffer_store_dwordx4 {vr(PF+4*G,4)}, v{V_L16}, s[{SRD_WS}:{SRD_WS+3}], s{S_TMP} offen offset:{1024*G} sc0 sc1')
    a(f'v_add_u32 v{V_SP}, s{S_TMP+2}, v{V_L16}')
    a(f's_mul_i32 s{S_TG2}, s{S_T0}, 0x9e3779b1')
    a(f's_xor_b32 s{S_TG2}, s{S_TG2}, s{S_T0+1}')
    while NBAR[0] < (17 if c.b16 != 'late' else 17):
        a('s_barrier'); NBAR[0] += 1

S_SEND = 21
S_RCV = 25
S_OUTO = 29
S_TG2 = 18
def tail_salu(a):
    B = 19
    a(f's_lshl_b32 s{B}, s{S_BR}, 2')
    a(f's_add_u32 s{B}, s{B}, s{S_MT}')
    a(f's_lshl_b32 s{B}, s{B}, 3')
    a(f's_add_u32 s{B}, s{B}, s{S_NT}')
    a(f's_mul_i32 s{B}, s{B}, {4*3*4*4096}')
    a(f's_add_u32 s{B}, s{B}, s{S_LW}')
    a(f's_add_u32 s{B}, s{B}, {WS_X}')
    for t in (1, 2, 3):
        d = S_SEND + t
        a(f's_xor_b32 s{d}, s{S_HG}, {t}')
        a(f's_mul_i32 s{d}, s{d}, {3*16384}')
        a(f's_add_u32 s{d}, s{d}, s{B}')
        a(f's_add_u32 s{d}, s{d}, {(t-1)*16384}')
    a(f's_mul_i32 s{S_RCV}, s{S_HG}, {3*16384}')
    a(f's_add_u32 s{S_RCV}, s{S_RCV}, s{B}')
    a(f's_add_u32 s{S_RCV+1}, s{S_RCV}, 16384')
    a(f's_add_u32 s28, s{S_RCV}, 32768')
    a(f's_lshl_b32 s{S_OUTO}, s{S_B}, 17')
    a(f's_lshl_b32 s11, s{S_BR}, 11')
    a(f's_add_u32 s{S_OUTO}, s{S_OUTO}, s11')
    a(f's_lshl_b32 s11, s{S_NT}, 8')
    a(f's_add_u32 s{S_OUTO}, s{S_OUTO}, s11')
    a(f's_lshl_b32 s11, s{S_HG}, 6')
    a(f's_add_u32 s{S_OUTO}, s{S_OUTO}, s11')

JOBS = [(1, 6), (2, 6), (1, 7), (2, 7), (3, 6), (3, 7), (0, 6), (0, 7)]
HZ = 6

def phase2(a, c, stamp):
    stamp(5)
    S = Sched(a, c)
    st = {}
    def pstage(u, preg, ptag, tiles=(1, 2, 3, 0)):
        last = {}
        for t in tiles:
            for e in range(2):
                for qi in range(2):
                    o = ar(AO + 16*t + 8*e + 4*qi, 4)
                    p = vr(PF + 4*qi, 4) if u == 0 else ar(preg + 4*qi, 4)
                    last[t] = S.m(f'{MF} {o}, {vr(VWB+32*(u%2)+8*t+4*e,4)}, {p}, ' + ('0' if u == 0 else o),
                                  needs=[ptag] if ptag else [], uses=[preg, preg + 4] if u else [], vneed=[f'cv{u}_{t}_{e}'])
        return last
    for j in range(16, 28):
        u = (j - 16) // 2
        base = len(S.M)
        if j == 24: st[base] = lambda: stamp(6)
        if c.fine >= 0 and 0 <= j - c.fine < 9: st[base] = (lambda jj: lambda: stamp(jj - c.fine + 1, True))(j)
        if j == 22 and c.pg == 25:
            S.load(p_items(1, AP), 'P1', [AP, AP + 4], base + 31.5, ('F', 24), 23, depth=6)
        if j >= 21 and j % 2 == 1 and not (j == 21 and c.pg == 25):
            if j == 21 and c.pg == 24:
                S.load(p_items(u - 1, AP), f'P{u-1}', [AP, AP + 4], base + 31.5, ('F', 23), 22, depth=6)
            else:
                S.load(p_items(u - 1, AP), f'P{u-1}', [AP, AP + 4], base + 12.7, ('F', c.pg - 1) if j == 21 else ('F', j), j, depth=6)
        if j == 16:
            S.valu(['s_waitcnt vmcnt(0)', f'v_mov_b32 v{ACC_TAGT}, s{S_T0}', f'v_mov_b32 v{ACC_TAGT+1}, s{S_T0+1}',
                    f'buffer_store_dwordx2 v[{ACC_TAGT}:{ACC_TAGT+1}], off, s[{SRD_WS}:{SRD_WS+3}], s{S_TMP+1} sc0 sc1'], base + c.pubat)
        lw = gemm_stage(S, j, ('F', j))
        if j % 2 == 1:
            for t in range(4):
                for e in range(2):
                    r = ACC + 16*t + 8*e; d = VWB + 32*(u % 2) + 8*t + 4*e
                    S.valu([f'v_cvt_pk_bf16_f32 v{d+i}, v{r+2*i}, v{r+2*i+1}' for i in range(4)], lw[(t, e, 1)] + HZ, f'cv{u}_{t}_{e}')
            if u >= 2 and not (u == 2 and c.pg == 25): pstage(u - 1, AP, f'P{u-1}')
        if j == 18: pstage(0, None, None)
        if j == 22 and c.pg == 25: pstage(1, AP, 'P1')
    st[len(S.M)] = lambda: stamp(7)
    ACCB = [VWB, VWB + 16, VWB + 32]
    SB = VWB + 48; TMP = VWB + 60
    TGV = V_CB
    PB = AA
    S.load(p_items(5, PB), 'P5', [AA, AA + 4, AA + 8], len(S.M), ('F', 27), None)
    pstage(5, PB, 'P5')
    p5end = len(S.M)
    PFR = {6: AP, 7: PB}
    seenv = set(); seenp = set()
    pend = None
    def send(t):
        L = []
        for i in range(8):
            x, y = TMP + (2*i) % 4, TMP + (2*i+1) % 4
            L.append(f'v_accvgpr_read_b32 v{x}, a{AO+16*t+2*i}')
            L.append(f'v_accvgpr_read_b32 v{y}, a{AO+16*t+2*i+1}')
            L.append(f'v_cvt_pk_bf16_f32 v{SB+4*(i//3)+i%3}, v{x}, v{y}')
            if i in (2, 5, 7):
                L.append(f'buffer_store_dwordx4 {vr(SB+4*(i//3),4)}, v{V_L16}, s[{SRD_WS}:{SRD_WS+3}], s{S_SEND+t} offen offset:{1024*(i//3)} {c.xst}')
        return L
    def cvj(k, e):
        b = ACCB[k % 3] + 8*e
        return [f'v_cvt_pk_bf16_f32 v{b+i}, v{b+2*i}, v{b+2*i+1}' for i in range(4)]
    def pmf_ins(k):
        t, u = JOBS[k]; L = []
        for e in range(2):
            for qi in range(2):
                o = ar(AO + 16*t + 8*e + 4*qi, 4)
                L.append((e, f'{MF} {o}, {vr(ACCB[k%3]+8*e,4)}, {ar(PFR[u]+4*qi,4)}, {o}'))
        return L
    def pmf(k):
        t, u = JOBS[k]
        for e, ins in pmf_ins(k):
            i = S.m(ins, needs=[f'P{u}'], uses=[PFR[u], PFR[u] + 4], vneed=[f'cj{k}_{e}'], post=c.frate)
        if u == 7:
            if c.lsend:
                it = [[f'ds_write_b128 v{V_FL}, {ar(AO+16*t+4*q,4)} offset:{(t-1)*16384+1024*q}'] for q in range(4)]
                for q, x in enumerate(it):
                    S.L.append(dict(it=x, tag=f'H{t}', after=i - 3 + q + c.hz2, first=i - 3 + c.hz2 + c.fdepth - 0.3, gate=None, rel=29 + t, vreq=None))
            else: S.valu(send(t), i + HZ, f'send{t}')
    R = [ACC, ACC + 12, ACC + 24]
    def rreg(k, qx):
        if k == 2 and qx == 2: return SB
        return R[k] + 4*qx
    RCV = [S_RCV, S_RCV + 1, 28]
    def rloads(ks):
        return [f'buffer_load_dwordx4 {vr(rreg(k,qx),4)}, v{V_L16}, s[{SRD_WS}:{SRD_WS+3}], s{RCV[k]} offen offset:{1024*qx} {c.xld}' for k in ks for qx in range(3)]
    tagset = False
    for k, (t, u) in enumerate(JOBS):
        lw = {}
        if c.fine == 99: st[len(S.M)] = (lambda kk: lambda: stamp(kk + 1, True))(k)
        for k4 in range(4):
            j = 16 + 2*u + k4 // 2; kk = k4 % 2
            base = len(S.M)
            vreg = [ACC + 32*(u-6) + 8*k4 + 4*ki for ki in range(2)]
            if (u, k4) not in seenv:
                seenv.add((u, k4))
                for ki in range(2):
                    tt, ee = divmod((vreg[ki] - ACC) // 8, 2)
                    S.load(act_item(j, kk, ki, vr(vreg[ki], 4)), f'V{u}_{k4}_{ki}', 'none', base + ki - 0.5, ('F', j), None, vreq=f'cv5_{tt}_{ee}', depth=c.fdepth)
            fr = []
            for e in range(2):
                d = AW + 4*(S.wn % 8); S.wn += 1
                S.load(wt_items(j, kk, t, e, d), f'X{k}_{k4}_{e}', d, base + 2*e, ('F', j), None, depth=c.fdepth)
                fr.append(d)
            if k4 == 3 and u not in seenp:
                seenp.add(u)
                S.load(p_items(u, PFR[u]), f'P{u}', [PFR[u], PFR[u] + 4], base + 3.5, ('F', j), None, depth=c.fdepth)
            for e in range(2):
                for ki in range(2):
                    r = vr(ACCB[k % 3] + 8*e + 4*ki, 4)
                    lw[e] = S.m(f'{MF} {r}, {vr(vreg[ki],4)}, {ar(fr[e],4)}, ' + ('0' if k4 == 0 else r),
                                needs=[f'X{k}_{k4}_{e}', f'V{u}_{k4}_{ki}'], uses=[fr[e]], post=c.frate)
            if k4 == 1 and k > 0: pmf(k - 1)
            if u == 7 and k4 == 3 and not tagset:
                tagset = True
                S.valu([f'v_and_b32 v{V_T3}, 1, v{V_LANE}', f'v_cmp_eq_u32 vcc, 0, v{V_T3}', f'v_mov_b32 v{V_T3}, s{S_TG2}',
                        f'v_mov_b32 v{V_FL}, s{S_T0}', f'v_cndmask_b32 v{TGV}, v{V_T3}, v{V_FL}, vcc'] +
                       ([f'v_add_u32 v{V_FL}, s{S_LW}, v{V_L16}'] if c.lsend else [f'v_mov_b32 v{SB+4*x+3}, v{TGV}' for x in range(3)]), len(S.M) - 3)
            if k == 7 and k4 == c.rcv_k4:
                S.valu(rloads((0, 1)), len(S.M) - 2)
        if k < 7:
            for e in range(2): S.valu(cvj(k, e), lw[e] + HZ - 0.5, f'cj{k}_{e}')
    V = S.run(NBAR, {28, 29}, 32 if c.lsend else 27, st)
    assert NBAR[0] == (35 if c.lsend else 32), NBAR
    for v in V: a(v['ins'])
    VO = V_RA
    a(f'v_and_b32 v{VO}, 15, v{V_LANE}')
    a(f'v_lshlrev_b32 v{VO}, 12, v{VO}')
    a(f'v_bfe_u32 v{V_T3}, v{V_LANE}, 4, 1')
    a(f'v_lshl_add_u32 v{VO}, v{V_T3}, 5, v{VO}')
    a(f'v_lshrrev_b32 v{V_T3}, 5, v{V_LANE}')
    a(f'v_lshl_add_u32 v{VO}, v{V_T3}, 4, v{VO}')
    a(f's_mov_b32 s{S_TMP+3}, {c.spin}')
    a(f's_mov_b32 s{S_TMP+4}, 0xffff0000')
    a(f's_add_u32 s{S_TMP+5}, s{S_OUTO}, 65536')
    for e in range(2):
        for l in cvj(7, e): a(l)
    for l in rloads((2,)): a(l)
    for e, ins in pmf_ins(7): a(ins)
    stamp(8)
    if c.fine == 99: stamp(9, True)
    O = ACCB[2]
    XT = V_RT
    def check(k, first_wait):
        a(f's_waitcnt vmcnt({first_wait})')
        a(f's_branch XC{k}')
        a.label(f'XR{k}')
        a(f's_sub_u32 s{S_TMP+3}, s{S_TMP+3}, 1')
        a('s_cbranch_scc1 K_END')
        if c.xsleep: a(f's_sleep {c.xsleep}')
        for l in rloads((k,)): a(l)
        a('s_waitcnt vmcnt(0)')
        a.label(f'XC{k}')
        tg = [rreg(k, qx) + 3 for qx in range(3)]
        for i, r in enumerate(tg):
            a(f'v_xor_b32 v{XT+i}, v{r}, v{TGV}')
        a(f'v_or3_b32 v0, v{XT}, v{XT+1}, v{XT+2}')
        a('v_cmp_ne_u32 vcc, 0, v0')
        a(f's_cbranch_vccnz XR{k}')
    def acc(k, first):
        for i in range(8):
            d = rreg(k, i // 3) + i % 3
            if first:
                a(f'v_lshlrev_b32 v{O+2*i}, 16, v{d}')
                a(f'v_and_b32 v{O+2*i+1}, s{S_TMP+4}, v{d}')
            else:
                a(f'v_lshlrev_b32 v{XT+(2*i)%4}, 16, v{d}')
                a(f'v_and_b32 v{XT+(2*i+1)%4}, s{S_TMP+4}, v{d}')
                a(f'v_add_f32 v{O+2*i}, v{O+2*i}, v{XT+(2*i)%4}')
                a(f'v_add_f32 v{O+2*i+1}, v{O+2*i+1}, v{XT+(2*i+1)%4}')
    check(0, 6); acc(0, True)
    check(1, 3); acc(1, False)
    for r in range(16):
        a(f'v_accvgpr_read_b32 v{XT+r%4}, a{AO+r}')
        a(f'v_add_f32 v{O+r}, v{O+r}, v{XT+r%4}')
    check(2, 0)
    stamp(9)
    acc(2, False)
    F = ACCB[0]
    for e in range(2):
        for qi in range(2):
            for x in range(2):
                r = O + 8*e + 4*qi + 2*x
                a(f'v_cvt_pk_bf16_f32 v{F+4*qi+2*e+x}, v{r}, v{r+1}')
    a('s_nop 1')
    for qi in range(2):
        for x in range(2):
            a(f'v_permlane16_swap_b32 v{F+4*qi+x}, v{F+4*qi+2+x}')
    a('s_nop 1')
    a(f'buffer_store_dwordx4 {vr(F,4)}, v{VO}, s[{SRD_OUT}:{SRD_OUT+3}], s{S_OUTO} offen {c.ost}')
    a(f'buffer_store_dwordx4 {vr(F+4,4)}, v{VO}, s[{SRD_OUT}:{SRD_OUT+3}], s{S_TMP+5} offen {c.ost}')

DOC = """;
; One fused kernel, 256 workgroups (one per CU), 8 waves each: waves 0-3 compute, waves 4-7 stream tiles into LDS.
; Workgroup (branch, head group hg, 4-batch block mt, j8):
;   phase 1: q^T = Wq^T x^T for head hg*8+j8 (128 rows x 128 cols, K=1024), S^T = K q^T, softmax (true row max),
;            P^T (bf16) -> workspace, published with a per-launch tag.
;   end    : 4-way reduce-scatter over the head groups through the workspace (bf16 partials, tagged 16-byte granules).
; The tag is chosen per launch by workgroup 0 and handed out through d_debug; all waits are bounded.
; s_barrier n certifies LDS group n and releases the ring slot of stage n-2.  (generated by a script of mine)
"""
def build(c, out):
    P2POS[:] = [int(x) for x in c.p2pos]
    pp = c.p1pos.split('_')
    if len(pp) == 1: pp = pp * 3
    P1POS[:] = [[int(x) for x in p] for p in pp]
    hdr = open('header.txt').read().splitlines()
    t = '\n'.join(hdr) + '\n'
    t += '; @launch grid=(256,1,1) block=(512,1,1) lds=163840\n'
    t += DOC
    t += '.amdgcn_target "amdgcn-amd-amdhsa--gfx950"\n.text\n'
    t += f'.globl {NAME}_kernel\n'
    out_l = []
    for l in gen(c).split('\n'):
        if c.nodma and ' lds' in l and 'sc1' not in l: continue
        if c.noread and ('ds_read_b128' in l or 'ds_read_b64_tr' in l): continue
        if c.nomfma and 'v_mfma' in l: continue
        if c.same and f's_and_b32 s{S_IDX}, s{S_IDX},' in l: l = f'    s_and_b32 s{S_IDX}, s{S_IDX}, 1'
        out_l.append(l)
    t += '\n'.join(out_l)
    t += kd(f'{NAME}_kernel', 256, 102, ACCUM_OFF)
    open(out, 'w').write(t)

if __name__ == '__main__':
    c = Cfg()
    out = sys.argv[1]
    for kv in sys.argv[2:]:
        k, v = kv.split('=', 1)
        old = getattr(c, k)
        if v == 'None': v = None
        elif isinstance(old, bool): v = v in ('1', 'True')
        elif isinstance(old, int): v = int(v)
        setattr(c, k, v)
    build(c, out)
```
